```python
import torch

def _softmax(x, axis=-1):
    return torch.softmax(x, dim=axis)

def _gelu(x):
    return torch.nn.functional.gelu(x, approximate='tanh')

def _silu(x):
    return torch.nn.functional.silu(x)

def _sigmoid(x):
    return torch.sigmoid(x)

def _layernorm(x, axis=-1, eps=1e-05):
    m = x.mean(dim=axis, keepdim=True)
    v = x.var(dim=axis, keepdim=True, unbiased=False)
    return (x - m) / torch.sqrt(v + eps)

def _scatter_add(tgt, idx, src, axis=0):
    return tgt.clone().index_add_(axis, idx, src)

def _segment_sum(src, seg, n):
    out = torch.zeros((n,) + src.shape[1:], dtype=src.dtype)
    return out.index_add_(0, seg, src)

def _pad(x, pw):
    flat = tuple((v for pair in reversed(pw) for v in pair))
    return torch.nn.functional.pad(x, flat)
kernel_name = 'recurrent_scan__memory_aug_recurrent_mem_tr__dense_activation_gelu__prompt'

def setup_inputs():

    _w = lambda a: (lambda t: t.to(torch.bfloat16) if t.is_floating_point() else t)(torch.as_tensor(a))

    def _A_setup():
        B, S, Dm = (1, 2048, 1024)
        H, Dh = (32, 128)
        M, seg = (8, 32)
        seg = min(seg, S)
        S = S // seg * seg
        return {'x': _w((lambda *s: torch.randn(*s, dtype=torch.bfloat16) * 0.1)(B, S, Dm)), 'mem0': _w((lambda *s: torch.randn(*s, dtype=torch.bfloat16) * 1.6)(B, M, Dm)), 'Wq': _w((lambda *s: torch.randn(*s, dtype=torch.bfloat16) * 0.8)(Dm, H, Dh) * Dm ** (-0.5)), 'Wk': _w((lambda *s: torch.randn(*s, dtype=torch.bfloat16) * 0.8)(Dm, H, Dh) * Dm ** (-0.5)), 'Wv': _w((lambda *s: torch.randn(*s, dtype=torch.bfloat16) * 1.6)(Dm, H, Dh) * Dm ** (-0.5)), 'Wo': _w((lambda *s: torch.randn(*s, dtype=torch.bfloat16) * 1.6)(H, Dh, Dm) * (H * Dh) ** (-0.5)), 'seg_len': seg}
    _A_in = _A_setup()

    def _B_setup():
        B, S, D, F = (1, 2048, 1024, 3584)
        return {'x': _w((lambda *s: torch.randn(*s, dtype=torch.bfloat16) * 0.1)(B, S, D)), 'w1': _w((lambda *s: torch.randn(*s, dtype=torch.bfloat16) * 0.4)(D, F) * D ** (-0.5)), 'b1': _w((lambda *s: torch.randn(*s, dtype=torch.bfloat16) * 0.4)(F) * 0.01), 'w2': _w((lambda *s: torch.randn(*s, dtype=torch.bfloat16) * 0.4)(F, D) * F ** (-0.5)), 'b2': _w((lambda *s: torch.randn(*s, dtype=torch.bfloat16) * 0.4)(D) * 0.01)}
    _B_in = _B_setup()
    return {'A_x': _A_in['x'], 'A_mem0': _A_in['mem0'], 'A_Wq': _A_in['Wq'], 'A_Wk': _A_in['Wk'], 'A_Wv': _A_in['Wv'], 'A_Wo': _A_in['Wo'], 'A_seg_len': _A_in['seg_len'], 'B_x': _B_in['x'], 'B_w1': _B_in['w1'], 'B_b1': _B_in['b1'], 'B_w2': _B_in['w2'], 'B_b2': _B_in['b2']}

def reference(A_x, A_mem0, A_Wq, A_Wk, A_Wv, A_Wo, A_seg_len, B_x, B_w1, B_b1, B_w2, B_b2):

    def _A_ref(x, mem0, Wq, Wk, Wv, Wo, seg_len):
        B, S, Dm = x.shape
        H, Dh = (Wq.shape[1], Wq.shape[2])
        M = mem0.shape[1]
        scale = Dh ** (-0.5)
        n_seg = S // seg_len
        L = M + seg_len
        idx = torch.arange(L)
        mask = (idx[:, None] < M) | (idx[:, None] >= idx[None, :])
        mem = mem0
        outs = []
        for s in range(n_seg):
            xs = x[:, s * seg_len:(s + 1) * seg_len, :].clone()
            h = torch.concatenate([mem, xs], axis=1)
            q = torch.einsum('btd,dhe->bhte', h, Wq)
            k = torch.einsum('btd,dhe->bhte', h, Wk)
            v = torch.einsum('btd,dhe->bhte', h, Wv)
            scores = torch.einsum('bhqe,bhke->bhqk', q, k) * scale
            scores = torch.where(mask[None, None], scores, -1000000000.0)
            p = _softmax(scores, axis=-1)
            o = torch.einsum('bhqk,bhke->bhqe', p, v)
            o = torch.einsum('bhte,hed->btd', o, Wo)
            mem = o[:, :M, :].clone()
            outs.append(o[:, M:, :])
        return torch.concatenate(outs, axis=1)

    def _B_ref(x, w1, b1, w2, b2):
        h = torch.einsum('bsd,df->bsf', x, w1) + b1
        h = _gelu(h)
        return torch.einsum('bsf,fd->bsd', h, w2) + b2
    x = A_x
    xn = _layernorm(x, axis=-1)
    s = _A_ref(xn, A_mem0, A_Wq, A_Wk, A_Wv, A_Wo, A_seg_len)
    g = _silu(_B_ref(xn, B_w1, B_b1, B_w2, B_b2))
    return x + s * g
```

```python
from common import *
from gemm import f2u, poll_flags
from chain import MF32, MF16, CEXP, chk, run_ring, TMO, stamp, stamp_dump

def gen_a(g, opt):
    Q, KXR, VXR, KMR, VMR = 64, 80, 112, 128, 144
    MK = 16
    S, P, O, L = 160, 172, 180, 196
    g("R_A:")
    g(f"""
    s_lshr_b32 s34, s24, 1
    s_and_b32 s35, s24, 1
    v_lshlrev_b32 v3, 4, v1
    v_and_b32 v11, 15, v1
    v_lshrrev_b32 v12, 4, v1
    s_lshl_b32 s43, s34, 12
    v_add_u32 v4, s43, v3
    v_add_u32 v5, 4096, v3
    s_lshl_b32 s43, s35, 12
    v_add_u32 v6, s43, v3
    v_and_b32 v13, 7, v1
    v_lshlrev_b32 v7, 4, v13
    v_lshl_add_u32 v7, v12, 7, v7
    v_lshlrev_b32 v8, 4, v11
    v_and_b32 v13, 1, v12
    v_lshl_add_u32 v8, v13, 3, v8
    s_lshl_b32 s43, s35, 10
    v_add_u32 v8, s43, v8
    v_mov_b32 v14, {hex(f2u(-1e30))}
    v_mov_b32 v15, 0
    v_lshlrev_b32 v12, 2, v12
    s_lshl_b32 s43, s34, 4
    v_add_u32 v11, s43, v11
    """)
    for t in range(2):
        for r in range(4):
            g(f"v_add_u32 v13, {16*t+r}, v12")
            g("v_cmp_le_u32 vcc, v13, v11")
            g("s_nop 1")
            g(f"v_cndmask_b32 v{MK+4*t+r}, v14, v15, vcc")
    g("v_cmp_gt_u32 vcc, 32, v1\ns_nop 1")
    for r in range(4): g(f"v_cndmask_b32 v{MK+8+r}, v14, v15, vcc")
    for r in range(4): g(f"v_mov_b32 v{28+r}, 0x3f803f80")
    g(f"""
    s_lshl_b32 s49, s27, 13
    s_add_u32 s50, s49, {QX}
    s_add_u32 s51, s49, {KX}
    s_add_u32 s52, s49, {VX}
    s_lshl_b32 s49, s27, 11
    s_add_u32 s53, s49, {KM}
    s_add_u32 s54, s49, {VM}
    s_lshl_b32 s49, s27, 12
    s_lshl_b32 s43, s35, 11
    s_add_u32 s49, s49, s43
    s_lshl_b32 s43, s34, 17
    s_add_u32 s49, s49, s43
    s_add_u32 s55, s49, {OX}
    s_lshl_b32 s49, s27, 3
    s_lshl_b32 s43, s35, 2
    s_add_u32 s49, s49, s43
    s_lshl_b32 s43, s34, 8
    s_add_u32 s49, s49, s43
    s_add_u32 s56, s49, {FLG+F_O}
    s_lshr_b32 s57, s27, 1
    s_lshl_b32 s57, s57, 4
    s_add_u32 s57, s57, {FLG+F_KVQ}
    s_mov_b32 s60, 0
    s_mov_b32 s66, {hex(f2u(CEXP))}
    v_mov_b32 v9, 0
    v_mov_b32 v10, 1
    """)
    def km_loads():
        for b in range(4): g(f"buffer_load_dwordx4 {vr(KMR+4*b,4)}, v7, s[4:7], s53 offen offset:{512*b} sc1")
    def vm_loads():
        for t in range(4): g(f"buffer_load_dwordx2 {vr(VMR+2*t,2)}, v8, s[4:7], s54 offen offset:{256*t} sc1")
    def xloads():
        km_loads()
        for b in range(4): g(f"buffer_load_dwordx4 {vr(Q+4*b,4)}, v4, s[4:7], s50 offen offset:{1024*b} sc1")
        for q in range(8): g(f"buffer_load_dwordx4 {vr(KXR+4*q,4)}, v{3 if q < 4 else 5}, s[4:7], s51 offen offset:{1024*(q%4)} sc1")
        for t in range(4): g(f"buffer_load_dwordx4 {vr(VXR+4*t,4)}, v6, s[4:7], s52 offen offset:{1024*t} sc1")
    def maxchk(base, n):
        g(f"v_max3_u32 v11, v{base}, v{base+1}, v{base+2}")
        i = 3
        while i + 1 < n:
            g(f"v_max3_u32 v11, v11, v{base+i}, v{base+i+1}"); i += 2
        if i < n: g(f"v_max_u32 v11, v11, v{base+i}")
        g("v_cmp_eq_u32 vcc, -1, v11")
    poll_flags(g, 3, "s57", "M_END")
    xloads()
    RK, CK, RV, CV = g.lab("ARK"), g.lab("ACK"), g.lab("ARV"), g.lab("ACV")
    g("A_LOOP:")
    g("s_mov_b32 s44, 0")
    g("s_waitcnt vmcnt(16)")
    maxchk(KMR, 16)
    g(f"s_cbranch_vccnz {RK}\n{CK}:")
    vm_loads()
    g("s_waitcnt vmcnt(8)")
    for b in range(4):
        X = vr(Q+4*b, 4)
        for t, A in enumerate((KXR+4*b, KXR+16+4*b, KMR+4*b)):
            g(f"{MF32} {vr(S+4*t,4)}, {vr(A,4)}, {X}, {vr(MK+4*t,4) if b == 0 else vr(S+4*t,4)}")
    g(f"""
    s_nop 5
    v_max3_f32 v12, v{S}, v{S+1}, v{S+2}
    v_max3_f32 v12, v12, v{S+3}, v{S+4}
    v_max3_f32 v12, v12, v{S+5}, v{S+6}
    v_max3_f32 v13, v{S+7}, v{S+8}, v{S+9}
    v_max3_f32 v13, v13, v{S+10}, v{S+11}
    v_max_f32 v12, v12, v13
    v_max_f32 v13, v12, v13
    s_nop 1
    v_permlane32_swap_b32 v12, v13
    v_max_f32 v12, v12, v13
    v_max_f32 v13, v12, v13
    s_nop 1
    v_permlane16_swap_b32 v12, v13
    v_max_f32 v12, v12, v13
    v_mul_f32 v12, s66, v12
    """)
    for i in range(12): g(f"v_fma_f32 v{S+i}, v{S+i}, s66, -v12")
    for i in range(12): g(f"v_exp_f32 v{S+i}, v{S+i}")
    for i in range(6): g(f"v_cvt_pk_bf16_f32 v{P+i}, v{S+2*i}, v{S+2*i+1}")
    g("s_waitcnt vmcnt(0)")
    maxchk(VMR, 8)
    g(f"s_cbranch_vccnz {RV}\n{CV}:")
    g(f"{MF32} {vr(L,4)}, v[28:31], {vr(P,4)}, 0")
    for t in range(4): g(f"{MF32} {vr(O+4*t,4)}, {vr(VXR+4*t,4)}, {vr(P,4)}, 0")
    g(f"{MF16} {vr(L,4)}, v[28:29], {vr(P+4,2)}, {vr(L,4)}")
    for t in range(4): g(f"{MF16} {vr(O+4*t,4)}, {vr(VMR+2*t,2)}, {vr(P+4,2)}, {vr(O+4*t,4)}")
    g(f"s_nop 3\nv_rcp_f32 v{L}, v{L}\ns_nop 0")
    for i in range(16): g(f"v_mul_f32 v{O+i}, v{O+i}, v{L}")
    for i in range(8): g(f"v_cvt_pk_bf16_f32 v{200+i}, v{O+2*i}, v{O+2*i+1}")
    for i in range(2): g(f"buffer_store_dwordx4 {vr(200+4*i,4)}, v3, s[4:7], s55 offen offset:{1024*i} sc1")
    last = g.lab("AL"); nofl = g.lab("ANF"); fl = g.lab("AFL")
    g(f"""
    s_add_u32 s60, s60, 1
    s_add_u32 s50, s50, 262144
    s_add_u32 s51, s51, 262144
    s_add_u32 s52, s52, 262144
    s_add_u32 s53, s53, 65536
    s_add_u32 s54, s54, 65536
    s_add_u32 s55, s55, 262144
    s_and_b32 s43, s60, 7
    s_cmp_lg_u32 s43, 0
    s_cbranch_scc1 {nofl}
    s_waitcnt vmcnt(0)
    s_mov_b64 exec, 1
    buffer_store_dword v10, v9, s[4:7], s56 offen sc1
    s_mov_b64 exec, -1
    s_add_u32 s56, s56, 512
    s_cmp_eq_u32 s60, 64
    s_cbranch_scc1 M_END2
    s_add_u32 s57, s57, 256
    """)
    poll_flags(g, 3, "s57", "M_END")
    xloads()
    g(f"s_branch A_LOOP\n{nofl}:")
    xloads()
    g(f"""
    s_waitcnt vmcnt(20)
    s_mov_b64 exec, 1
    buffer_store_dword v10, v9, s[4:7], s56 offen sc1
    s_mov_b64 exec, -1
    s_add_u32 s56, s56, 512
    s_mov_b32 s44, 0
    s_waitcnt vmcnt(17)
    """)
    maxchk(KMR, 16)
    g(f"s_cbranch_vccz {CK}")
    g(f"""
    {RK}:
    s_add_u32 s44, s44, 1
    s_cmp_gt_u32 s44, {TMO}
    s_cbranch_scc1 M_END
    s_sleep 4
    """)
    km_loads()
    g("s_waitcnt vmcnt(0)")
    maxchk(KMR, 16)
    g(f"s_cbranch_vccz {CK}\ns_branch {RK}")
    g(f"""
    {RV}:
    s_add_u32 s44, s44, 1
    s_cmp_gt_u32 s44, {TMO}
    s_cbranch_scc1 M_END
    """)
    vm_loads()
    g("s_waitcnt vmcnt(0)")
    maxchk(VMR, 8)
    g(f"s_cbranch_vccz {CV}\ns_branch {RV}")

def gen_p(g, opt):
    g("R_P:")
    srd(g, 8, A_WO, 8*MB); srd(g, 12, A_X, 4*MB); srd(g, 16, A_OUT, 4*MB)
    g(f"""
    s_lshl_b32 s40, s24, 15
    s_lshl_b32 s42, s24, 21
    s_lshl_b32 s43, s27, 6
    s_add_u32 s42, s42, s43
    v_bfe_u32 v8, v1, 4, 1
    v_lshlrev_b32 v8, 1, v8
    v_xor_b32 v9, v8, v1
    v_and_b32 v9, 3, v9
    v_lshrrev_b32 v10, 2, v1
    v_lshlrev_b32 v2, 11, v10
    v_lshl_add_u32 v2, v9, 4, v2
    v_lshlrev_b32 v10, 6, v10
    v_and_b32 v9, 3, v1
    v_lshl_add_u32 v10, v9, 3, v10
    v_add_u32 v10, s40, v10
    v_lshl_add_u32 v4, v8, 4, v10
    v_xor_b32 v8, 2, v8
    v_lshl_add_u32 v5, v8, 4, v10
    s_waitcnt lgkmcnt(0)
    """)
    def issue(hh, buf):
        for i in range(8):
            if i % 4 == 0: g(f"s_add_u32 m0, s40, {buf*8192 + i*1024}")
            g(f"s_add_u32 s41, s42, {hh*262144 + i*32768 - (i&3)*1024}")
            g(f"buffer_load_dwordx4 v2, s[8:11], s41 offen offset:{(i&3)*1024} lds")
    def read(hh, buf):
        for kbl in range(4):
            for t in range(2):
                for j in range(2):
                    g(f"ds_read_b64_tr_b16 {ar(((hh*4+kbl)*2+t)*4+2*j,2)}, v{4+t} offset:{buf*8192+kbl*2048+j*1024}")
    run_ring(g, [(lambda buf, hh=hh: issue(hh, buf), lambda buf, hh=hh: read(hh, buf), None) for hh in range(8)])
    g(f"""
    s_barrier
    v_lshlrev_b32 v3, 4, v1
    s_lshl_b32 s43, s24, 11
    v_add_u32 v4, s43, v3
    s_lshl_b32 s43, s24, 10
    v_add_u32 v5, s43, v3
    s_lshl_b32 s43, s24, 3
    v_add_u32 v6, s43, v3
    v_and_b32 v8, 15, v1
    v_lshlrev_b32 v7, 11, v8
    v_lshrrev_b32 v8, 4, v1
    v_lshl_add_u32 v7, v8, 3, v7
    s_lshl_b32 s43, s24, 5
    s_lshl_b32 s47, s27, 6
    s_add_u32 s43, s43, s47
    v_add_u32 v7, s43, v7
    s_lshl_b32 s50, s26, 17
    s_lshl_b32 s43, s24, 15
    s_add_u32 s50, s50, s43
    s_add_u32 s50, s50, {OX}
    s_lshl_b32 s51, s26, 15
    s_lshl_b32 s43, s27, 10
    s_add_u32 s52, s51, s43
    s_add_u32 s52, s52, {GB}
    s_lshl_b32 s53, s26, 8
    s_add_u32 s53, s53, {FLG+F_O}
    s_lshr_b32 s54, s27, 3
    s_lshl_b32 s54, s54, 2
    s_add_u32 s54, s54, {FLG+F_G}
    s_mov_b32 s60, 0
    P_LOOP:
    s_and_b32 s43, s60, 3
    s_cmp_lg_u32 s43, 0
    s_cbranch_scc1 P_NOG
    """)
    poll_flags(g, 1, "s54", "M_END")
    g("s_add_u32 s54, s54, 128\nP_NOG:")
    poll_flags(g, 64, "s53", "M_END")
    g("""
    buffer_load_dwordx2 v[16:17], v6, s[4:7], s52 offen sc1
    buffer_load_dwordx2 v[18:19], v7, s[12:15], s51 offen
    """)
    for k in range(32):
        if k % 4 == 0: g(f"s_add_u32 s41, s50, {k*1024}")
        g(f"buffer_load_dwordx4 {vr(64+4*k,4)}, v3, s[4:7], s41 offen offset:{(k%4)*1024} sc1")
    for k in range(32):
        g(f"s_waitcnt vmcnt({31-k})")
        for t in range(2):
            g(f"{MF32} {vr(24+4*t,4)}, {ar((k*2+t)*4,4)}, {vr(64+4*k,4)}, {'0' if k == 0 else vr(24+4*t,4)}")
    g(f"""
    s_nop 7
    ds_write_b128 v4, v[24:27]
    ds_write_b128 v4, v[28:31] offset:1024
    s_waitcnt lgkmcnt(0)
    s_barrier
    s_cmp_ge_u32 s24, 2
    s_cbranch_scc1 P_NEXT
    """)
    for w in range(4): g(f"ds_read_b128 {vr(32+4*w,4)}, v5 offset:{2048*w}")
    g("""
    v_lshlrev_b32 v48, 16, v16
    v_and_b32 v49, 0xffff0000, v16
    v_lshlrev_b32 v50, 16, v17
    v_and_b32 v51, 0xffff0000, v17
    v_lshlrev_b32 v52, 16, v18
    v_and_b32 v53, 0xffff0000, v18
    v_lshlrev_b32 v54, 16, v19
    v_and_b32 v55, 0xffff0000, v19
    s_waitcnt lgkmcnt(0)
    """)
    for i in range(4):
        g(f"v_add_f32 v{32+i}, v{32+i}, v{36+i}")
        g(f"v_add_f32 v{40+i}, v{40+i}, v{44+i}")
    for i in range(4): g(f"v_add_f32 v{32+i}, v{32+i}, v{40+i}")
    def rnd(a):
        for i in range(2):
            g(f"v_cvt_pk_bf16_f32 v{56+i}, v{a+2*i}, v{a+2*i+1}")
        for i in range(2):
            g(f"v_lshlrev_b32 v{a+2*i}, 16, v{56+i}")
            g(f"v_and_b32 v{a+2*i+1}, 0xffff0000, v{56+i}")
    rnd(32)
    for i in range(4): g(f"v_mul_f32 v{32+i}, v{32+i}, v{48+i}")
    rnd(32)
    for i in range(4): g(f"v_add_f32 v{32+i}, v{32+i}, v{52+i}")
    g("""
    v_cvt_pk_bf16_f32 v58, v32, v33
    v_cvt_pk_bf16_f32 v59, v34, v35
    buffer_store_dwordx2 v[58:59], v7, s[16:19], s51 offen
    P_NEXT:
    v_xor_b32 v4, 8192, v4
    v_xor_b32 v5, 8192, v5
    s_add_u32 s60, s60, 1
    s_add_u32 s50, s50, 524288
    s_add_u32 s51, s51, 131072
    s_add_u32 s52, s52, 131072
    s_add_u32 s53, s53, 1024
    s_cmp_lt_u32 s60, 32
    s_cbranch_scc1 P_LOOP
    s_branch M_END2
    """)
```

```python
from common import *
from gemm import f2u
import math
TMO = 30000
SMF = "v_smfmac_f32_16x16x64_bf16"
MF32 = "v_mfma_f32_16x16x32_bf16"
MF16 = "v_mfma_f32_16x16x16_bf16"
CEXP = 128 ** -0.5 * math.log2(math.e)

def delay(g, clks):
    clks = int(clks)
    if clks >= 128:
        g(f"s_sleep {min(127, clks//64)}"); clks %= 64
    while clks >= 64:
        g("s_nop 15"); clks -= 64
    if clks >= 4: g(f"s_nop {clks//4-1}")

def stamp(g, opt, vreg, stepreg, real=True):
    if not opt.get("stamps"): return
    g(f"""
    {'s_memrealtime' if real else 's_memtime'} s[70:71]
    s_mov_b32 m0, {stepreg}
    s_waitcnt lgkmcnt(0)
    v_writelane_b32 v{vreg}, s70, m0
    """)

def stamp_dump(g, opt, regs, idreg):
    if not opt.get("stamps"): return
    g(f"""
    s_lshl_b32 s70, {idreg}, 2
    s_add_u32 s70, s70, s24
    s_lshl_b32 s70, s70, 11
    s_add_u32 s70, s70, {FLG+MB}
    v_lshlrev_b32 v11, 2, v1
    """)
    for k, r in enumerate(regs):
        g(f"buffer_store_dword v{r}, v11, s[4:7], s70 offen offset:{256*k}")

def wide_addrs(g, vpar, vtr, t0):
    g(f"""
    v_lshrrev_b32 v{t0}, 3, v1
    v_lshlrev_b32 v{t0}, 13, v{t0}
    v_lshrrev_b32 v{t0+1}, 5, v1
    v_lshlrev_b32 v{t0+1}, 1, v{t0+1}
    v_and_b32 v{t0+2}, 7, v1
    v_xor_b32 v{t0+1}, v{t0+1}, v{t0+2}
    v_lshl_add_u32 v{vpar}, v{t0+1}, 4, v{t0}
    v_xor_b32 v{t0+1}, 4, v{t0+1}
    v_lshl_add_u32 v{vpar+1}, v{t0+1}, 4, v{t0}
    """)
    g(f"""
    v_bfe_u32 v{t0}, v1, 2, 1
    v_bfe_u32 v{t0+1}, v1, 4, 1
    v_bfe_u32 v{t0+2}, v1, 3, 1
    v_lshl_add_u32 v{t0+1}, v{t0+2}, 1, v{t0+1}
    v_lshl_add_u32 v{t0}, v{t0+1}, 2, v{t0}
    v_bfe_u32 v{t0+2}, v1, 5, 1
    v_lshl_add_u32 v{t0}, v{t0+2}, 4, v{t0}
    v_lshlrev_b32 v{t0}, 7, v{t0}
    v_and_b32 v{t0+2}, 3, v1
    v_lshl_add_u32 v{t0}, v{t0+2}, 3, v{t0}
    v_add_u32 v{t0}, s40, v{t0}
    """)
    for c in range(4):
        g(f"v_xor_b32 v{t0+2}, {c}, v{t0+1}")
        g(f"v_lshl_add_u32 v{vtr+c}, v{t0+2}, 5, v{t0}")

def wide_issue(g, srdreg, sbase, f, buf, vpar):
    for i in range(8):
        if i % 4 == 0: g(f"s_add_u32 m0, s40, {buf*8192 + i*1024}")
        g(f"s_add_u32 s41, {sbase}, {(64*f+8*i)*8192 - (i&3)*1024}")
        g(f"buffer_load_dwordx4 v{vpar+(i&1)}, s[{srdreg}:{srdreg+3}], s41 offen offset:{(i&3)*1024} lds")

def wide_read(g, dst, buf, vtr):
    for c in range(4):
        k, b = dst(c)
        for hf in range(2):
            for u in range(2):
                g(f"ds_read_b64_tr_b16 {vr(b+4*hf+2*u,2,k)}, v{vtr+c} offset:{buf*8192+hf*4096+u*256}")

def run_ring(g, units):
    n = len(units)
    for u in range(min(4, n)): units[u][0](u % 4)
    for u in range(n):
        g(f"s_waitcnt vmcnt({8*min(3, n-1-u)})")
        units[u][1](u % 4)
        g("s_waitcnt lgkmcnt(0)")
        if units[u][2]: units[u][2](u % 4)
        if u + 4 < n: units[u+4][0](u % 4)

def chk(g, r, n=4, t=11):
    L = []
    if n == 4:
        L.append(f"v_max3_u32 v{t}, v{r}, v{r+1}, v{r+2}")
        L.append(f"v_max_u32 v{t}, v{t}, v{r+3}")
    L.append(f"v_cmp_eq_u32 vcc, -1, v{t}")
    return L

def idx_reg(g, v, t):
    g(f"""
    v_and_b32 v{t}, 1, v1
    v_mov_b32 v{v}, 0x4444
    v_cmp_eq_u32 vcc, 1, v{t}
    v_mov_b32 v{t}, 0xeeee
    s_nop 0
    v_cndmask_b32 v{v}, v{v}, v{t}, vcc
    """)

def kv_flags(g, fail):
    top = g.lab("KF"); ok = g.lab("KFOK")
    g(f"""
    s_lshl_b32 s47, s45, 8
    s_add_u32 s47, s47, s46
    s_mov_b32 s44, 0
    v_mov_b32 v11, 0
    {top}:
    buffer_load_dwordx2 v[16:17], v11, s[4:7], s47 offen sc1
    s_waitcnt vmcnt(0)
    v_and_b32 v16, v16, v17
    s_nop 0
    v_readfirstlane_b32 s48, v16
    s_cmp_lg_u32 s48, 0
    s_cbranch_scc1 {ok}
    s_sleep 8
    s_add_u32 s44, s44, 1
    s_cmp_lt_u32 s44, {TMO}
    s_cbranch_scc1 {top}
    s_branch {fail}
    {ok}:
    """)

LKX, LVX, LIMG, LW = 0, 16384, 24576, 32768
AF = [0, 1, 2, 4, 5, 6, 8, 9]; VF = [10, 12, 13, 14]; LF = [3, 7, 11, 15]
def s_op(f, c):
    if f in AF: return ("a", AF.index(f)*32 + 8*c)
    if f in VF: return ("v", 128 + VF.index(f)*32 + 8*c)
    return ("v", 32 + 8*c)
M0R = 64
def gen_s(g, opt):
    F0 = opt.get("F0", 11)
    g("R_S:")
    g("s_setprio 3")
    srd(g, 8, A_WQ, 8*MB); srd(g, 12, A_WK, 8*MB)
    g(f"""
    s_lshl_b32 s40, s24, 15
    s_add_u32 s40, s40, {LW}
    s_lshl_b32 s42, s27, 8
    s_and_b32 s43, s24, 1
    s_lshl_b32 s43, s43, 7
    s_add_u32 s42, s42, s43
    s_waitcnt lgkmcnt(0)
    s_cmp_ge_u32 s24, 2
    s_cselect_b32 s8, s12, s8
    s_cselect_b32 s9, s13, s9
    """)
    wide_addrs(g, 2, 4, 8)
    g("v_lshlrev_b32 v12, 4, v1\nv_add_u32 v12, s40, v12")
    units = []
    for f in AF + VF + LF:
        def post(buf):
            for c in range(4):
                for q in range(2):
                    g(f"ds_write_b128 v12, {vr(32+8*c+4*q,4)} offset:{buf*8192+(2*c+q)*1024}")
            g("s_waitcnt lgkmcnt(0)")
        units.append((lambda buf, f=f: wide_issue(g, 8, "s42", f, buf, 2),
                      lambda buf, f=f: wide_read(g, lambda c: s_op(f, c), buf, 4),
                      post if f in LF else None))
    run_ring(g, units)
    idx_reg(g, 2, 11)
    g(f"""
    v_lshlrev_b32 v3, 4, v1
    v_mov_b32 v4, v12
    v_and_b32 v11, 15, v1
    v_lshrrev_b32 v16, 4, v1
    s_and_b32 s43, s24, 1
    s_lshl_b32 s43, s43, 11
    s_lshr_b32 s47, s24, 1
    s_lshl_b32 s47, s47, 4
    s_add_u32 s43, s43, s47
    s_add_u32 s43, s43, {LIMG}
    v_lshlrev_b32 v5, 5, v11
    v_lshl_add_u32 v5, v16, 2, v5
    v_add_u32 v5, s43, v5
    v_lshlrev_b32 v6, 3, v1
    v_add_u32 v6, {LIMG}, v6
    v_mov_b32 v7, v3
    s_lshl_b32 s43, s24, 11
    v_add_u32 v12, s43, v3
    s_lshl_b32 s43, s27, 11
    s_lshl_b32 s47, s24, 9
    s_add_u32 s43, s43, s47
    v_lshlrev_b32 v8, 4, v11
    v_and_b32 v17, 1, v16
    v_lshl_add_u32 v8, v17, 3, v8
    v_add_u32 v8, s43, v8
    v_add_u32 v8, {VM}, v8
    v_and_b32 v18, 7, v1
    v_lshlrev_b32 v10, 4, v18
    v_lshl_add_u32 v10, v16, 7, v10
    v_add_u32 v10, s43, v10
    v_add_u32 v10, {KM}, v10
    v_bfe_u32 v18, v1, 2, 1
    v_lshlrev_b32 v9, 15, v18
    v_and_b32 v18, 3, v1
    v_lshl_add_u32 v9, v18, 5, v9
    v_lshl_add_u32 v9, v17, 4, v9
    v_lshrrev_b32 v18, 5, v1
    v_lshl_add_u32 v9, v18, 7, v9
    s_lshl_b32 s43, s27, 10
    s_lshl_b32 s47, s24, 8
    s_add_u32 s43, s43, s47
    s_add_u32 s43, s43, {OM}
    v_add_u32 v9, s43, v9
    v_mov_b32 v18, {OOB}
    v_cmp_gt_u32 vcc, 8, v11
    v_mov_b32 v13, 0
    s_nop 0
    v_cndmask_b32 v9, v18, v9, vcc
    v_cndmask_b32 v10, v10, v18, vcc
    v_mov_b32 v18, {hex(f2u(-1e30))}
    v_cmp_gt_u32 vcc, 32, v1
    s_lshr_b32 s46, s27, 1
    s_lshl_b32 s46, s46, 4
    v_cndmask_b32 v13, v13, v18, vcc
    s_add_u32 s46, s46, {FLG+F_KVQ}
    s_lshl_b32 s49, s27, 13
    s_add_u32 s50, s49, {KX}
    s_add_u32 s51, s49, {VX}
    s_lshl_b32 s52, s24, 11
    s_add_u32 s53, s52, {LVX}
    s_mov_b32 s60, 0
    s_mov_b32 s61, {MEM}
    s_mov_b32 s65, 0
    s_mov_b32 s66, {hex(f2u(CEXP))}
    s_mov_b32 s67, -2
    s_mov_b32 s68, 0
    s_mov_b32 s45, 0
    """)
    kv_flags(g, "S_END")
    def dma_k():
        g(f"""
        s_mov_b32 m0, s52
        s_xor_b32 s52, s52, 8192
        buffer_load_dwordx4 v12, s[4:7], s50 offen sc1 lds
        buffer_load_dwordx4 v12, s[4:7], s50 offen offset:1024 sc1 lds
        s_add_u32 s50, s50, 262144
        """)
    def dma_v():
        g(f"""
        s_mov_b32 m0, s53
        s_nop 0
        buffer_load_dwordx4 v12, s[4:7], s51 offen sc1 lds
        buffer_load_dwordx4 v12, s[4:7], s51 offen offset:1024 sc1 lds
        s_add_u32 s51, s51, 262144
        """)
    dma_k(); dma_k(); dma_v()
    g("s_waitcnt vmcnt(0)\ns_barrier")
    def tread(j):
        return [f"ds_read_b128 {vr(32+4*q,4)}, v4 offset:{j*8192+q*1024}" for q in range(8)]
    def ld(f): return f"buffer_load_dwordx4 {vr(M0R+4*f,4)}, v3, s[4:7], s{61+f//4} offen offset:{(f%4)*1024} sc1"
    g("S_LOOP:")
    g("""
    s_add_u32 s62, s61, 4096
    s_add_u32 s63, s61, 8192
    s_add_u32 s64, s61, 12288
    """)
    for x in tread(0): g(x)
    for i in range(16): g(f"v_mov_b32 v{16+i}, 0")
    delay(g, opt.get("dS", 0))
    stamp(g, opt, 14, "s60")
    for f in range(16): g(ld(f))
    R = [g.lab("SR") for f in range(16)]; C = [g.lab("SC") for f in range(16)]
    g("s_mov_b32 s44, 0")
    g("s_waitcnt vmcnt(15)")
    for x in chk(g, M0R): g(x)
    g(f"s_cbranch_vccnz {R[0]}")
    g(f"{C[0]}:")
    extra = {f: [] for f in range(16)}
    t1, t2, t3 = tread(1), tread(2), tread(3)
    extra[4] += t1[:4]; extra[5] += t1[4:]
    kx = [f"ds_read_b128 {vr(68+4*q,4)}, v7 offset:{LKX+q*1024}" for q in range(8)]
    extra[6] += kx[:4]; extra[7] += kx[4:6]
    extra[8] += t2[:4]; extra[9] += t2[4:]; extra[10] += kx[6:]
    extra[12] += t3[:4]; extra[13] += t3[4:]
    extra[11] += [f"ds_read_b128 {vr(100+4*t,4)}, v12 offset:{LVX+t*1024}" for t in range(2)]
    extra[14] += [f"v_mov_b32 v{108+i}, v13" for i in range(4)]
    vm = [f"buffer_load_dwordx2 {vr(64+2*t,2)}, v8, s[4:7], s65 offen offset:{256*t} sc1" for t in range(2)]
    extra[F0] = vm + extra[F0]
    for f in range(16):
        if f in LF: g("s_waitcnt lgkmcnt(0)")
        ex = list(extra[f])
        for c in range(4):
            k, b = s_op(f, c)
            g(f"{SMF} {vr(16+4*c,4)}, {vr(M0R+4*f,4)}, {vr(b,8,k)}, v2")
            if c < 2:
                for x in ex[2*c:2*c+2]: g(x)
            if c == 2 and f < 15:
                for x in ex[4:]: g(x)
                g(f"s_waitcnt vmcnt({14-f + (2 if f >= F0 else 0)})")
                for x in chk(g, M0R+4*(f+1))[:2]: g(x)
            if c == 3 and f < 15:
                g(chk(g, M0R+4*(f+1))[2])
                g(f"s_cbranch_vccnz {R[f+1]}")
                g(f"{C[f+1]}:")
    g("s_nop 4")
    for c in range(4):
        a = 16 + 4*c
        g(f"v_add_f32 v{a}, v{a}, v{a+1}")
        g(f"v_add_f32 v{a+2}, v{a+2}, v{a+3}")
        g(f"v_cvt_pk_bf16_f32 v{a}, v{a}, v{a+2}")
        if c % 2 == 1: g(f"ds_write2_b32 v5, v{a-4}, v{a} offset0:{(c-1)*128 % 256} offset1:{(c*128) % 256}" if c == 1 else
                         f"ds_write2st64_b32 v5, v{a-4}, v{a} offset0:4 offset1:6")
    g("s_waitcnt lgkmcnt(0)")
    g("s_barrier")
    for b in range(4):
        for j in range(2):
            g(f"ds_read_b64_tr_b16 {vr(32+4*b+2*j,2)}, v6 offset:{b*1024+j*512}")
    for i in range(4): g(f"v_mov_b32 v{112+i}, 0x3f803f80")
    g("s_cmp_eq_u32 s60, 63")
    g("s_cbranch_scc1 S_KM")
    for b in range(4):
        g(f"s_waitcnt lgkmcnt({6-2*b})")
        X = vr(32+4*b, 4)
        g(f"{MF32} v[48:51], {vr(68+4*b,4)}, {X}, {'0' if b == 0 else 'v[48:51]'}")
        g(f"{MF32} v[52:55], {vr(68+16+4*b,4)}, {X}, {'0' if b == 0 else 'v[52:55]'}")
        g(f"{MF32} v[56:59], {X}, {X}, {'v[108:111]' if b == 0 else 'v[56:59]'}")
    g(f"""
    s_nop 5
    v_max3_f32 v60, v48, v49, v50
    v_max3_f32 v60, v60, v51, v52
    v_max3_f32 v60, v60, v53, v54
    v_max3_f32 v61, v55, v56, v57
    v_max3_f32 v61, v61, v58, v59
    v_max_f32 v60, v60, v61
    v_max_f32 v61, v60, v61
    s_nop 1
    v_permlane32_swap_b32 v60, v61
    v_max_f32 v60, v60, v61
    v_max_f32 v61, v60, v61
    s_nop 1
    v_permlane16_swap_b32 v60, v61
    v_max_f32 v60, v60, v61
    v_mul_f32 v60, s66, v60
    """)
    for i in range(12): g(f"v_fma_f32 v{48+i}, v{48+i}, s66, -v60")
    for i in range(12): g(f"v_exp_f32 v{48+i}, v{48+i}")
    for i in range(4): g(f"v_cvt_pk_bf16_f32 v{60+i}, v{48+2*i}, v{49+2*i}")
    for i in range(2): g(f"v_cvt_pk_bf16_f32 v{116+i}, v{56+2*i}, v{57+2*i}")
    RV, CV = g.lab("SRV"), g.lab("SCV")
    g("s_nop 0")
    g(f"{MF32} v[24:27], v[112:115], v[60:63], 0")
    g(f"{MF32} v[16:19], v[100:103], v[60:63], 0")
    g("s_waitcnt vmcnt(0)")
    for x in chk(g, 64)[:2]: g(x)
    g(f"{MF32} v[20:23], v[104:107], v[60:63], 0")
    g(chk(g, 64)[2])
    g(f"{MF16} v[24:27], v[112:113], v[116:117], v[24:27]")
    g(f"s_cbranch_vccnz {RV}")
    g(f"{CV}:")
    g(f"{MF16} v[16:19], v[64:65], v[116:117], v[16:19]")
    g(f"{MF16} v[20:23], v[66:67], v[116:117], v[20:23]")
    g("s_nop 5")
    g("v_rcp_f32 v24, v24")
    g("s_nop 0")
    for i in range(8): g(f"v_mul_f32 v{16+i}, v{16+i}, v24")
    for i in range(4): g(f"v_cvt_pk_bf16_f32 v{28+i}, v{16+2*i}, v{17+2*i}")
    for i in range(4): g(f"v_min_u32 v{28+i}, s67, v{28+i}")
    g("buffer_store_dwordx4 v[28:31], v9, s[4:7], s65 offen sc1")
    stamp(g, opt, 15, "s60")
    g("S_KM:")
    g("s_waitcnt lgkmcnt(0)")
    done = g.lab("KMD")
    for b in range(4):
        nx = g.lab("KM")
        if b < 3: g(f"s_cmp_lg_u32 s24, {b}\ns_cbranch_scc1 {nx}")
        for i in range(4): g(f"v_min_u32 v{120+i}, s67, v{32+4*b+i}")
        if b < 3: g(f"s_branch {done}\n{nx}:")
    g(f"{done}:")
    g("buffer_store_dwordx4 v[120:123], v10, s[4:7], s65 offen sc1")
    nopf = g.lab("NP"); nofl = g.lab("NF")
    g(f"""
    s_cmp_eq_u32 s60, 63
    s_cbranch_scc1 S_END
    s_add_u32 s60, s60, 1
    s_add_u32 s61, s61, 16384
    s_add_u32 s65, s65, 65536
    v_xor_b32 v7, 8192, v7
    s_cmp_ge_u32 s60, 63
    s_cbranch_scc1 S_LOOP
    """)
    dma_v()
    g(f"""
    s_cmp_ge_u32 s60, 62
    s_cbranch_scc1 S_LOOP
    s_add_u32 s45, s60, 1
    s_and_b32 s47, s45, 7
    s_cmp_lg_u32 s47, 0
    s_cbranch_scc1 {nofl}
    s_lshr_b32 s45, s45, 3
    """)
    kv_flags(g, "S_END")
    g(f"{nofl}:")
    dma_k()
    g("s_branch S_LOOP")
    for f in range(16):
        g(f"{R[f]}:")
        g(f"s_add_u32 s68, s68, 1\ns_add_u32 s44, s44, 1\ns_cmp_gt_u32 s44, {TMO}\ns_cbranch_scc1 S_END")
        for k in range(f, 16): g(ld(k))
        g("s_waitcnt vmcnt(0)")
        for x in chk(g, M0R+4*f): g(x)
        g(f"s_cbranch_vccz {C[f]}\ns_branch {R[f]}")
    g(f"{RV}:")
    g(f"s_add_u32 s68, s68, 0x10000\ns_add_u32 s44, s44, 1\ns_cmp_gt_u32 s44, {TMO}\ns_cbranch_scc1 S_END")
    for x in vm: g(x)
    g("s_waitcnt vmcnt(0)")
    for x in chk(g, 64): g(x)
    g(f"s_cbranch_vccz {CV}\ns_branch {RV}")
    g("S_END:")
    if opt.get("stamps"):
        g("v_mov_b32 v16, s68")
        stamp_dump(g, opt, [14, 15, 16], "s27")
    g("s_endpgm")

RVB, ROB = 0, 16384
def gen_vo(g, opt):
    g("R_VO:")
    g("s_setprio 3")
    srd(g, 8, A_WO, 8*MB); srd(g, 12, A_WV, 8*MB)
    g(f"""
    s_sub_u32 s26, s25, 1
    s_lshl_b32 s40, s24, 15
    s_lshl_b32 s42, s24, 21
    s_lshl_b32 s43, s27, 6
    s_add_u32 s42, s42, s43
    s_lshl_b32 s49, s27, 8
    s_lshl_b32 s43, s26, 7
    s_add_u32 s49, s49, s43
    s_lshl_b32 s43, s24, 21
    s_add_u32 s49, s49, s43
    """)
    wide_addrs(g, 2, 4, 8)
    g("""
    v_bfe_u32 v8, v1, 4, 1
    v_lshlrev_b32 v8, 3, v8
    v_xor_b32 v8, v8, v1
    v_lshrrev_b32 v9, 2, v8
    v_lshlrev_b32 v9, 11, v9
    v_and_b32 v8, 3, v8
    v_lshl_add_u32 v12, v8, 4, v9
    v_xor_b32 v8, 2, v8
    v_lshl_add_u32 v13, v8, 4, v9
    v_lshrrev_b32 v8, 4, v1
    v_lshlrev_b32 v8, 10, v8
    v_bfe_u32 v9, v1, 3, 1
    v_lshl_add_u32 v8, v9, 8, v8
    v_bfe_u32 v10, v1, 2, 1
    v_lshl_add_u32 v8, v10, 6, v8
    v_and_b32 v10, 3, v1
    v_lshl_add_u32 v8, v10, 3, v8
    v_add_u32 v8, s40, v8
    v_bfe_u32 v10, v1, 4, 1
    v_lshlrev_b32 v10, 5, v10
    v_lshl_add_u32 v9, v9, 7, v10
    """)
    for u in range(2):
        for t in range(2):
            g(f"v_xor_b32 v10, {128*u+32*t}, v9")
            g(f"v_add_u32 v{14+2*u+t}, v8, v10")
    g("s_waitcnt lgkmcnt(0)")
    units = []
    def o_issue(hh, buf):
        for i in range(8):
            if i % 4 == 0: g(f"s_add_u32 m0, s40, {buf*8192 + i*1024}")
            g(f"s_add_u32 s41, s42, {hh*262144 + i*32768 - (i&3)*1024}")
            g(f"buffer_load_dwordx4 v{12+(i&1)}, s[8:11], s41 offen offset:{(i&3)*1024} lds")
    def o_read(hh, buf):
        for odd in range(2):
            for t in range(2):
                b = ((hh*2+odd)*2+t)*8
                for hf in range(2):
                    for u in range(2):
                        g(f"ds_read_b64_tr_b16 {ar(b+4*hf+2*u,2)}, v{14+2*u+t} offset:{buf*8192+hf*4096+odd*512}")
    for ff in range(4):
        units.append((lambda buf, ff=ff: wide_issue(g, 12, "s49", ff, buf, 2),
                      lambda buf, ff=ff: wide_read(g, lambda c: ("v", 128+(ff*4+c)*8), buf, 4), None))
    for hh in range(8):
        units.append((lambda buf, hh=hh: o_issue(hh, buf), lambda buf, hh=hh: o_read(hh, buf), None))
    run_ring(g, units)
    g("s_barrier")
    idx_reg(g, 2, 11)
    g(f"""
    v_lshlrev_b32 v3, 4, v1
    s_lshl_b32 s43, s24, 12
    v_add_u32 v4, s43, v3
    v_add_u32 v4, {MEM}, v4
    s_lshl_b32 s43, s24, 13
    s_lshl_b32 s47, s26, 15
    s_add_u32 s43, s43, s47
    s_add_u32 s43, s43, {OM}
    v_add_u32 v5, s43, v3
    v_add_u32 v12, 4096, v5
    v_lshrrev_b32 v16, 5, v1
    v_lshlrev_b32 v6, 3, v1
    v_lshl_add_u32 v6, v16, 6, v6
    s_mul_i32 s43, s24, 2560
    v_add_u32 v6, s43, v6
    v_lshrrev_b32 v17, 2, v1
    v_and_b32 v18, 3, v1
    v_lshlrev_b32 v7, 3, v17
    v_lshl_add_u32 v7, v18, 7, v7
    v_lshrrev_b32 v19, 1, v18
    v_lshl_add_u32 v7, v19, 6, v7
    s_mul_i32 s43, s24, 640
    v_add_u32 v7, s43, v7
    s_lshl_b32 s43, s27, 11
    s_lshl_b32 s47, s26, 10
    s_add_u32 s43, s43, s47
    s_lshl_b32 s47, s24, 8
    s_add_u32 s43, s43, s47
    s_add_u32 s43, s43, {VM}
    v_lshlrev_b32 v8, 4, v17
    v_add_u32 v8, s43, v8
    v_and_b32 v19, 15, v1
    v_lshlrev_b32 v9, 2, v19
    v_bfe_u32 v20, v1, 4, 1
    v_lshl_add_u32 v9, v20, 8, v9
    v_lshl_add_u32 v9, v16, 9, v9
    s_lshl_b32 s43, s24, 10
    s_add_u32 s43, s43, {ROB}
    v_add_u32 v9, s43, v9
    v_lshlrev_b32 v10, 3, v1
    v_add_u32 v10, {ROB}, v10
    v_lshrrev_b32 v20, 4, v1
    v_lshlrev_b32 v13, 5, v20
    v_bfe_u32 v20, v1, 2, 1
    v_lshl_add_u32 v13, v20, 4, v13
    v_bfe_u32 v20, v1, 3, 1
    v_lshl_add_u32 v13, v20, 8, v13
    s_lshl_b32 s43, s27, 9
    s_lshl_b32 s47, s26, 7
    s_add_u32 s43, s43, s47
    s_add_u32 s43, s43, {MEM+16384}
    v_add_u32 v13, s43, v13
    v_mov_b32 v20, {OOB}
    v_cmp_eq_u32 vcc, 0, v18
    s_mov_b32 s60, 0
    s_mov_b32 s61, 0
    v_cndmask_b32 v8, v20, v8, vcc
    v_cndmask_b32 v13, v20, v13, vcc
    s_mov_b32 s65, 0
    s_mov_b32 s67, -2
    s_mov_b32 s68, 0
    """)
    def ldm(f): return f"buffer_load_dwordx4 {vr(16+4*f,4)}, v4, s[4:7], s61 offen offset:{f*1024} sc1"
    def ldo(f): return f"buffer_load_dwordx4 {vr(32+4*f,4)}, v{5 if f < 4 else 12}, s[4:7], s65 offen offset:{(f%4)*1024} sc1"
    def gather4(dst):
        g("s_nop 1")
        for q in range(1, 4):
            g(f"v_mov_b32_dpp v{dst+q}, v{dst} quad_perm:[{q},{q},{q},{q}] row_mask:0xf bank_mask:0xf")
    g("V_LOOP:")
    for i in range(32): g(f"v_mov_b32 v{64+i}, 0")
    delay(g, opt.get("dV", 0))
    stamp(g, opt, 14, "s60")
    for f in range(4): g(ldm(f))
    R = [g.lab("VR") for f in range(4)]; C = [g.lab("VC") for f in range(4)]
    g("s_mov_b32 s44, 0")
    g("s_waitcnt vmcnt(3)")
    for x in chk(g, 16): g(x)
    g(f"s_cbranch_vccnz {R[0]}\n{C[0]}:")
    for f in range(4):
        for c in range(4):
            g(f"{SMF} {vr(64+4*c,4)}, {vr(16+4*f,4)}, {vr(128+(f*4+c)*8,8)}, v2")
            if c == 2 and f < 3:
                g(f"s_waitcnt vmcnt({2-f})")
                for x in chk(g, 16+4*(f+1))[:2]: g(x)
            if c == 3 and f < 3:
                g(chk(g, 16+4*(f+1))[2])
                g(f"s_cbranch_vccnz {R[f+1]}\n{C[f+1]}:")
    g("s_nop 4")
    for c in range(4):
        a = 64 + 4*c
        g(f"v_add_f32 v{a}, v{a}, v{a+1}")
        g(f"v_add_f32 v{a+1}, v{a+2}, v{a+3}")
        g(f"ds_write_b64 v6, {vr(a,2)} offset:{RVB+640*c}")
    g("s_waitcnt lgkmcnt(0)\ns_barrier")
    for w in range(4): g(f"ds_read_b64 {vr(96+2*w,2)}, v7 offset:{RVB+2560*w}")
    g("""
    s_waitcnt lgkmcnt(2)
    v_pk_add_f32 v[96:97], v[96:97], v[98:99]
    s_waitcnt lgkmcnt(0)
    v_pk_add_f32 v[100:101], v[100:101], v[102:103]
    v_pk_add_f32 v[96:97], v[96:97], v[100:101]
    v_cvt_pk_bf16_f32 v104, v96, v97
    v_min_u32 v104, s67, v104
    """)
    gather4(104)
    g("buffer_store_dwordx4 v[104:107], v8, s[4:7], s65 offen sc1")
    g("s_cmp_eq_u32 s60, 63\ns_cbranch_scc1 V_END")
    delay(g, opt.get("dO", 0))
    stamp(g, opt, 15, "s60")
    for f in range(8): g(ldo(f))
    RO = [g.lab("OR") for f in range(8)]; CO = [g.lab("OC") for f in range(8)]
    g("s_mov_b32 s44, 0")
    g("s_waitcnt vmcnt(7)")
    for x in chk(g, 32): g(x)
    g(f"s_cbranch_vccnz {RO[0]}\n{CO[0]}:")
    for f in range(8):
        for c in range(4):
            g(f"{SMF} {vr(80+4*c,4)}, {vr(32+4*f,4)}, {ar((f*4+c)*8,8)}, v2")
            if c == 2 and f < 7:
                g(f"s_waitcnt vmcnt({6-f})")
                for x in chk(g, 32+4*(f+1))[:2]: g(x)
            if c == 3 and f < 7:
                g(chk(g, 32+4*(f+1))[2])
                g(f"s_cbranch_vccnz {RO[f+1]}\n{CO[f+1]}:")
    g("""
    s_mov_b32 exec_hi, 0
    s_nop 4
    v_add_f32 v96, v80, v81
    v_add_f32 v98, v82, v83
    v_add_f32 v97, v84, v85
    v_add_f32 v99, v86, v87
    s_not_b64 exec, exec
    v_add_f32 v96, v88, v89
    v_add_f32 v98, v90, v91
    v_add_f32 v97, v92, v93
    v_add_f32 v99, v94, v95
    s_mov_b64 exec, -1
    ds_write2_b32 v9, v96, v97 offset0:0 offset1:16
    ds_write2_b32 v9, v98, v99 offset0:32 offset1:48
    s_waitcnt lgkmcnt(0)
    s_barrier
    s_cmp_lg_u32 s24, 0
    s_cbranch_scc1 V_NEXT
    """)
    for k in range(8): g(f"ds_read_b64 {vr(96+2*k,2)}, v10 offset:{512*k}")
    g("""
    s_waitcnt lgkmcnt(6)
    v_pk_add_f32 v[96:97], v[96:97], v[98:99]
    s_waitcnt lgkmcnt(4)
    v_pk_add_f32 v[100:101], v[100:101], v[102:103]
    s_waitcnt lgkmcnt(2)
    v_pk_add_f32 v[104:105], v[104:105], v[106:107]
    v_pk_add_f32 v[96:97], v[96:97], v[100:101]
    s_waitcnt lgkmcnt(0)
    v_pk_add_f32 v[108:109], v[108:109], v[110:111]
    v_pk_add_f32 v[96:97], v[96:97], v[104:105]
    v_pk_add_f32 v[96:97], v[96:97], v[108:109]
    v_cvt_pk_bf16_f32 v112, v96, v97
    v_min_u32 v112, s67, v112
    """)
    gather4(112)
    g("buffer_store_dwordx4 v[112:115], v13, s[4:7], s61 offen sc1")
    g("V_NEXT:")
    stamp(g, opt, 116, "s60")
    g("""
    s_add_u32 s60, s60, 1
    s_add_u32 s61, s61, 16384
    s_add_u32 s65, s65, 65536
    s_branch V_LOOP
    """)
    for (RR, CC, n, ldf, base, inc) in ((R, C, 4, ldm, 16, 1), (RO, CO, 8, ldo, 32, 0x10000)):
        for f in range(n):
            g(f"{RR[f]}:")
            g(f"s_add_u32 s68, s68, {inc}\ns_add_u32 s44, s44, 1\ns_cmp_gt_u32 s44, {TMO}\ns_cbranch_scc1 V_END")
            for k in range(f, n): g(ldf(k))
            g("s_waitcnt vmcnt(0)")
            for x in chk(g, base+4*f): g(x)
            g(f"s_cbranch_vccz {CC[f]}\ns_branch {RR[f]}")
    g("V_END:")
    if opt.get("stamps"):
        g("v_mov_b32 v16, s68\ns_lshl_b32 s43, s25, 5\ns_add_u32 s43, s43, s27")
        stamp_dump(g, opt, [14, 15, 16, 116], "s43")
    g("s_endpgm")
```

```python
NAME = "recurrent_scan__memory_aug_recurrent_mem_tr__dense_activation_gelu__prompt"
MB = 1 << 20
XN   = 0
HB   = 4 * MB
GB   = 18 * MB
QX   = 24 * MB
KX   = 40 * MB
VX   = 56 * MB
OX   = 72 * MB
MEM  = 88 * MB
OM   = 89 * MB
VM   = 93 * MB
KM   = 97 * MB
FLG  = 101 * MB
WS_BYTES = 256 * MB
F_CLS  = 0
F_Q    = 2048
F_KVQ  = 4096
F_H    = 8192
F_G    = 12288
F_O    = 16384
F_END  = 49152
A_X, A_MEM0, A_WQ, A_WK, A_WV, A_WO, A_W1, A_B1, A_W2, A_B2, A_OUT, A_DBG, A_WS = 0, 8, 16, 24, 32, 40, 64, 72, 80, 88, 96, 104, 112
OOB = 0x80000000

class G:
    def __init__(s):
        s.l = []; s.n = 0
    def __call__(s, x):
        for line in x.strip("\n").split("\n"):
            line = line.strip()
            if line: s.l.append(line)
    def lab(s, p="L"):
        s.n += 1; return f"{p}_{s.n}"
    def text(s): return "\n".join(s.l) + "\n"

def vr(a, n=1, k="v"):
    return f"{k}{a}" if n == 1 else f"{k}[{a}:{a+n-1}]"
def ar(a, n=1): return vr(a, n, "a")
def sr(a, n=1): return vr(a, n, "s")

def srd(g, s, karg, nbytes):
    g(f"s_load_dwordx2 s[{s}:{s+1}], s[0:1], {karg}")
    g(f"s_mov_b32 s{s+2}, {nbytes}")
    g(f"s_mov_b32 s{s+3}, 0x20000")

def weave(g, main, fill):
    for x in fill.get(-1, []): g(x)
    for i, m in enumerate(main):
        g(m)
        for x in fill.get(i, []): g(x)

def kdesc(name, vgpr, accum, sgpr=102):
    return f""".amdhsa_kernel {name}
  .amdhsa_next_free_vgpr {vgpr}
  .amdhsa_next_free_sgpr {sgpr}
  .amdhsa_accum_offset {accum}
  .amdhsa_group_segment_fixed_size 0
  .amdhsa_kernarg_size 120
  .amdhsa_user_sgpr_count 2
  .amdhsa_user_sgpr_kernarg_segment_ptr 1
  .amdhsa_system_sgpr_workgroup_id_x 1
.end_amdhsa_kernel
"""
```

```python
from common import *
TIMEOUT = 40000
VWA, VXA, VWG, VXG = 2, 10, 11, 15
SETW = [64, 128]; SETX = [96, 160]

def acc(tn, tm): return (tn * 8 + tm) * 4

def dma_stage(slot):
    L = []
    L.append(f"s_add_u32 m0, s32, {slot*16384}")
    for i in range(4):
        L.append(f"buffer_load_dwordx4 v{VWG+i}, s[8:11], s30 offen offset:{1024*i} lds")
    L.append(f"s_add_u32 m0, s33, {slot*16384}")
    for i in range(4):
        L.append(f"buffer_load_dwordx4 v{VXG}, s[4:7], s31 offen offset:{1024*i} sc1 lds")
    return L

def reads_stage(slot, p):
    L = []
    for tm in range(8):
        L.append(f"ds_read_b128 {vr(SETX[p]+4*tm,4)}, v{VXA} offset:{slot*16384+tm*1024}")
    for tn in range(8):
        for j in range(2):
            L.append(f"ds_read_b64_tr_b16 {vr(SETW[p]+4*tn+2*j,2)}, v{VWA+tn} offset:{slot*16384+j*8192}")
    return L

def step(g, k4, swap, ldw, dma=True, reads=True, vm=8):
    p = k4 & 1
    M = []
    for tn in range(8):
        for tm in range(8):
            a, b = vr(SETW[p]+4*tn, 4), vr(SETX[p]+4*tm, 4)
            if swap: a, b = b, a
            M.append(f"v_mfma_f32_16x16x32_bf16 {ar(acc(tn,tm),4)}, {a}, {b}, {ar(acc(tn,tm),4)}")
    F = {-1: ["s_waitcnt lgkmcnt(0)"]}
    def add(i, x): F.setdefault(i, []).append(x)
    if reads:
        add(1, f"s_waitcnt vmcnt({vm})"); add(1, "s_barrier")
        for i, x in enumerate(reads_stage((k4+1) & 3, p ^ 1)): add(2 + i, x)
    if dma:
        D = dma_stage((k4+3) & 3)
        pos = [27, 28, 32, 36, 40, 43, 44, 48, 52, 56]
        for x, i in zip(D, pos): add(i, x)
        add(58, f"s_add_u32 s30, s30, {32*ldw}")
        add(59, "s_add_u32 s31, s31, 16384")
    weave(g, M, F)

def act_gelu(g, regs):
    n = len(regs)
    T = [224 + i for i in range(n)]
    for i, r in enumerate(regs): g(f"v_mul_f32 v{T[i]}, v{r}, v{r}")
    for i, r in enumerate(regs): g(f"v_fma_f32 v{T[i]}, v{T[i]}, s40, v60")
    for i, r in enumerate(regs): g(f"v_mul_f32 v{T[i]}, v{T[i]}, v{r}")
    for i, r in enumerate(regs): g(f"v_exp_f32 v{T[i]}, v{T[i]}")
    for i, r in enumerate(regs): g(f"v_add_f32 v{T[i]}, 1.0, v{T[i]}")
    for i, r in enumerate(regs): g(f"v_rcp_f32 v{T[i]}, v{T[i]}")
    for i, r in enumerate(regs): g(f"v_mul_f32 v{r}, v{r}, v{T[i]}")

def act_silu(g, regs):
    n = len(regs)
    T = [224 + i for i in range(n)]
    for i, r in enumerate(regs): g(f"v_mul_f32 v{T[i]}, s40, v{r}")
    for i, r in enumerate(regs): g(f"v_exp_f32 v{T[i]}, v{T[i]}")
    for i, r in enumerate(regs): g(f"v_add_f32 v{T[i]}, 1.0, v{T[i]}")
    for i, r in enumerate(regs): g(f"v_rcp_f32 v{T[i]}, v{T[i]}")
    for i, r in enumerate(regs): g(f"v_mul_f32 v{r}, v{r}, v{T[i]}")

import struct
def f2u(x): return struct.unpack("<I", struct.pack("<f", x))[0]

def piece(g, cnt, a0, a1, act, soff, imm):
    base = 64 + (cnt % 4) * 16
    regs = [base + i for i in range(8)]
    for i in range(4): g(f"v_accvgpr_read_b32 v{base+i}, a{a0+i}")
    for i in range(4): g(f"v_accvgpr_read_b32 v{base+4+i}, a{a1+i}")
    if act: act(g, regs)
    for i in range(4): g(f"v_cvt_pk_bf16_f32 v{base+8+i}, v{base+2*i}, v{base+2*i+1}")
    g(f"buffer_store_dwordx4 {vr(base+8,4)}, v61, s[4:7], {soff} offen offset:{imm} sc1")

def poll_flags(g, nflags, soff_sreg, fail):
    top = g.lab("PF"); ok = g.lab("PFOK")
    g(f"""
    v_lshlrev_b32 v62, 2, v1
    v_cmp_gt_u32 vcc, {nflags}, v1
    v_mov_b32 v63, {OOB}
    s_nop 0
    v_cndmask_b32 v62, v63, v62, vcc
    s_mov_b64 s[42:43], vcc
    s_mov_b32 s44, 0
    {top}:
    buffer_load_dword v63, v62, s[4:7], {soff_sreg} offen sc1
    s_waitcnt vmcnt(0)
    v_cmp_ne_u32 vcc, 0, v63
    s_cmp_eq_u64 vcc, s[42:43]
    s_cbranch_scc1 {ok}
    s_sleep 8
    s_add_u32 s44, s44, 1
    s_cmp_lt_u32 s44, {TIMEOUT}
    s_cbranch_scc1 {top}
    s_branch {fail}
    {ok}:
    """)

CFG = {
    "Q":  (A_WQ, 1024, 8192, XN, 32, None),
    "K":  (A_WK, 1024, 8192, XN, 32, None),
    "V":  (A_WV, 1024, 8192, XN, 32, None),
    "F1": (A_W1, 1024, 7168, XN, 32, (A_B1, 7168)),
    "F2": (A_W2, 3584, 2048, HB, 112, (A_B2, 2048)),
}

def gen_gemm(g, typ, ret, fail):
    karg, K, ldw, xbase, KB, bias = CFG[typ]
    swap = typ == "V"
    nst = K // 32
    g(f"T_{typ}:")
    srd(g, 8, karg, K * ldw)
    if bias: srd(g, 12, bias[0], bias[1])
    g(f"""
    s_lshl_b32 s30, s29, 9
    s_mul_i32 s31, s28, {KB*16384}
    s_add_u32 s31, s31, {xbase}
    s_lshl_b32 s32, s24, 12
    s_add_u32 s33, s32, 65536
    s_lshr_b32 s34, s24, 1
    s_and_b32 s35, s24, 1
    v_lshrrev_b32 v16, 5, v1
    v_and_b32 v17, 31, v1
    v_lshlrev_b32 v18, 1, v16
    v_xor_b32 v17, v17, v18
    s_lshl_b32 s36, s24, 3
    v_add_u32 v16, s36, v16
    s_mov_b32 s36, {ldw}
    v_mul_lo_u32 v16, v16, s36
    """)
    for i in range(4):
        g(f"v_xor_b32 v18, {4*i}, v17")
        g(f"v_lshl_add_u32 v18, v18, 4, v16")
        g(f"v_add_u32 v{VWG+i}, {2*i*ldw - 1024*i}, v18")
    g(f"""
    v_lshlrev_b32 v61, 4, v1
    v_add_u32 v{VXG}, s32, v61
    s_lshl_b32 s36, s34, 13
    s_add_u32 s36, s36, 65536
    v_add_u32 v{VXA}, s36, v61
    v_lshrrev_b32 v16, 2, v1
    v_and_b32 v17, 7, v16
    v_lshlrev_b32 v17, 1, v17
    v_lshlrev_b32 v16, 9, v16
    v_and_b32 v18, 3, v1
    v_lshl_add_u32 v16, v18, 3, v16
    s_lshl_b32 s36, s35, 8
    v_add_u32 v16, s36, v16
    """)
    for t in range(8):
        g(f"v_xor_b32 v18, {2*t}, v17")
        g(f"v_lshl_add_u32 v{VWA+t}, v18, 4, v16")
    if typ == "F2":
        g(f"s_lshl_b32 s36, s28, 7")
        g(f"s_add_u32 s36, s36, {FLG+F_H}")
        poll_flags(g, 14, "s36", fail)
    g("s_waitcnt lgkmcnt(0)")
    for i in range(16, 56): g(f"v_mov_b32 v{i}, 0")
    if bias:
        g(f"""
        v_and_b32 v56, 15, v1
        v_lshlrev_b32 v56, 1, v56
        s_lshl_b32 s36, s35, 8
        v_add_u32 v56, s36, v56
        v_mov_b32 v57, {OOB}
        v_cmp_gt_u32 vcc, 16, v1
        v_mov_b32 v48, 0x3f803f80
        s_nop 0
        v_cndmask_b32 v56, v57, v56, vcc
        """)
        for tn in range(8):
            g(f"buffer_load_ushort v{16+4*tn}, v56, s[12:15], s30 offen offset:{32*tn}")
    for s in range(3):
        D = dma_stage(s)
        for x in D:
            g(x)
            if x.startswith("s_add_u32 m0"): g("s_nop 0")
        g(f"s_add_u32 s30, s30, {32*ldw}")
        g("s_add_u32 s31, s31, 16384")
    if bias: g("s_waitcnt vmcnt(24)")
    for tn in range(8):
        for tm in range(8):
            g(f"v_mfma_f32_16x16x32_bf16 {ar(acc(tn,tm),4)}, {vr(16+4*tn,4)}, v[48:51], 0")
    g("s_waitcnt vmcnt(16)")
    g("s_barrier")
    for x in reads_stage(0, 0): g(x)
    loop = g.lab("GL")
    g(f"s_mov_b32 s37, {nst//4 - 1}")
    g(f"{loop}:")
    for k4 in range(4): step(g, k4, swap, ldw)
    g(f"""
    s_sub_u32 s37, s37, 1
    s_cmp_lg_u32 s37, 0
    s_cbranch_scc1 {loop}
    """)
    step(g, 0, swap, ldw)
    step(g, 1, swap, ldw, dma=False, vm=8)
    step(g, 2, swap, ldw, dma=False, vm=0)
    step(g, 3, swap, ldw, dma=False, reads=False)
    g("s_nop 7")
    cnt = 0
    if typ in ("Q", "K"):
        base = QX if typ == "Q" else KX
        g(f"""
        s_lshl_b32 s36, s28, 21
        s_lshl_b32 s37, s34, 20
        s_add_u32 s36, s36, s37
        s_lshl_b32 s37, s29, 14
        s_add_u32 s36, s36, s37
        s_lshl_b32 s37, s35, 13
        s_add_u32 s36, s36, s37
        s_add_u32 s36, s36, {base}
        """)
        for tm in range(8):
            g(f"s_add_u32 s38, s36, {(tm>>1)*262144 + (tm&1)*4096}")
            for nb in range(4):
                piece(g, cnt, acc(2*nb, tm), acc(2*nb+1, tm), None, "s38", nb*1024); cnt += 1
        foff = 0 if typ == "K" else 8
        g(f"s_lshl_b32 s36, s28, 8\ns_lshl_b32 s37, s29, 4\ns_add_u32 s36, s36, s37\ns_add_u32 s36, s36, {FLG+F_KVQ+foff}")
    elif typ == "V":
        g(f"""
        s_lshl_b32 s36, s28, 21
        s_lshl_b32 s37, s34, 20
        s_add_u32 s36, s36, s37
        s_lshl_b32 s37, s29, 14
        s_add_u32 s36, s36, s37
        s_lshl_b32 s37, s35, 13
        s_add_u32 s36, s36, s37
        s_add_u32 s36, s36, {VX}
        """)
        for j in range(4):
            for tn in range(8):
                if tn % 4 == 0: g(f"s_add_u32 s38, s36, {j*262144 + (tn>>2)*4096}")
                piece(g, cnt, acc(tn, 2*j), acc(tn, 2*j+1), None, "s38", (tn & 3)*1024); cnt += 1
        g(f"s_lshl_b32 s36, s28, 8\ns_lshl_b32 s37, s29, 4\ns_add_u32 s36, s36, s37\ns_add_u32 s36, s36, {FLG+F_KVQ+4}")
    elif typ == "F1":
        k1 = 2 * 0.7978845608028654 * 1.4426950408889634
        g(f"""
        s_mov_b32 s40, {hex(f2u(-k1*0.044715))}
        v_mov_b32 v60, {hex(f2u(-k1))}
        s_mul_i32 s36, s28, 112
        s_lshl_b32 s37, s29, 3
        s_add_u32 s36, s36, s37
        s_lshl_b32 s37, s35, 2
        s_add_u32 s36, s36, s37
        s_lshl_b32 s36, s36, 14
        s_lshl_b32 s37, s34, 13
        s_add_u32 s36, s36, s37
        s_add_u32 s36, s36, {HB}
        """)
        for nb in range(4):
            for tm in range(8):
                if tm % 4 == 0: g(f"s_add_u32 s38, s36, {nb*16384 + (tm>>2)*4096}")
                piece(g, cnt, acc(2*nb, tm), acc(2*nb+1, tm), act_gelu, "s38", (tm & 3)*1024); cnt += 1
        g(f"s_lshl_b32 s36, s28, 7\ns_lshl_b32 s37, s29, 2\ns_add_u32 s36, s36, s37\ns_add_u32 s36, s36, {FLG+F_H}")
    else:
        g(f"""
        s_mov_b32 s40, {hex(f2u(-1.4426950408889634))}
        s_lshl_b32 s36, s28, 19
        s_lshl_b32 s37, s34, 18
        s_add_u32 s36, s36, s37
        s_lshl_b32 s37, s29, 13
        s_add_u32 s36, s36, s37
        s_lshl_b32 s37, s35, 12
        s_add_u32 s36, s36, s37
        s_add_u32 s36, s36, {GB}
        """)
        for tm in range(8):
            g(f"s_add_u32 s38, s36, {tm*32768}")
            for nb in range(4):
                piece(g, cnt, acc(2*nb, tm), acc(2*nb+1, tm), act_silu, "s38", nb*1024); cnt += 1
        g(f"s_lshl_b32 s36, s28, 7\ns_lshl_b32 s37, s29, 2\ns_add_u32 s36, s36, s37\ns_add_u32 s36, s36, {FLG+F_G}")
    skip = g.lab("NF")
    g(f"""
    s_waitcnt vmcnt(0)
    s_barrier
    s_cmp_lg_u32 s24, 0
    s_cbranch_scc1 {ret}
    v_mov_b32 v16, 1
    v_mov_b32 v17, 0
    s_mov_b64 exec, 1
    buffer_store_dword v16, v17, s[4:7], s36 offen sc1
    s_mov_b64 exec, -1
    s_branch {ret}
    """)
```

```python
from common import *
K0_GRID = 384
def rne_bf16(g, d, s):
    g(f"v_cvt_pk_bf16_f32 v{d}, v{s}, v{s}")
    g(f"v_lshlrev_b32 v{d}, 16, v{d}")
def xreduce_add(g, v, t):
    for sw in ("v_permlane16_swap_b32", "v_permlane32_swap_b32"):
        g(f"v_mov_b32 v{t}, v{v}")
        g("s_nop 1")
        g(f"{sw} v{v}, v{t}")
        g("s_nop 1")
        g(f"v_add_f32 v{v}, v{v}, v{t}")
def gen_k0(g):
    g(f"""
    s_cmp_ge_u32 s2, {K0_GRID}
    s_cbranch_scc1 K0_END
    """)
    srd(g, 4, A_WS, WS_BYTES)
    g("""
    v_and_b32 v1, 63, v0
    v_lshrrev_b32 v2, 6, v0
    s_nop 0
    v_readfirstlane_b32 s24, v2
    s_cmp_ge_u32 s2, 128
    s_cbranch_scc1 K0_FILL
    """)
    srd(g, 8, A_X, 4 * MB)
    g("""
    v_and_b32 v2, 15, v1
    v_lshrrev_b32 v3, 4, v1
    v_lshlrev_b32 v4, 11, v2
    v_lshl_add_u32 v4, v3, 3, v4
    s_lshl_b32 s25, s2, 15
    s_lshl_b32 s26, s24, 9
    s_add_u32 s25, s25, s26
    s_waitcnt lgkmcnt(0)
    """)
    for kb in range(8):
        for j in range(2):
            r = 16 + kb * 4 + j * 2
            g(f"buffer_load_dwordx2 v[{r}:{r+1}], v4, s[8:11], s25 offen offset:{kb*64+j*32}")
    g("v_mov_b32 v8, 0")
    g("v_mov_b32 v9, 0")
    for i in range(32):
        if i % 2 == 0: g(f"s_waitcnt vmcnt({15 - i//2})")
        g(f"v_lshlrev_b32 v{64+2*i}, 16, v{16+i}")
        g(f"v_and_b32 v{65+2*i}, 0xffff0000, v{16+i}")
        g(f"v_add_f32 v8, v8, v{64+2*i}")
        g(f"v_add_f32 v9, v9, v{65+2*i}")
    g("v_add_f32 v8, v8, v9")
    xreduce_add(g, 8, 9)
    g("""
    s_lshl_b32 s26, s24, 6
    v_lshl_add_u32 v5, v2, 2, s26
    v_lshlrev_b32 v6, 2, v2
    ds_write_b32 v5, v8
    s_waitcnt lgkmcnt(0)
    s_barrier
    ds_read2_b32 v[10:11], v6 offset0:0 offset1:16
    ds_read2_b32 v[12:13], v6 offset0:32 offset1:48
    s_waitcnt lgkmcnt(0)
    v_add_f32 v10, v10, v11
    v_add_f32 v12, v12, v13
    v_add_f32 v8, v10, v12
    v_mul_f32 v8, 0x3a800000, v8
    v_mov_b32 v10, 0
    v_mov_b32 v11, 0
    """)
    for i in range(32):
        g(f"v_sub_f32 v12, v{64+2*i}, v8")
        g(f"v_sub_f32 v13, v{65+2*i}, v8")
        g("v_fmac_f32 v10, v12, v12")
        g("v_fmac_f32 v11, v13, v13")
    g("v_add_f32 v10, v10, v11")
    xreduce_add(g, 10, 11)
    g("""
    ds_write_b32 v5, v10 offset:256
    s_waitcnt lgkmcnt(0)
    s_barrier
    ds_read2_b32 v[10:11], v6 offset0:64 offset1:80
    ds_read2_b32 v[12:13], v6 offset0:96 offset1:112
    s_waitcnt lgkmcnt(0)
    v_add_f32 v10, v10, v11
    v_add_f32 v12, v12, v13
    v_add_f32 v10, v10, v12
    v_mul_f32 v10, 0x3a800000, v10
    """)
    rne_bf16(g, 8, 8)
    rne_bf16(g, 10, 10)
    g("v_add_f32 v10, 0x3727c5ac, v10")
    rne_bf16(g, 10, 10)
    g("v_sqrt_f32 v10, v10")
    g("s_nop 0")
    rne_bf16(g, 10, 10)
    g("v_rcp_f32 v10, v10")
    g(f"""
    s_lshr_b32 s25, s2, 4
    s_lshl_b32 s25, s25, 19
    s_and_b32 s26, s2, 15
    s_lshl_b32 s26, s26, 10
    s_add_u32 s25, s25, s26
    s_lshl_b32 s26, s24, 17
    s_add_u32 s25, s25, s26
    s_add_u32 s25, s25, {XN}
    v_lshlrev_b32 v4, 4, v1
    """)
    for kb in range(8):
        o = 16 + kb * 4
        for q in range(4):
            a = 64 + kb * 8 + 2 * q
            g(f"v_sub_f32 v12, v{a}, v8")
            g(f"v_sub_f32 v13, v{a+1}, v8")
            g("v_cvt_pk_bf16_f32 v12, v12, v13")
            g("v_and_b32 v13, 0xffff0000, v12")
            g("v_lshlrev_b32 v12, 16, v12")
            g("v_mul_f32 v13, v13, v10")
            g("v_mul_f32 v12, v12, v10")
            g(f"v_cvt_pk_bf16_f32 v{o+q}, v12, v13")
        g(f"buffer_store_dwordx4 v[{o}:{o+3}], v4, s[4:7], s25 offen")
        g("s_add_u32 s25, s25, 16384")
    g("s_branch K0_END")
    g(f"""
    K0_FILL:
    s_sub_u32 s25, s2, 128
    s_mul_i32 s26, s25, {14*4096}
    s_add_u32 s26, s26, {MEM}
    v_lshlrev_b32 v4, 4, v0
    v_mov_b32 v8, -1
    v_mov_b32 v9, -1
    v_mov_b32 v10, -1
    v_mov_b32 v11, -1
    s_waitcnt lgkmcnt(0)
    s_cmp_eq_u32 s25, 0
    s_cbranch_scc1 K0_MEM0
    """)
    for i in range(4):
        g("buffer_store_dwordx4 v[8:11], v4, s[4:7], s26 offen")
        g("s_add_u32 s26, s26, 4096")
    g("K0_FILL2:")
    for i in range(10):
        g("buffer_store_dwordx4 v[8:11], v4, s[4:7], s26 offen")
        g("s_add_u32 s26, s26, 4096")
    g(f"""
    s_sub_u32 s25, s25, 1
    s_cmp_ge_u32 s25, {F_END//4096}
    s_cbranch_scc1 K0_END
    s_lshl_b32 s25, s25, 12
    s_add_u32 s25, s25, {FLG}
    v_mov_b32 v12, 0
    v_mov_b32 v13, 0
    v_mov_b32 v14, 0
    v_mov_b32 v15, 0
    buffer_store_dwordx4 v[12:15], v4, s[4:7], s25 offen
    s_branch K0_END
    K0_MEM0:
    """)
    srd(g, 8, A_MEM0, 16384)
    g("""
    v_bfe_u32 v2, v1, 1, 3
    v_lshlrev_b32 v5, 11, v2
    v_lshrrev_b32 v2, 4, v1
    v_lshl_add_u32 v5, v2, 5, v5
    v_and_b32 v2, 1, v1
    v_lshl_add_u32 v5, v2, 4, v5
    s_lshl_b32 s27, s24, 9
    s_waitcnt lgkmcnt(0)
    """)
    for i in range(4):
        g(f"buffer_load_dwordx4 v[{16+4*i}:{19+4*i}], v5, s[8:11], s27 offen offset:{128*i}")
    g(f"""
    v_lshlrev_b32 v6, 4, v1
    s_lshl_b32 s27, s24, 12
    s_add_u32 s27, s27, {MEM}
    s_mov_b32 s28, -2
    s_waitcnt vmcnt(0)
    """)
    for i in range(16): g(f"v_min_u32 v{16+i}, s28, v{16+i}")
    for i in range(4):
        g(f"buffer_store_dwordx4 v[{16+4*i}:{19+4*i}], v6, s[4:7], s27 offen offset:{1024*i}")
    g("s_add_u32 s26, s26, 16384")
    g("s_branch K0_FILL2")
    g("K0_END:")
    g("s_endpgm")
```

```python
import sys, os
sys.path.insert(0, os.path.dirname(os.path.abspath(__file__)))
from common import *
from k0 import gen_k0, K0_GRID
from gemm import gen_gemm
LDS_BYTES = 163840
BC = LDS_BYTES - 16

def task_groups():
    G_ = []
    def kv(b): G_.extend([("K", b, 16), ("V", b, 16)])
    kv(0)
    for b in range(4): G_.append(("F1", b, 14))
    kv(1)
    for b in range(4, 8): G_.append(("F1", b, 14))
    kv(2)
    for b in range(8): G_.append(("F2", b, 4))
    kv(3)
    for b in range(2): G_.append(("Q", b, 16))
    kv(4)
    for b in range(2, 4): G_.append(("Q", b, 16))
    kv(5); kv(6); kv(7)
    for b in range(4, 8): G_.append(("Q", b, 16))
    return G_

def bcast_atomic(g, soff, dst):
    sk = g.lab("BA")
    g(f"""
    s_cmp_lg_u32 s24, 0
    s_cbranch_scc1 {sk}
    v_mov_b32 v2, 1
    v_mov_b32 v3, 0
    v_mov_b32 v4, {BC}
    s_mov_b64 exec, 1
    buffer_atomic_add v2, v3, s[4:7], {soff} offen sc0 sc1
    s_waitcnt vmcnt(0)
    ds_write_b32 v4, v2
    s_mov_b64 exec, -1
    s_waitcnt lgkmcnt(0)
    {sk}:
    s_barrier
    v_mov_b32 v4, {BC}
    ds_read_b32 v2, v4
    s_waitcnt lgkmcnt(0)
    v_readfirstlane_b32 {dst}, v2
    s_barrier
    """)

def gen_main(g, opt):
    g("""
    s_cmp_ge_u32 s2, 256
    s_cbranch_scc1 M_END
    """)
    srd(g, 4, A_WS, WS_BYTES)
    g("""
    v_and_b32 v1, 63, v0
    v_lshrrev_b32 v2, 6, v0
    s_getreg_b32 s22, hwreg(HW_REG_XCC_ID, 0, 4)
    v_readfirstlane_b32 s24, v2
    s_mov_b32 s23, 0
    s_waitcnt lgkmcnt(0)
    M_TRY:
    s_add_u32 s25, s22, s23
    s_and_b32 s25, s25, 7
    s_lshl_b32 s26, s25, 8
    """)
    g(f"s_add_u32 s26, s26, {FLG+F_CLS}")
    bcast_atomic(g, "s26", "s27")
    g("""
    s_cmp_lt_u32 s27, 32
    s_cbranch_scc1 M_GOT
    s_add_u32 s23, s23, 1
    s_cmp_lt_u32 s23, 8
    s_cbranch_scc1 M_TRY
    s_branch M_END
    M_GOT:
    s_mov_b32 s20, s25
    s_mov_b32 s21, s27
    """)
    if opt.get("chain", True):
        g("""
        s_cmp_eq_u32 s25, 0
        s_cbranch_scc1 R_S
        s_cmp_lt_u32 s25, 3
        s_cbranch_scc1 R_VO
        """)
    elif not opt.get("allwork"):
        g("s_cmp_lt_u32 s25, 3\ns_cbranch_scc1 M_END")
    g("W_LOOP:")
    g(f"s_mov_b32 s26, {FLG+F_Q}")
    bcast_atomic(g, "s26", "s27")
    start = 0
    for typ, b, n in task_groups():
        nx = g.lab("TK")
        g(f"""
        s_cmp_lt_u32 s27, {start+n}
        s_cbranch_scc0 {nx}
        s_sub_u32 s29, s27, {start}
        s_mov_b32 s28, {b}
        s_branch T_{typ}
        {nx}:
        """)
        start += n
    if opt.get("ap", True):
        g(f"""
        s_mov_b32 s27, s21
        s_cmp_eq_u32 s20, 3
        s_cbranch_scc1 R_A
        s_sub_u32 s26, s20, 4
        s_branch R_P
        """)
    g("s_branch M_END")
    for typ in ("K", "V", "Q", "F1", "F2"):
        gen_gemm(g, typ, "W_LOOP", "M_END")
    if opt.get("chain", True):
        from chain import gen_s, gen_vo
        gen_s(g, opt); gen_vo(g, opt)
    if opt.get("ap", True):
        from ap import gen_a, gen_p
        gen_a(g, opt); gen_p(g, opt)
    g("M_END:")
    g("s_endpgm")

def build(opt=None):
    opt = opt or {}
    ref = open("cdna_kernels/" + NAME + ".s.ref").read().split("\n")
    hdr = [l for l in ref if l.startswith(";") and "@launch" not in l and "Override" not in l and "grid=ceil" not in l]
    out = "\n".join(hdr) + "\n"
    out += f"; @launch kernel=prep_kernel grid=({K0_GRID},1,1) block=(256,1,1) lds=1024\n"
    out += f"; @launch kernel={NAME}_kernel grid=(256,1,1) block=(256,1,1) lds={LDS_BYTES}\n"
    out += '.amdgcn_target "amdgcn-amd-amdhsa--gfx950"\n.text\n'
    g = G(); gen_k0(g)
    out += ".globl prep_kernel\n.p2align 8\n.type prep_kernel,@function\nprep_kernel:\n" + g.text()
    g = G(); gen_main(g, opt)
    out += f".globl {NAME}_kernel\n.p2align 8\n.type {NAME}_kernel,@function\n{NAME}_kernel:\n" + g.text()
    out += '.section .rodata,"a"\n.p2align 6\n' + kdesc("prep_kernel", 128, 128) + ".p2align 6\n" + kdesc(NAME + "_kernel", 512, 256)
    return out

if __name__ == "__main__":
    import json
    opt = json.loads(sys.argv[2]) if len(sys.argv) > 2 else {}
    open(sys.argv[1], "w").write(build(opt))
```

```python
from common import *
from gemm import f2u
import math
TMO = 30000
SMF = "v_smfmac_f32_16x16x64_bf16"
MF32 = "v_mfma_f32_16x16x32_bf16"
MF16 = "v_mfma_f32_16x16x16_bf16"
CEXP = 128 ** -0.5 * math.log2(math.e)

def delay(g, clks):
    clks = int(clks)
    if clks >= 128:
        g(f"s_sleep {min(127, clks//64)}"); clks %= 64
    while clks >= 64:
        g("s_nop 15"); clks -= 64
    if clks >= 4: g(f"s_nop {clks//4-1}")

def stamp(g, opt, k):
    if not opt.get("stamps"): return
    if opt.get("only") is not None and k not in opt["only"]: return
    g(f"{'s_memtime' if opt.get('clk') else 's_memrealtime'} s[{72+2*k}:{73+2*k}]")

def stamp_init(g, opt, idreg):
    if not opt.get("stamps"): return
    g(f"""
    s_lshl_b32 s70, {idreg}, 2
    s_add_u32 s70, s70, s24
    s_lshl_b32 s70, s70, 11
    s_add_u32 s70, s70, {FLG+MB}
    v_lshlrev_b32 v14, 2, v1
    s_mov_b32 s58, 0
    """)

def stamp_dump(g, opt, n=7):
    if not opt.get("stamps"): return
    g("s_waitcnt lgkmcnt(0)")
    for k in range(n): g(f"v_writelane_b32 v15, s{72+2*k}, {k}")
    g("""
    s_lshl_b32 s58, s58, 8
    s_or_b32 s68, s68, s58
    v_writelane_b32 v15, s68, 7
    s_mov_b64 exec, 0xff
    buffer_store_dword v15, v14, s[4:7], s70 offen
    s_mov_b64 exec, -1
    s_add_u32 s70, s70, 32
    s_mov_b32 s68, 0
    s_mov_b32 s58, 0
    """)

def wide_addrs(g, vpar, vtr, t0):
    g(f"""
    v_lshrrev_b32 v{t0}, 3, v1
    v_lshlrev_b32 v{t0}, 13, v{t0}
    v_lshrrev_b32 v{t0+1}, 5, v1
    v_lshlrev_b32 v{t0+1}, 1, v{t0+1}
    v_and_b32 v{t0+2}, 7, v1
    v_xor_b32 v{t0+1}, v{t0+1}, v{t0+2}
    v_lshl_add_u32 v{vpar}, v{t0+1}, 4, v{t0}
    v_xor_b32 v{t0+1}, 4, v{t0+1}
    v_lshl_add_u32 v{vpar+1}, v{t0+1}, 4, v{t0}
    """)
    g(f"""
    v_bfe_u32 v{t0}, v1, 2, 1
    v_bfe_u32 v{t0+1}, v1, 4, 1
    v_bfe_u32 v{t0+2}, v1, 3, 1
    v_lshl_add_u32 v{t0+1}, v{t0+2}, 1, v{t0+1}
    v_lshl_add_u32 v{t0}, v{t0+1}, 2, v{t0}
    v_bfe_u32 v{t0+2}, v1, 5, 1
    v_lshl_add_u32 v{t0}, v{t0+2}, 4, v{t0}
    v_lshlrev_b32 v{t0}, 7, v{t0}
    v_and_b32 v{t0+2}, 3, v1
    v_lshl_add_u32 v{t0}, v{t0+2}, 3, v{t0}
    v_add_u32 v{t0}, s40, v{t0}
    """)
    for c in range(4):
        g(f"v_xor_b32 v{t0+2}, {c}, v{t0+1}")
        g(f"v_lshl_add_u32 v{vtr+c}, v{t0+2}, 5, v{t0}")

def wide_issue(g, srdreg, sbase, f, buf, vpar):
    for i in range(8):
        if i % 4 == 0: g(f"s_add_u32 m0, s40, {buf*8192 + i*1024}")
        g(f"s_add_u32 s41, {sbase}, {(64*f+8*i)*8192 - (i&3)*1024}")
        g(f"buffer_load_dwordx4 v{vpar+(i&1)}, s[{srdreg}:{srdreg+3}], s41 offen offset:{(i&3)*1024} lds")

def wide_read(g, dst, buf, vtr):
    for c in range(4):
        k, b = dst(c)
        for hf in range(2):
            for u in range(2):
                g(f"ds_read_b64_tr_b16 {vr(b+4*hf+2*u,2,k)}, v{vtr+c} offset:{buf*8192+hf*4096+u*256}")

def run_ring(g, units):
    n = len(units)
    for u in range(min(4, n)): units[u][0](u % 4)
    for u in range(n):
        g(f"s_waitcnt vmcnt({8*min(3, n-1-u)})")
        units[u][1](u % 4)
        g("s_waitcnt lgkmcnt(0)")
        if units[u][2]: units[u][2](u % 4)
        if u + 4 < n: units[u+4][0](u % 4)

def chk(g, r, n=4, t=11):
    L = []
    if n == 4:
        L.append(f"v_max3_u32 v{t}, v{r}, v{r+1}, v{r+2}")
        L.append(f"v_max_u32 v{t}, v{t}, v{r+3}")
    L.append(f"v_cmp_eq_u32 vcc, -1, v{t}")
    return L

def idx_reg(g, v, t):
    g(f"""
    v_and_b32 v{t}, 1, v1
    v_mov_b32 v{v}, 0x4444
    v_cmp_eq_u32 vcc, 1, v{t}
    v_mov_b32 v{t}, 0xeeee
    s_nop 0
    v_cndmask_b32 v{v}, v{v}, v{t}, vcc
    """)

def kv_flags(g, fail):
    top = g.lab("KF"); ok = g.lab("KFOK")
    g(f"""
    s_lshl_b32 s47, s45, 8
    s_add_u32 s47, s47, s46
    s_mov_b32 s44, 0
    v_mov_b32 v11, 0
    {top}:
    buffer_load_dwordx2 v[16:17], v11, s[4:7], s47 offen sc1
    s_waitcnt vmcnt(0)
    v_and_b32 v16, v16, v17
    s_nop 0
    v_readfirstlane_b32 s48, v16
    s_cmp_lg_u32 s48, 0
    s_cbranch_scc1 {ok}
    s_sleep 8
    s_add_u32 s44, s44, 1
    s_cmp_lt_u32 s44, {TMO}
    s_cbranch_scc1 {top}
    s_branch {fail}
    {ok}:
    """)

LKX, LVX, LIMG, LW = 0, 16384, 24576, 32768
AF = [0, 1, 2, 4, 5, 6, 8, 9]; VF = [10, 12, 13, 14]; LF = [3, 7, 11, 15]
def s_op(f, c):
    if f in AF: return ("a", AF.index(f)*32 + 8*c)
    if f in VF: return ("v", 128 + VF.index(f)*32 + 8*c)
    return ("v", 32 + 8*c)
M0R = 64
def gen_s(g, opt):
    F0 = opt.get("F0", 11)
    g("R_S:")
    g("s_setprio 3")
    srd(g, 8, A_WQ, 8*MB); srd(g, 12, A_WK, 8*MB)
    g(f"""
    s_lshl_b32 s40, s24, 15
    s_add_u32 s40, s40, {LW}
    s_lshl_b32 s42, s27, 8
    s_and_b32 s43, s24, 1
    s_lshl_b32 s43, s43, 7
    s_add_u32 s42, s42, s43
    s_waitcnt lgkmcnt(0)
    s_cmp_ge_u32 s24, 2
    s_cselect_b32 s8, s12, s8
    s_cselect_b32 s9, s13, s9
    """)
    wide_addrs(g, 2, 4, 8)
    g("v_lshlrev_b32 v12, 4, v1\nv_add_u32 v12, s40, v12")
    units = []
    for f in AF + VF + LF:
        def post(buf):
            for c in range(4):
                for q in range(2):
                    g(f"ds_write_b128 v12, {vr(32+8*c+4*q,4)} offset:{buf*8192+(2*c+q)*1024}")
            g("s_waitcnt lgkmcnt(0)")
        units.append((lambda buf, f=f: wide_issue(g, 8, "s42", f, buf, 2),
                      lambda buf, f=f: wide_read(g, lambda c: s_op(f, c), buf, 4),
                      post if f in LF else None))
    run_ring(g, units)
    idx_reg(g, 2, 11)
    g(f"""
    v_lshlrev_b32 v3, 4, v1
    v_mov_b32 v4, v12
    v_and_b32 v11, 15, v1
    v_lshrrev_b32 v16, 4, v1
    s_and_b32 s43, s24, 1
    s_lshl_b32 s43, s43, 11
    s_lshr_b32 s47, s24, 1
    s_lshl_b32 s47, s47, 4
    s_add_u32 s43, s43, s47
    s_add_u32 s43, s43, {LIMG}
    v_lshlrev_b32 v5, 5, v11
    v_lshl_add_u32 v5, v16, 2, v5
    v_add_u32 v5, s43, v5
    v_lshlrev_b32 v6, 3, v1
    v_add_u32 v6, {LIMG}, v6
    v_mov_b32 v7, v3
    s_lshl_b32 s43, s24, 11
    v_add_u32 v12, s43, v3
    s_lshl_b32 s43, s27, 11
    s_lshl_b32 s47, s24, 9
    s_add_u32 s43, s43, s47
    v_lshlrev_b32 v8, 4, v11
    v_and_b32 v17, 1, v16
    v_lshl_add_u32 v8, v17, 3, v8
    v_add_u32 v8, s43, v8
    v_add_u32 v8, {VM}, v8
    v_and_b32 v18, 7, v1
    v_lshlrev_b32 v10, 4, v18
    v_lshl_add_u32 v10, v16, 7, v10
    v_add_u32 v10, s43, v10
    v_add_u32 v10, {KM}, v10
    v_bfe_u32 v18, v1, 2, 1
    v_lshlrev_b32 v9, 15, v18
    v_and_b32 v18, 3, v1
    v_lshl_add_u32 v9, v18, 5, v9
    v_lshl_add_u32 v9, v17, 4, v9
    v_lshrrev_b32 v18, 5, v1
    v_lshl_add_u32 v9, v18, 7, v9
    s_lshl_b32 s43, s27, 10
    s_lshl_b32 s47, s24, 8
    s_add_u32 s43, s43, s47
    s_add_u32 s43, s43, {OM}
    v_add_u32 v9, s43, v9
    v_mov_b32 v18, {OOB}
    v_cmp_gt_u32 vcc, 8, v11
    v_mov_b32 v13, 0
    s_nop 0
    v_cndmask_b32 v9, v18, v9, vcc
    v_cndmask_b32 v10, v10, v18, vcc
    v_mov_b32 v18, {hex(f2u(-1e30))}
    v_cmp_gt_u32 vcc, 32, v1
    s_lshr_b32 s46, s27, 1
    s_lshl_b32 s46, s46, 4
    v_cndmask_b32 v13, v13, v18, vcc
    s_add_u32 s46, s46, {FLG+F_KVQ}
    s_lshl_b32 s49, s27, 13
    s_add_u32 s50, s49, {KX}
    s_add_u32 s51, s49, {VX}
    s_lshl_b32 s52, s24, 11
    s_add_u32 s53, s52, {LVX}
    s_mov_b32 s60, 0
    s_mov_b32 s61, {MEM}
    s_mov_b32 s65, 0
    s_mov_b32 s66, {hex(f2u(CEXP))}
    s_mov_b32 s67, -2
    s_mov_b32 s68, 0
    s_mov_b32 s45, 0
    """)
    stamp_init(g, opt, "s27")
    kv_flags(g, "S_END")
    def dma_k():
        g(f"""
        s_mov_b32 m0, s52
        s_xor_b32 s52, s52, 8192
        buffer_load_dwordx4 v12, s[4:7], s50 offen sc1 lds
        buffer_load_dwordx4 v12, s[4:7], s50 offen offset:1024 sc1 lds
        s_add_u32 s50, s50, 262144
        """)
    def dma_v():
        g(f"""
        s_mov_b32 m0, s53
        s_nop 0
        buffer_load_dwordx4 v12, s[4:7], s51 offen sc1 lds
        buffer_load_dwordx4 v12, s[4:7], s51 offen offset:1024 sc1 lds
        s_add_u32 s51, s51, 262144
        """)
    dma_k(); dma_k(); dma_v()
    g("s_waitcnt vmcnt(0)\ns_barrier")
    def tread(j):
        return [f"ds_read_b128 {vr(32+4*q,4)}, v4 offset:{j*8192+q*1024}" for q in range(8)]
    def ld(f): return f"buffer_load_dwordx4 {vr(M0R+4*f,4)}, v3, s[4:7], s{61+f//4} offen offset:{(f%4)*1024} sc1"
    g("S_LOOP:")
    g("""
    s_add_u32 s62, s61, 4096
    s_add_u32 s63, s61, 8192
    s_add_u32 s64, s61, 12288
    """)
    for x in tread(0): g(x)
    for i in range(16): g(f"v_mov_b32 v{16+i}, 0")
    delay(g, opt.get("dS", 0))
    stamp(g, opt, 0)
    for f in range(16): g(ld(f))
    R = [g.lab("SR") for f in range(16)]; C = [g.lab("SC") for f in range(16)]
    g("s_mov_b32 s44, 0")
    g("s_waitcnt vmcnt(15)")
    for x in chk(g, M0R): g(x)
    g(f"s_cbranch_vccnz {R[0]}")
    g(f"{C[0]}:")
    stamp(g, opt, 1)
    extra = {f: [] for f in range(16)}
    t1, t2, t3 = tread(1), tread(2), tread(3)
    extra[4] += t1[:4]; extra[5] += t1[4:]
    kx = [f"ds_read_b128 {vr(68+4*q,4)}, v7 offset:{LKX+q*1024}" for q in range(8)]
    extra[6] += kx[:4]; extra[7] += kx[4:6]
    extra[8] += t2[:4]; extra[9] += t2[4:]; extra[10] += kx[6:]
    extra[12] += t3[:4]; extra[13] += t3[4:]
    extra[11] += [f"ds_read_b128 {vr(100+4*t,4)}, v12 offset:{LVX+t*1024}" for t in range(2)]
    extra[14] += [f"v_mov_b32 v{108+i}, v13" for i in range(4)]
    vm = [f"buffer_load_dwordx2 {vr(64+2*t,2)}, v8, s[4:7], s65 offen offset:{256*t} sc1" for t in range(2)]
    extra[F0] = vm + extra[F0]
    for f in range(16):
        if f in LF: g("s_waitcnt lgkmcnt(0)")
        ex = list(extra[f])
        for c in range(4):
            k, b = s_op(f, c)
            g(f"{SMF} {vr(16+4*c,4)}, {vr(M0R+4*f,4)}, {vr(b,8,k)}, v2")
            if c < 2:
                for x in ex[2*c:2*c+2]: g(x)
            if c == 2 and f < 15:
                for x in ex[4:]: g(x)
                g(f"s_waitcnt vmcnt({14-f + (2 if f >= F0 else 0)})")
                for x in chk(g, M0R+4*(f+1))[:2]: g(x)
            if c == 3 and f < 15:
                g(chk(g, M0R+4*(f+1))[2])
                g(f"s_cbranch_vccnz {R[f+1]}")
                g(f"{C[f+1]}:")
    stamp(g, opt, 2)
    g("s_nop 4")
    for c in range(4):
        a = 16 + 4*c
        g(f"v_add_f32 v{a}, v{a}, v{a+1}")
        g(f"v_add_f32 v{a+2}, v{a+2}, v{a+3}")
        g(f"v_cvt_pk_bf16_f32 v{a}, v{a}, v{a+2}")
        if c % 2 == 1: g(f"ds_write2_b32 v5, v{a-4}, v{a} offset0:{(c-1)*128 % 256} offset1:{(c*128) % 256}" if c == 1 else
                         f"ds_write2st64_b32 v5, v{a-4}, v{a} offset0:4 offset1:6")
    g("s_waitcnt lgkmcnt(0)")
    g("s_barrier")
    for b in range(4):
        for j in range(2):
            g(f"ds_read_b64_tr_b16 {vr(32+4*b+2*j,2)}, v6 offset:{b*1024+j*512}")
    for i in range(4): g(f"v_mov_b32 v{112+i}, 0x3f803f80")
    stamp(g, opt, 3)
    g("s_cmp_eq_u32 s60, 63")
    g("s_cbranch_scc1 S_KM")
    for b in range(4):
        g(f"s_waitcnt lgkmcnt({6-2*b})")
        X = vr(32+4*b, 4)
        g(f"{MF32} v[48:51], {vr(68+4*b,4)}, {X}, {'0' if b == 0 else 'v[48:51]'}")
        g(f"{MF32} v[52:55], {vr(68+16+4*b,4)}, {X}, {'0' if b == 0 else 'v[52:55]'}")
        g(f"{MF32} v[56:59], {X}, {X}, {'v[108:111]' if b == 0 else 'v[56:59]'}")
    g(f"""
    s_nop 5
    v_max3_f32 v60, v48, v49, v50
    v_max3_f32 v60, v60, v51, v52
    v_max3_f32 v60, v60, v53, v54
    v_max3_f32 v61, v55, v56, v57
    v_max3_f32 v61, v61, v58, v59
    v_max_f32 v60, v60, v61
    v_max_f32 v61, v60, v61
    s_nop 1
    v_permlane32_swap_b32 v60, v61
    v_max_f32 v60, v60, v61
    v_max_f32 v61, v60, v61
    s_nop 1
    v_permlane16_swap_b32 v60, v61
    v_max_f32 v60, v60, v61
    v_mul_f32 v60, s66, v60
    """)
    for i in range(12): g(f"v_fma_f32 v{48+i}, v{48+i}, s66, -v60")
    for i in range(12): g(f"v_exp_f32 v{48+i}, v{48+i}")
    for i in range(4): g(f"v_cvt_pk_bf16_f32 v{60+i}, v{48+2*i}, v{49+2*i}")
    for i in range(2): g(f"v_cvt_pk_bf16_f32 v{116+i}, v{56+2*i}, v{57+2*i}")
    stamp(g, opt, 4)
    RV, CV = g.lab("SRV"), g.lab("SCV")
    g("s_nop 0")
    g(f"{MF32} v[24:27], v[112:115], v[60:63], 0")
    g(f"{MF32} v[16:19], v[100:103], v[60:63], 0")
    g("s_waitcnt vmcnt(0)")
    for x in chk(g, 64)[:2]: g(x)
    g(f"{MF32} v[20:23], v[104:107], v[60:63], 0")
    g(chk(g, 64)[2])
    g(f"{MF16} v[24:27], v[112:113], v[116:117], v[24:27]")
    g(f"s_cbranch_vccnz {RV}")
    g(f"{CV}:")
    stamp(g, opt, 5)
    g(f"{MF16} v[16:19], v[64:65], v[116:117], v[16:19]")
    g(f"{MF16} v[20:23], v[66:67], v[116:117], v[20:23]")
    g("s_nop 5")
    g("v_rcp_f32 v24, v24")
    g("s_nop 0")
    for i in range(8): g(f"v_mul_f32 v{16+i}, v{16+i}, v24")
    for i in range(4): g(f"v_cvt_pk_bf16_f32 v{28+i}, v{16+2*i}, v{17+2*i}")
    for i in range(4): g(f"v_min_u32 v{28+i}, s67, v{28+i}")
    g("buffer_store_dwordx4 v[28:31], v9, s[4:7], s65 offen sc1")
    stamp(g, opt, 6)
    g("S_KM:")
    g("s_waitcnt lgkmcnt(0)")
    done = g.lab("KMD")
    for b in range(4):
        nx = g.lab("KM")
        if b < 3: g(f"s_cmp_lg_u32 s24, {b}\ns_cbranch_scc1 {nx}")
        for i in range(4): g(f"v_min_u32 v{120+i}, s67, v{32+4*b+i}")
        if b < 3: g(f"s_branch {done}\n{nx}:")
    g(f"{done}:")
    g("buffer_store_dwordx4 v[120:123], v10, s[4:7], s65 offen sc1")
    stamp_dump(g, opt)
    nopf = g.lab("NP"); nofl = g.lab("NF")
    g(f"""
    s_cmp_eq_u32 s60, 63
    s_cbranch_scc1 S_END
    s_add_u32 s60, s60, 1
    s_add_u32 s61, s61, 16384
    s_add_u32 s65, s65, 65536
    v_xor_b32 v7, 8192, v7
    s_cmp_ge_u32 s60, 63
    s_cbranch_scc1 S_LOOP
    """)
    dma_v()
    g(f"""
    s_cmp_ge_u32 s60, 62
    s_cbranch_scc1 S_LOOP
    s_add_u32 s45, s60, 1
    s_and_b32 s47, s45, 7
    s_cmp_lg_u32 s47, 0
    s_cbranch_scc1 {nofl}
    s_lshr_b32 s45, s45, 3
    """)
    kv_flags(g, "S_END")
    g(f"{nofl}:")
    dma_k()
    g("s_branch S_LOOP")
    for f in range(16):
        g(f"{R[f]}:")
        g(f"s_add_u32 s68, s68, 1\ns_add_u32 s44, s44, 1\ns_cmp_gt_u32 s44, {TMO}\ns_cbranch_scc1 S_END")
        for k in range(f, 16): g(ld(k))
        g("s_waitcnt vmcnt(0)")
        for x in chk(g, M0R+4*f): g(x)
        g(f"s_cbranch_vccz {C[f]}\ns_branch {R[f]}")
    g(f"{RV}:")
    g(f"s_add_u32 s68, s68, 0x10000\ns_add_u32 s44, s44, 1\ns_cmp_gt_u32 s44, {TMO}\ns_cbranch_scc1 S_END")
    for x in vm: g(x)
    g("s_waitcnt vmcnt(0)")
    for x in chk(g, 64): g(x)
    g(f"s_cbranch_vccz {CV}\ns_branch {RV}")
    g("S_END:")
    g("s_endpgm")

RVB, ROB = 0, 16384
def gen_vo(g, opt):
    g("R_VO:")
    g("s_setprio 3")
    srd(g, 8, A_WO, 8*MB); srd(g, 12, A_WV, 8*MB)
    g(f"""
    s_sub_u32 s26, s25, 1
    s_lshl_b32 s40, s24, 15
    s_lshl_b32 s42, s24, 21
    s_lshl_b32 s43, s27, 6
    s_add_u32 s42, s42, s43
    s_lshl_b32 s49, s27, 8
    s_lshl_b32 s43, s26, 7
    s_add_u32 s49, s49, s43
    s_lshl_b32 s43, s24, 21
    s_add_u32 s49, s49, s43
    """)
    wide_addrs(g, 2, 4, 8)
    g("""
    v_bfe_u32 v8, v1, 4, 1
    v_lshlrev_b32 v8, 3, v8
    v_xor_b32 v8, v8, v1
    v_lshrrev_b32 v9, 2, v8
    v_lshlrev_b32 v9, 11, v9
    v_and_b32 v8, 3, v8
    v_lshl_add_u32 v12, v8, 4, v9
    v_xor_b32 v8, 2, v8
    v_lshl_add_u32 v13, v8, 4, v9
    v_lshrrev_b32 v8, 4, v1
    v_lshlrev_b32 v8, 10, v8
    v_bfe_u32 v9, v1, 3, 1
    v_lshl_add_u32 v8, v9, 8, v8
    v_bfe_u32 v10, v1, 2, 1
    v_lshl_add_u32 v8, v10, 6, v8
    v_and_b32 v10, 3, v1
    v_lshl_add_u32 v8, v10, 3, v8
    v_add_u32 v8, s40, v8
    v_bfe_u32 v10, v1, 4, 1
    v_lshlrev_b32 v10, 5, v10
    v_lshl_add_u32 v9, v9, 7, v10
    """)
    for u in range(2):
        for t in range(2):
            g(f"v_xor_b32 v10, {128*u+32*t}, v9")
            g(f"v_add_u32 v{14+2*u+t}, v8, v10")
    g("s_waitcnt lgkmcnt(0)")
    units = []
    def o_issue(hh, buf):
        for i in range(8):
            if i % 4 == 0: g(f"s_add_u32 m0, s40, {buf*8192 + i*1024}")
            g(f"s_add_u32 s41, s42, {hh*262144 + i*32768 - (i&3)*1024}")
            g(f"buffer_load_dwordx4 v{12+(i&1)}, s[8:11], s41 offen offset:{(i&3)*1024} lds")
    def o_read(hh, buf):
        for odd in range(2):
            for t in range(2):
                b = ((hh*2+odd)*2+t)*8
                for hf in range(2):
                    for u in range(2):
                        g(f"ds_read_b64_tr_b16 {ar(b+4*hf+2*u,2)}, v{14+2*u+t} offset:{buf*8192+hf*4096+odd*512}")
    for ff in range(4):
        units.append((lambda buf, ff=ff: wide_issue(g, 12, "s49", ff, buf, 2),
                      lambda buf, ff=ff: wide_read(g, lambda c: ("v", 128+(ff*4+c)*8), buf, 4), None))
    for hh in range(8):
        units.append((lambda buf, hh=hh: o_issue(hh, buf), lambda buf, hh=hh: o_read(hh, buf), None))
    run_ring(g, units)
    g("s_barrier")
    idx_reg(g, 2, 11)
    g(f"""
    v_lshlrev_b32 v3, 4, v1
    s_lshl_b32 s43, s24, 12
    v_add_u32 v4, s43, v3
    v_add_u32 v4, {MEM}, v4
    s_lshl_b32 s43, s24, 13
    s_lshl_b32 s47, s26, 15
    s_add_u32 s43, s43, s47
    s_add_u32 s43, s43, {OM}
    v_add_u32 v5, s43, v3
    v_add_u32 v12, 4096, v5
    v_lshrrev_b32 v16, 5, v1
    v_lshlrev_b32 v6, 3, v1
    v_lshl_add_u32 v6, v16, 6, v6
    s_mul_i32 s43, s24, 2560
    v_add_u32 v6, s43, v6
    v_lshrrev_b32 v17, 2, v1
    v_and_b32 v18, 3, v1
    v_lshlrev_b32 v7, 3, v17
    v_lshl_add_u32 v7, v18, 7, v7
    v_lshrrev_b32 v19, 1, v18
    v_lshl_add_u32 v7, v19, 6, v7
    s_mul_i32 s43, s24, 640
    v_add_u32 v7, s43, v7
    s_lshl_b32 s43, s27, 11
    s_lshl_b32 s47, s26, 10
    s_add_u32 s43, s43, s47
    s_lshl_b32 s47, s24, 8
    s_add_u32 s43, s43, s47
    s_add_u32 s43, s43, {VM}
    v_lshlrev_b32 v8, 4, v17
    v_add_u32 v8, s43, v8
    v_and_b32 v19, 15, v1
    v_lshlrev_b32 v9, 2, v19
    v_bfe_u32 v20, v1, 4, 1
    v_lshl_add_u32 v9, v20, 8, v9
    v_lshl_add_u32 v9, v16, 9, v9
    s_lshl_b32 s43, s24, 10
    s_add_u32 s43, s43, {ROB}
    v_add_u32 v9, s43, v9
    v_lshlrev_b32 v10, 3, v1
    v_add_u32 v10, {ROB}, v10
    v_lshrrev_b32 v20, 4, v1
    v_lshlrev_b32 v13, 5, v20
    v_bfe_u32 v20, v1, 2, 1
    v_lshl_add_u32 v13, v20, 4, v13
    v_bfe_u32 v20, v1, 3, 1
    v_lshl_add_u32 v13, v20, 8, v13
    s_lshl_b32 s43, s27, 9
    s_lshl_b32 s47, s26, 7
    s_add_u32 s43, s43, s47
    s_add_u32 s43, s43, {MEM+16384}
    v_add_u32 v13, s43, v13
    v_mov_b32 v20, {OOB}
    v_cmp_eq_u32 vcc, 0, v18
    s_mov_b32 s60, 0
    s_mov_b32 s61, 0
    v_cndmask_b32 v8, v20, v8, vcc
    v_cndmask_b32 v13, v20, v13, vcc
    s_mov_b32 s65, 0
    s_mov_b32 s67, -2
    s_mov_b32 s68, 0
    """)
    g("s_lshl_b32 s43, s25, 5\ns_add_u32 s43, s43, s27")
    stamp_init(g, opt, "s43")
    def ldm(f): return f"buffer_load_dwordx4 {vr(16+4*f,4)}, v4, s[4:7], s61 offen offset:{f*1024} sc1"
    def ldo(f): return f"buffer_load_dwordx4 {vr(32+4*f,4)}, v{5 if f < 4 else 12}, s[4:7], s65 offen offset:{(f%4)*1024} sc1"
    def gather4(dst):
        g("s_nop 1")
        for q in range(1, 4):
            g(f"v_mov_b32_dpp v{dst+q}, v{dst} quad_perm:[{q},{q},{q},{q}] row_mask:0xf bank_mask:0xf")
    g("V_LOOP:")
    for i in range(32): g(f"v_mov_b32 v{64+i}, 0")
    delay(g, opt.get("dV", 0))
    stamp(g, opt, 0)
    for f in range(4): g(ldm(f))
    R = [g.lab("VR") for f in range(4)]; C = [g.lab("VC") for f in range(4)]
    g("s_mov_b32 s44, 0")
    g("s_waitcnt vmcnt(3)")
    for x in chk(g, 16): g(x)
    g(f"s_cbranch_vccnz {R[0]}\n{C[0]}:")
    for f in range(4):
        for c in range(4):
            g(f"{SMF} {vr(64+4*c,4)}, {vr(16+4*f,4)}, {vr(128+(f*4+c)*8,8)}, v2")
            if c == 2 and f < 3:
                g(f"s_waitcnt vmcnt({2-f})")
                for x in chk(g, 16+4*(f+1))[:2]: g(x)
            if c == 3 and f < 3:
                g(chk(g, 16+4*(f+1))[2])
                g(f"s_cbranch_vccnz {R[f+1]}\n{C[f+1]}:")
    stamp(g, opt, 1)
    g("s_nop 4")
    for c in range(4):
        a = 64 + 4*c
        g(f"v_add_f32 v{a}, v{a}, v{a+1}")
        g(f"v_add_f32 v{a+1}, v{a+2}, v{a+3}")
        g(f"ds_write_b64 v6, {vr(a,2)} offset:{RVB+640*c}")
    g("s_waitcnt lgkmcnt(0)\ns_barrier")
    for w in range(4): g(f"ds_read_b64 {vr(96+2*w,2)}, v7 offset:{RVB+2560*w}")
    g("""
    s_waitcnt lgkmcnt(2)
    v_pk_add_f32 v[96:97], v[96:97], v[98:99]
    s_waitcnt lgkmcnt(0)
    v_pk_add_f32 v[100:101], v[100:101], v[102:103]
    v_pk_add_f32 v[96:97], v[96:97], v[100:101]
    v_cvt_pk_bf16_f32 v104, v96, v97
    v_min_u32 v104, s67, v104
    """)
    gather4(104)
    g("buffer_store_dwordx4 v[104:107], v8, s[4:7], s65 offen sc1")
    stamp(g, opt, 2)
    g("s_cmp_eq_u32 s60, 63\ns_cbranch_scc1 V_END")
    delay(g, opt.get("dO", 0))
    stamp(g, opt, 3)
    for f in range(8): g(ldo(f))
    RO = [g.lab("OR") for f in range(8)]; CO = [g.lab("OC") for f in range(8)]
    g("s_mov_b32 s44, 0")
    g("s_waitcnt vmcnt(7)")
    for x in chk(g, 32): g(x)
    g(f"s_cbranch_vccnz {RO[0]}\n{CO[0]}:")
    stamp(g, opt, 4)
    for f in range(8):
        for c in range(4):
            g(f"{SMF} {vr(80+4*c,4)}, {vr(32+4*f,4)}, {ar((f*4+c)*8,8)}, v2")
            if c == 2 and f < 7:
                g(f"s_waitcnt vmcnt({6-f})")
                for x in chk(g, 32+4*(f+1))[:2]: g(x)
            if c == 3 and f < 7:
                g(chk(g, 32+4*(f+1))[2])
                g(f"s_cbranch_vccnz {RO[f+1]}\n{CO[f+1]}:")
    stamp(g, opt, 5)
    g("""
    s_mov_b32 exec_hi, 0
    s_nop 4
    v_add_f32 v96, v80, v81
    v_add_f32 v98, v82, v83
    v_add_f32 v97, v84, v85
    v_add_f32 v99, v86, v87
    s_not_b64 exec, exec
    v_add_f32 v96, v88, v89
    v_add_f32 v98, v90, v91
    v_add_f32 v97, v92, v93
    v_add_f32 v99, v94, v95
    s_mov_b64 exec, -1
    ds_write2_b32 v9, v96, v97 offset0:0 offset1:16
    ds_write2_b32 v9, v98, v99 offset0:32 offset1:48
    s_waitcnt lgkmcnt(0)
    s_barrier
    s_cmp_lg_u32 s24, 0
    s_cbranch_scc1 V_NEXT
    """)
    for k in range(8): g(f"ds_read_b64 {vr(96+2*k,2)}, v10 offset:{512*k}")
    g("""
    s_waitcnt lgkmcnt(6)
    v_pk_add_f32 v[96:97], v[96:97], v[98:99]
    s_waitcnt lgkmcnt(4)
    v_pk_add_f32 v[100:101], v[100:101], v[102:103]
    s_waitcnt lgkmcnt(2)
    v_pk_add_f32 v[104:105], v[104:105], v[106:107]
    v_pk_add_f32 v[96:97], v[96:97], v[100:101]
    s_waitcnt lgkmcnt(0)
    v_pk_add_f32 v[108:109], v[108:109], v[110:111]
    v_pk_add_f32 v[96:97], v[96:97], v[104:105]
    v_pk_add_f32 v[96:97], v[96:97], v[108:109]
    v_cvt_pk_bf16_f32 v112, v96, v97
    v_min_u32 v112, s67, v112
    """)
    gather4(112)
    g("buffer_store_dwordx4 v[112:115], v13, s[4:7], s61 offen sc1")
    g("V_NEXT:")
    stamp(g, opt, 6)
    stamp_dump(g, opt)
    g("""
    s_add_u32 s60, s60, 1
    s_add_u32 s61, s61, 16384
    s_add_u32 s65, s65, 65536
    s_branch V_LOOP
    """)
    for (RR, CC, n, ldf, base, inc) in ((R, C, 4, ldm, 16, 1), (RO, CO, 8, ldo, 32, 0x10000)):
        for f in range(n):
            g(f"{RR[f]}:")
            g(f"s_add_u32 s68, s68, {inc}\ns_add_u32 s44, s44, 1\ns_cmp_gt_u32 s44, {TMO}\ns_cbranch_scc1 V_END")
            for k in range(f, n): g(ldf(k))
            g("s_waitcnt vmcnt(0)")
            for x in chk(g, base+4*f): g(x)
            g(f"s_cbranch_vccz {CC[f]}\ns_branch {RR[f]}")
    g("V_END:")
    g("s_endpgm")
```

```python
NAME = "recurrent_scan__memory_aug_recurrent_mem_tr__dense_activation_gelu__prompt"
MB = 1 << 20
XN   = 0
HB   = 4 * MB
GB   = 18 * MB
QX   = 24 * MB
KX   = 40 * MB
VX   = 56 * MB
OX   = 72 * MB
MEM  = 88 * MB
OM   = 89 * MB
VM   = 93 * MB
KM   = 97 * MB
CAN  = 101 * MB
FLG  = 102 * MB
WS_BYTES = 256 * MB
F_CLS  = 0
F_Q    = 2048
F_KVQ  = 4096
F_H    = 8192
F_G    = 12288
F_O    = 16384
F_END  = 49152
A_X, A_MEM0, A_WQ, A_WK, A_WV, A_WO, A_W1, A_B1, A_W2, A_B2, A_OUT, A_DBG, A_WS = 0, 8, 16, 24, 32, 40, 64, 72, 80, 88, 96, 104, 112
OOB = 0x80000000

class G:
    def __init__(s):
        s.l = []; s.n = 0
    def __call__(s, x):
        for line in x.strip("\n").split("\n"):
            line = line.strip()
            if line: s.l.append(line)
    def lab(s, p="L"):
        s.n += 1; return f"{p}_{s.n}"
    def text(s): return "\n".join(s.l) + "\n"

def vr(a, n=1, k="v"):
    return f"{k}{a}" if n == 1 else f"{k}[{a}:{a+n-1}]"
def ar(a, n=1): return vr(a, n, "a")
def sr(a, n=1): return vr(a, n, "s")

def srd(g, s, karg, nbytes):
    g(f"s_load_dwordx2 s[{s}:{s+1}], s[0:1], {karg}")
    g(f"s_mov_b32 s{s+2}, {nbytes}")
    g(f"s_mov_b32 s{s+3}, 0x20000")

def weave(g, main, fill):
    for x in fill.get(-1, []): g(x)
    for i, m in enumerate(main):
        g(m)
        for x in fill.get(i, []): g(x)

def kdesc(name, vgpr, accum, sgpr=102):
    return f""".amdhsa_kernel {name}
  .amdhsa_next_free_vgpr {vgpr}
  .amdhsa_next_free_sgpr {sgpr}
  .amdhsa_accum_offset {accum}
  .amdhsa_group_segment_fixed_size 0
  .amdhsa_kernarg_size 120
  .amdhsa_user_sgpr_count 2
  .amdhsa_user_sgpr_kernarg_segment_ptr 1
  .amdhsa_system_sgpr_workgroup_id_x 1
.end_amdhsa_kernel
"""

def mark(g, opt, k):
    if not opt.get("marks"): return
    sk = g.lab("MK")
    g(f"""
    s_cmp_lg_u32 s24, 0
    s_cbranch_scc1 {sk}
    s_memrealtime s[90:91]
    s_lshl_b32 s92, s20, 5
    s_add_u32 s92, s92, s21
    s_lshl_b32 s92, s92, 2
    s_add_u32 s92, s92, {FLG+MB+0xC0000 + k*1024}
    s_waitcnt lgkmcnt(0)
    v_mov_b32 v250, s90
    v_mov_b32 v251, 0
    s_mov_b64 exec, 1
    buffer_store_dword v250, v251, s[4:7], s92 offen
    s_mov_b64 exec, -1
    {sk}:
    """)
```

```python
from common import *
from gemm import f2u
from chain import (TMO, SMF, MF32, MF16, CEXP, stamp, stamp_init, stamp_dump, run_ring, idx_reg, kv_flags)

class Seq:
    def __init__(s, g): s.g = g; s.q = []
    def ds(s, text, tag=None):
        s.g(text); s.q.append(tag)
    def need(s, *tags):
        idx = max((i for i, t in enumerate(s.q) if t in tags), default=-1)
        if idx < 0: return
        n = len(s.q) - 1 - idx
        s.g(f"s_waitcnt lgkmcnt({min(n, 15)})")
        s.q = s.q[idx+1:] if n <= 15 else s.q[-15:]
    def drain(s):
        s.g("s_waitcnt lgkmcnt(0)"); s.q = []

def backoff(g, reg):
    top = g.lab("BK")
    g(f"s_mov_b32 s71, {reg}\n.p2alignl 4, 0xBF800000\n{top}:\ns_sub_u32 s71, s71, 1\ns_cbranch_scc0 {top}")

def probe(g, opt, key, va, reg0, d0):
    k = opt.get("k"+key, 8); pad = opt.get("pad"+key, 8)
    go = g.lab("GO"); sp = g.lab("SP")
    g(f"s_cmp_lg_u32 s24, 0\ns_cbranch_scc1 {go}")
    if key == "S": g(f"s_cmp_eq_u32 s60, 0\ns_cbranch_scc1 {go}")
    g("s_waitcnt vmcnt(0)")
    if d0: backoff(g, d0)
    got = g.lab("GOT")
    for r in range(16 + k):
        if r < 16: g(f"buffer_load_dword v{reg0+r}, v{va}, s[4:7], s59 offen offset:{256*r} sc1")
        if r >= k:
            g(f"s_waitcnt vmcnt({k if r < 16 else 15+k-r})")
            g(f"v_cmp_eq_u32 vcc, -1, v{reg0+r-k}")
            if opt.get("stamps"): g(f"s_mov_b32 s58, {r-k}")
            g(f"s_cbranch_vccz {got}")
            if pad > 3: g(f"s_nop {pad-4}")
        else: g(f"s_nop {pad-1}")
    g(f"""
    s_mov_b32 s71, 0
    {sp}:
    buffer_load_dword v{reg0}, v{va}, s[4:7], s59 offen offset:{256*15} sc1
    s_add_u32 s71, s71, 1
    s_waitcnt vmcnt(0)
    v_cmp_eq_u32 vcc, -1, v{reg0}
    s_cmp_gt_u32 s71, {TMO}
    s_cbranch_scc1 {go}
    s_cbranch_vccnz {sp}
    s_branch {go}
    {got}:
    """)
    post = opt.get("post"+key, 0)
    while post > 0:
        g(f"s_nop {min(post, 16)-1}"); post -= 16
    g(f"{go}:\ns_barrier")

LKX, LSH, LIMG, LW = 0, 8192, 24576, 32768
T0, M0, VX0, VM0, MSK, ONE = 32, 64, 96, 104, 108, 112
LH = [(0,0), (0,1), (1,0), (3,1), (5,1), (7,0), (8,1), (9,1)]
RH = [(s, m) for s in range(16) for m in range(2) if (s, m) not in LH]
LBUF = {0: 80, 1: 88, 2: T0, 3: T0+8, 4: T0+16, 5: T0+24, 14: 120,
        15: T0, 22: T0+8, 23: T0+16, 28: T0+24, 29: T0, 34: T0+8, 35: T0+16, 38: T0+24, 39: T0}
def s_op(sl, c):
    h = (sl, c >> 1)
    if h in LH: return ("v", LBUF[4*sl + c])
    i = RH.index(h)*16 + 8*(c & 1)
    return ("a", i) if i < 256 else ("v", i - 128)
def l_off(p): return (LH.index((p >> 2, (p >> 1) & 1))*2 + (p & 1))*2048
JR = [(0,0), (0,1), (1,0), (2,0), (3,0), (1,1), (2,1), (3,1), (0,2), (0,3), (1,2), (1,3), (2,2), (2,3), (3,2), (3,3)]
def slot_jr(sl): return JR[sl]
MREG = [0, 1, 4, 5, 6, 7, 0, 1, 2, 3, 4, 5, 6, 7, 0, 1]
def mreg(sl): return M0 + 4*MREG[sl]

def gen_s(g, opt):
    pV = opt.get("pV", 52)
    g("R_S:")
    g("s_setprio 3")
    srd(g, 8, A_WQ, 8*MB); srd(g, 12, A_WK, 8*MB)
    g(f"""
    s_lshl_b32 s40, s24, 15
    s_add_u32 s40, s40, {LW}
    s_lshl_b32 s42, s27, 8
    s_lshl_b32 s43, s24, 6
    s_add_u32 s42, s42, s43
    """)
    for j in range(4):
        g(f"""
        s_add_u32 s43, s24, {j}
        s_and_b32 s43, s43, 3
        s_lshl_b32 s47, s43, 21
        s_add_u32 s{52+j}, s47, s42
        """)
        if j: g(f"s_lshl_b32 s43, s43, 12\ns_add_u32 s43, s43, {LSH}\nv_lshlrev_b32 v{115+j}, 4, v1\nv_add_u32 v{115+j}, s43, v{115+j}")
    g("""
    v_bfe_u32 v8, v1, 4, 1
    v_bfe_u32 v9, v1, 5, 1
    v_lshlrev_b32 v10, 1, v8
    v_lshl_add_u32 v10, v9, 3, v10
    v_xor_b32 v10, v10, v1
    v_lshrrev_b32 v11, 2, v10
    v_lshlrev_b32 v11, 13, v11
    v_and_b32 v10, 3, v10
    v_lshl_add_u32 v2, v10, 4, v11
    v_bfe_u32 v10, v1, 3, 1
    v_lshlrev_b32 v11, 10, v9
    v_lshl_add_u32 v11, v8, 8, v11
    v_lshl_add_u32 v11, v10, 9, v11
    v_bfe_u32 v9, v1, 2, 1
    v_lshl_add_u32 v11, v9, 6, v11
    v_and_b32 v9, 3, v1
    v_lshl_add_u32 v11, v9, 3, v11
    v_add_u32 v11, s40, v11
    v_lshlrev_b32 v8, 5, v8
    v_lshl_add_u32 v8, v10, 7, v8
    """)
    for u in range(2):
        for t in range(2):
            g(f"v_xor_b32 v9, {128*u+32*t}, v8")
            g(f"v_add_u32 v{4+2*u+t}, v11, v9")
    g("v_lshlrev_b32 v12, 4, v1\nv_add_u32 v12, s40, v12\ns_waitcnt lgkmcnt(0)")
    def issue(un, buf):
        for i in range(8):
            sl, m = un[i >> 2]; j, r = slot_jr(sl)
            if i % 4 == 0: g(f"s_add_u32 m0, s40, {buf*8192 + i*1024}")
            g(f"s_add_u32 s41, s{52+j}, {r*524288 + (i&3)*131072 - (i&3)*1024}")
            g(f"buffer_load_dwordx4 v2, s[{8+4*m}:{11+4*m}], s41 offen offset:{(i&3)*1024} lds")
    def read(un, buf):
        for c in range(4):
            sl, m = un[c >> 1]
            k, b = ("v", T0 + 8*c) if un[0] in LH else s_op(sl, 2*m + (c & 1))
            for hf in range(2):
                for u in range(2):
                    g(f"ds_read_b64_tr_b16 {vr(b+4*hf+2*u,2,k)}, v{4+2*u+(c&1)} offset:{buf*8192+(c>>1)*4096+hf*2048}")
    def post(buf):
        for c in range(4):
            for q in range(2):
                g(f"ds_write_b128 v12, {vr(T0+8*c+4*q,4)} offset:{buf*8192+(2*c+q)*1024}")
        g("s_waitcnt lgkmcnt(0)")
    HU = RH + LH
    run_ring(g, [(lambda buf, un=un: issue(un, buf), lambda buf, un=un: read(un, buf), post if un[0] in LH else None)
                 for un in [HU[2*i:2*i+2] for i in range(16)]])
    idx_reg(g, 2, 11)
    g(f"""
    v_mov_b32 v4, v12
    v_lshlrev_b32 v7, 4, v1
    s_lshl_b32 s43, s24, 12
    v_add_u32 v3, s43, v7
    v_add_u32 v13, {LSH}, v3
    v_and_b32 v11, 15, v1
    v_lshrrev_b32 v16, 4, v1
    s_lshl_b32 s43, s24, 10
    s_add_u32 s43, s43, {LIMG}
    v_lshlrev_b32 v5, 5, v11
    v_lshl_add_u32 v5, v16, 2, v5
    v_add_u32 v5, s43, v5
    v_lshlrev_b32 v6, 3, v1
    v_add_u32 v6, {LIMG}, v6
    s_lshl_b32 s43, s24, 11
    v_add_u32 v12, s43, v7
    s_lshl_b32 s43, s27, 11
    s_lshl_b32 s47, s24, 9
    s_add_u32 s43, s43, s47
    v_lshlrev_b32 v8, 4, v11
    v_and_b32 v17, 1, v16
    v_lshl_add_u32 v8, v17, 3, v8
    v_add_u32 v8, s43, v8
    v_add_u32 v8, {VM}, v8
    v_and_b32 v18, 7, v1
    v_lshlrev_b32 v10, 4, v18
    v_lshl_add_u32 v10, v16, 7, v10
    v_add_u32 v10, s43, v10
    v_add_u32 v10, {KM}, v10
    v_bfe_u32 v18, v1, 2, 1
    v_lshlrev_b32 v9, 15, v18
    v_and_b32 v18, 3, v1
    v_lshl_add_u32 v9, v18, 5, v9
    v_lshl_add_u32 v9, v17, 4, v9
    v_lshrrev_b32 v18, 5, v1
    v_lshl_add_u32 v9, v18, 7, v9
    s_lshl_b32 s43, s27, 10
    s_lshl_b32 s47, s24, 8
    s_add_u32 s43, s43, s47
    s_add_u32 s43, s43, {OM}
    v_add_u32 v9, s43, v9
    v_mov_b32 v18, {OOB}
    v_cmp_gt_u32 vcc, 8, v11
    v_mov_b32 v{MSK}, 0
    s_nop 0
    v_cndmask_b32 v9, v18, v9, vcc
    v_cndmask_b32 v10, v10, v18, vcc
    v_mov_b32 v18, {hex(f2u(-1e30))}
    v_cmp_gt_u32 vcc, 32, v1
    s_lshr_b32 s46, s27, 1
    s_lshl_b32 s46, s46, 4
    v_cndmask_b32 v{MSK}, v{MSK}, v18, vcc
    s_add_u32 s46, s46, {FLG+F_KVQ}
    s_lshl_b32 s49, s27, 13
    s_add_u32 s50, s49, {KX}
    s_add_u32 s51, s49, {VX}
    s_lshl_b32 s52, s24, 11
    s_mov_b32 s60, 0
    s_mov_b32 s61, {MEM}
    s_mov_b32 s65, 0
    s_mov_b32 s66, {hex(f2u(CEXP))}
    s_mov_b32 s62, s66
    s_mov_b32 s63, s66
    s_mov_b32 s67, -2
    s_mov_b32 s68, 0
    s_mov_b32 s45, 0
    s_mov_b32 s69, 0
    """)
    g(f"""
    s_mov_b32 s59, {CAN}
    v_mov_b32 v18, {OOB}
    v_lshlrev_b32 v0, 7, v1
    v_cmp_gt_u32 vcc, 2, v1
    s_lshr_b32 s43, s27, 4
    s_lshl_b32 s43, s43, 7
    v_cndmask_b32 v0, v18, v0, vcc
    s_add_u32 s43, s43, 4096
    v_lshlrev_b32 v119, 8, v1
    v_add_u32 v119, s43, v119
    s_and_b32 s43, s27, 15
    s_or_b32 s43, s43, s24
    s_cmp_eq_u32 s43, 0
    s_cselect_b32 s43, 16, 0
    v_cmp_gt_u32 vcc, s43, v1
    s_nop 1
    v_cndmask_b32 v119, v18, v119, vcc
    """)
    for i in range(1, 4): g(f"v_mov_b32 v{MSK+i}, v{MSK}")
    for i in range(4): g(f"v_mov_b32 v{ONE+i}, 0x3f803f80")
    stamp_init(g, opt, "s27")
    if not opt.get("solo"): kv_flags(g, "S_END")
    def prefetch():
        g(f"""
        s_mov_b32 m0, s52
        s_nop 0
        buffer_load_dwordx4 v12, s[4:7], s50 offen sc1 lds
        buffer_load_dwordx4 v12, s[4:7], s50 offen offset:1024 sc1 lds
        buffer_load_dwordx4 {vr(VX0,4)}, v12, s[4:7], s51 offen sc1
        buffer_load_dwordx4 {vr(VX0+4,4)}, v12, s[4:7], s51 offen offset:1024 sc1
        s_add_u32 s50, s50, {0 if opt.get("solo") else 262144}
        s_add_u32 s51, s51, {0 if opt.get("solo") else 262144}
        """)
    prefetch()
    def ld(r): return f"buffer_load_dwordx4 {vr(M0+4*r,4)}, v3, s[4:7], s61 offen offset:{r*1024} sc1"
    SEN = "0x12345" if opt.get("solo") else "-1"
    def cmp(r): return f"v_cmp_eq_u32 vcc, {SEN}, v{r}"
    Q = Seq(g)
    g("S_LOOP:")
    def tr(p, q): return lambda: Q.ds(f"ds_read_b128 {vr(LBUF[p]+4*q,4)}, v4 offset:{l_off(p)+q*1024}", ("T", p >> 2, p & 3))
    for p in (0, 1, 2, 3, 4, 5, 14): tr(p, 0)(); tr(p, 1)()
    for i in range(16): g(f"v_mov_b32 v{16+i}, 0")
    g("s_mov_b32 s44, 0")
    if opt.get("can", 1) and not opt.get("solo"): probe(g, opt, "S", 0, M0, opt.get("dS", 0))
    else: backoff(g, "s69")
    stamp(g, opt, 0)
    for r in range(4):
        g(ld(r))
        if r < 3 and opt.get("stS", 4): g(f"s_nop {opt.get('stS', 4)-1}")
    R = [g.lab("SR") for r in range(4)]; C = [g.lab("SC") for r in range(4)]
    Q.drain()
    g("s_waitcnt vmcnt(3)")
    g(cmp(M0))
    g(f"s_cbranch_vccnz {R[0]}")
    g(f"{C[0]}:")
    stamp(g, opt, 1)
    SMS = [(s, c) for s in range(10) for c in range(4)]
    SMS += [(s, c) for s in range(10, 16) for c in (0, 1)]
    SMS += [(s, 2) for s in range(10, 16)] + [(s, 3) for s in range(10, 16)]
    F = {p: [] for p in range(64)}
    def wr(r): return lambda: Q.ds(f"ds_write_b128 v13, {vr(M0+4*r,4)} offset:{r*1024}", ("W", r))
    def rd(sl):
        j, r = slot_jr(sl)
        return lambda: Q.ds(f"ds_read_b128 {vr(mreg(sl),4)}, v{115+j} offset:{r*1024}", ("M", sl))
    def x(t): return lambda: g(t)
    def bar(*tags): return [lambda: Q.need(*tags), x("s_barrier")]
    def chk(r): return [x(f"s_waitcnt vmcnt({3-r})"), x(cmp(M0+4*r))]
    def br(r): return x(f"s_cbranch_vccnz {R[r]}\n{C[r]}:")
    F[3] += bar(("W", 0)) + [rd(2), rd(3)] + chk(1) + [br(1)]
    F[21] += [x("s_waitcnt vmcnt(0)"), x(f"v_max_u32 v11, v{M0+8}, v{M0+12}")]; F[22] += [x(cmp(11))]; F[23] += [br(2)]
    F[11] += bar(("W", 1)); F[31] += bar(("W", 3))
    for gp, r in ((0, 0), (6, 1), (25, 2), (27, 3)): F[gp] += [wr(r)]
    for ga, p in ((4, 15), (9, 22), (13, 23), (16, 28), (18, 29), (23, 34), (29, 35), (31, 38), (33, 39)):
        F[ga] += [tr(p, 0)]; F[ga+1] += [tr(p, 1)]
    for gp, sl in ((8, 4), (12, 5), (15, 6), (20, 7), (35, 10), (36, 11), (37, 12), (38, 13), (39, 14), (40, 15)):
        F[gp] += [rd(sl)]
    for gp, q in ((41, 2), (42, 3), (43, 4), (44, 5), (45, 6), (46, 7), (47, 0), (48, 1)):
        F[gp] += [lambda q=q: Q.ds(f"ds_read_b128 {vr(T0+4*q,4)}, v7 offset:{LKX+q*1024}", ("K",))]
    def epi(c):
        a = 16 + 4*c
        return [x(f"v_add_f32 v{a}, v{a}, v{a+1}"), x(f"v_add_f32 v{a+2}, v{a+2}, v{a+3}"), x(f"v_cvt_pk_bf16_f32 v{a}, v{a}, v{a+2}")]
    e0, e1, e2, e3 = epi(0), epi(1), epi(2), epi(3)
    XQ = [72, 76, 120, 124]; XN = [80, 84, 88, 92]
    def trx(dst, b, j, tag): return lambda: Q.ds(f"ds_read_b64_tr_b16 {vr(dst[b]+2*j,2)}, v6 offset:{b*1024+j*512}", (tag, b))
    F[54] = e0[:2]
    F[55] = [e0[2], e1[0]]
    F[56] = e1[1:]
    F[57] = [lambda: Q.ds("ds_write2_b32 v5, v16, v20 offset0:0 offset1:128", ("I", 0))]
    F[60] = bar(("I", 0))
    F[61] = [trx(XQ,0,0,"XQ"), trx(XQ,0,1,"XQ"), e2[0]]
    F[62] = [trx(XQ,1,0,"XQ"), trx(XQ,1,1,"XQ"), e2[1]]
    F[63] = [trx(XQ,2,0,"XQ"), trx(XQ,2,1,"XQ"), trx(XQ,3,0,"XQ"), trx(XQ,3,1,"XQ"), e2[2],
             lambda: Q.ds("ds_write_b32 v5, v24 offset:16", ("I", 1)), x("s_nop 1")] + e3 + \
            [lambda: Q.ds("ds_write_b32 v5, v28 offset:528", ("I", 2))]
    vm = [f"buffer_load_dwordx2 {vr(VM0+2*t,2)}, v8, s[4:7], s65 offen offset:{256*t} sc1" for t in range(2)]
    if pV < 64: F[pV] = [x(vm[0])] + F[pV]; F[pV+opt.get("pVd", 1)] = [x(vm[1])] + F[pV+opt.get("pVd", 1)]
    pC = opt.get("pC", 63)
    if opt.get("can", 1):
        cst = x("buffer_store_dword v1, v119, s[4:7], s59 offen sc1")
        if pC == 63: F[63][6] = lambda: (cst(), g("s_nop 0"))
        elif pC < 63: F[pC] = F[pC] + [cst]
    def can_at(k):
        if opt.get("can", 1) and pC == k: cst()
    for p, (s, c) in enumerate(SMS):
        Q.need(("M", s), ("T", s, c))
        k, b = s_op(s, c)
        g(f"{SMF} {vr(16+4*c,4)}, {vr(mreg(s),4)}, {vr(b,8,k)}, v2")
        if p == 63: stamp(g, opt, 2)
        if p in opt.get("sp", []): g(f"s_memtime s[{72+2*(2+opt['sp'].index(p))}:{73+2*(2+opt['sp'].index(p))}]")
        for f in F[p]: f()
    S0, S1, S2 = 16, 20, 64
    def xs(b):
        Q.need(("XQ", b))
        for t, S in ((0, S0), (1, S1)):
            yield f"{MF32} {vr(S,4)}, {vr(T0+16*t+4*b,4)}, {vr(XQ[b],4)}, {'0' if b == 0 else vr(S,4)}"
    for b in (0, 1):
        for m in xs(b): g(m)
    if pV >= 64:
        for v in vm: g(v)
    can_at(64)
    Q.drain()
    g("s_barrier")
    rest = [m for b in (2, 3) for m in xs(b)]
    for b in range(4):
        trx(XN, b, 0, "XN")(); trx(XN, b, 1, "XN")()
        g(rest[b])
    can_at(65)
    stamp(g, opt, 3)
    g("s_cmp_eq_u32 s60, 63")
    g("s_cbranch_scc1 S_LAST")
    mx = [f"v_max3_f32 v26, v{S0}, v{S0+1}, v{S0+2}", f"v_max3_f32 v27, v{S1}, v{S1+1}, v{S1+2}",
          f"v_max3_f32 v26, v26, v{S0+3}, v{S1+3}", "v_max_f32 v26, v26, v27"]
    for b in range(4):
        Q.need(("XN", b))
        X = vr(XN[b], 4)
        g(f"{MF32} {vr(S2,4)}, {X}, {X}, {vr(MSK,4) if b == 0 else vr(S2,4)}")
    for m in mx: g(m)
    can_at(66)
    g(f"""
    s_nop 3
    v_max3_f32 v26, v26, v{S2}, v{S2+1}
    v_max3_f32 v27, v26, v{S2+2}, v{S2+3}
    v_max3_f32 v26, v26, v{S2+2}, v{S2+3}
    s_nop 1
    v_permlane32_swap_b32 v26, v27
    v_max_f32 v24, v26, v27
    v_max_f32 v25, v26, v27
    s_nop 1
    v_permlane16_swap_b32 v24, v25
    v_max_f32 v26, v24, v25
    v_mul_f32 v26, s66, v26
    """)
    can_at(67)
    PX, PM, O0, O1, L = 68, 24, 32, 36, 40
    xr = [S0+i for i in range(4)] + [S1+i for i in range(4)]
    pk = opt.get("pk", 1)
    def pkf(r): return f"v_pk_fma_f32 {vr(r,2)}, {vr(r,2)}, s[62:63], v[26:27] op_sel_hi:[1,1,0] neg_lo:[0,0,1] neg_hi:[0,0,1]"
    if pk:
        for r in xr[::2]: g(pkf(r))
    else:
        for r in xr: g(f"v_fma_f32 v{r}, v{r}, s66, -v26")
    for r in xr: g(f"v_exp_f32 v{r}, v{r}")
    can_at(68)
    g(f"v_fma_f32 v{S2}, v{S2}, s66, -v26")
    for i in range(4): g(f"v_cvt_pk_bf16_f32 v{PX+i}, v{xr[2*i]}, v{xr[2*i+1]}")
    for i in range(1, 3): g(f"v_fma_f32 v{S2+i}, v{S2+i}, s66, -v26")
    RV, CV = g.lab("SRV"), g.lab("SCV")
    g(f"""
    {MF32} {vr(L,4)}, {vr(ONE,4)}, {vr(PX,4)}, 0
    v_fma_f32 v{S2+3}, v{S2+3}, s66, -v26
    v_exp_f32 v{S2}, v{S2}
    {MF32} {vr(O0,4)}, {vr(VX0,4)}, {vr(PX,4)}, 0
    v_exp_f32 v{S2+1}, v{S2+1}
    {MF32} {vr(O1,4)}, {vr(VX0+4,4)}, {vr(PX,4)}, 0
    v_exp_f32 v{S2+2}, v{S2+2}
    v_exp_f32 v{S2+3}, v{S2+3}
    """)
    stamp(g, opt, 4)
    g(f"""
    v_cvt_pk_bf16_f32 v{PM}, v{S2}, v{S2+1}
    v_cvt_pk_bf16_f32 v{PM+1}, v{S2+2}, v{S2+3}
    s_waitcnt vmcnt({1 if opt.get("can", 1) else 0})
    v_max_u32 v11, v{VM0}, v{VM0+2}
    {MF16} {vr(L,4)}, {vr(ONE,2)}, {vr(PM,2)}, {vr(L,4)}
    v_cmp_eq_u32 vcc, {SEN}, v11
    s_cbranch_vccnz {RV}
    {CV}:
    """)
    stamp(g, opt, 5)
    g(f"""
    {MF16} {vr(O0,4)}, {vr(VM0,2)}, {vr(PM,2)}, {vr(O0,4)}
    {MF16} {vr(O1,4)}, {vr(VM0+2,2)}, {vr(PM,2)}, {vr(O1,4)}
    s_nop {opt.get("n1", 3)}
    v_rcp_f32 v{L}, v{L}
    s_nop {opt.get("n2", 1)}
    """)
    def mul4(o):
        if pk:
            for i in (0, 2): g(f"v_pk_mul_f32 {vr(o+i,2)}, {vr(o+i,2)}, {vr(L,2)} op_sel_hi:[1,0]")
        else:
            for i in range(4): g(f"v_mul_f32 v{o+i}, v{o+i}, v{L}")
    mul4(O0)
    for i in range(2): g(f"v_cvt_pk_bf16_f32 v{28+i}, v{O0+2*i}, v{O0+2*i+1}")
    mul4(O1)
    g("v_min_u32 v28, s67, v28")
    for i in range(2): g(f"v_cvt_pk_bf16_f32 v{30+i}, v{O1+2*i}, v{O1+2*i+1}")
    g("buffer_store_dwordx4 v[28:31], v9, s[4:7], s65 offen sc1")
    stamp(g, opt, 6)
    g("S_KM:")
    Q.drain()
    done = g.lab("KMD")
    for b in range(4):
        nx = g.lab("KM")
        if b < 3: g(f"s_cmp_lg_u32 s24, {b}\ns_cbranch_scc1 {nx}")
        for i in range(4): g(f"v_min_u32 v{VM0+i}, s67, v{XN[b]+i}")
        if b < 3: g(f"s_branch {done}\n{nx}:")
    g(f"{done}:")
    g(f"buffer_store_dwordx4 {vr(VM0,4)}, v10, s[4:7], s65 offen sc1")
    stamp_dump(g, opt)
    nofl = g.lab("NF")
    g(f"""
    s_cmp_eq_u32 s60, 63
    s_cbranch_scc1 S_END
    s_add_u32 s60, s60, 1
    s_add_u32 s61, s61, {0 if opt.get("solo") else 16384}
    s_add_u32 s65, s65, 65536
    s_add_u32 s59, s59, 8192
    s_mov_b32 s69, {opt.get("dS", 0)}
    s_cmp_eq_u32 s60, 63
    s_cbranch_scc1 S_LOOP
    s_and_b32 s47, s60, 7
    s_cmp_lg_u32 s47, 0
    s_cbranch_scc1 {nofl}
    s_lshr_b32 s45, s60, 3
    """)
    if not opt.get("solo"): kv_flags(g, "S_END")
    g(f"{nofl}:")
    prefetch()
    g("s_branch S_LOOP")
    g("S_LAST:\ns_waitcnt vmcnt(0)\ns_branch S_KM")
    for r in range(3):
        g(f"{R[r]}:")
        g(f"s_add_u32 s68, s68, 1\ns_add_u32 s44, s44, 1\ns_cmp_gt_u32 s44, {TMO}\ns_cbranch_scc1 S_END")
        for k in range(r, 4): g(ld(k))
        g("s_waitcnt vmcnt(0)")
        if r == 2: g(f"v_max_u32 v11, v{M0+8}, v{M0+12}")
        g(cmp(M0+4*r if r < 2 else 11))
        g(f"s_cbranch_vccz {C[r]}\ns_branch {R[r]}")
    g(f"{RV}:")
    g(f"s_add_u32 s68, s68, 0x10000\ns_add_u32 s44, s44, 1\ns_cmp_gt_u32 s44, {TMO}\ns_cbranch_scc1 S_END")
    for v in vm: g(v)
    g(f"s_waitcnt vmcnt(0)\nv_max_u32 v11, v{VM0}, v{VM0+2}\nv_cmp_eq_u32 vcc, -1, v11")
    g(f"s_cbranch_vccz {CV}\ns_branch {RV}")
    g("S_END:")
    g("s_endpgm")
```

```python
from common import *
from gemm import f2u
from chain import (TMO, SMF, MF32, MF16, CEXP, stamp, stamp_init, stamp_dump, run_ring, idx_reg, wide_addrs, wide_issue, wide_read)
from s4 import backoff, probe
def cmp1(r): return f"v_cmp_eq_u32 vcc, -1, v{r}"
RVB, ROB = 0, 16384
def gen_vo(g, opt):
    g("R_VO:")
    g("s_setprio 3")
    srd(g, 8, A_WO, 8*MB); srd(g, 12, A_WV, 8*MB)
    g(f"""
    s_sub_u32 s26, s25, 1
    s_lshl_b32 s40, s24, 15
    s_lshl_b32 s42, s24, 21
    s_lshl_b32 s43, s27, 6
    s_add_u32 s42, s42, s43
    s_lshl_b32 s49, s27, 8
    s_lshl_b32 s43, s26, 7
    s_add_u32 s49, s49, s43
    s_lshl_b32 s43, s24, 21
    s_add_u32 s49, s49, s43
    """)
    wide_addrs(g, 2, 4, 8)
    g("""
    v_bfe_u32 v8, v1, 4, 1
    v_lshlrev_b32 v8, 3, v8
    v_xor_b32 v8, v8, v1
    v_lshrrev_b32 v9, 2, v8
    v_lshlrev_b32 v9, 11, v9
    v_and_b32 v8, 3, v8
    v_lshl_add_u32 v12, v8, 4, v9
    v_xor_b32 v8, 2, v8
    v_lshl_add_u32 v13, v8, 4, v9
    v_lshrrev_b32 v8, 4, v1
    v_lshlrev_b32 v8, 10, v8
    v_bfe_u32 v9, v1, 3, 1
    v_lshl_add_u32 v8, v9, 8, v8
    v_bfe_u32 v10, v1, 2, 1
    v_lshl_add_u32 v8, v10, 6, v8
    v_and_b32 v10, 3, v1
    v_lshl_add_u32 v8, v10, 3, v8
    v_add_u32 v8, s40, v8
    v_bfe_u32 v10, v1, 4, 1
    v_lshlrev_b32 v10, 5, v10
    v_lshl_add_u32 v9, v9, 7, v10
    """)
    for u in range(2):
        for t in range(2):
            g(f"v_xor_b32 v10, {128*u+32*t}, v9")
            g(f"v_add_u32 v{14+2*u+t}, v8, v10")
    g("s_waitcnt lgkmcnt(0)")
    units = []
    def o_issue(hh, buf):
        for i in range(8):
            if i % 4 == 0: g(f"s_add_u32 m0, s40, {buf*8192 + i*1024}")
            g(f"s_add_u32 s41, s42, {hh*262144 + i*32768 - (i&3)*1024}")
            g(f"buffer_load_dwordx4 v{12+(i&1)}, s[8:11], s41 offen offset:{(i&3)*1024} lds")
    def o_read(hh, buf):
        for odd in range(2):
            for t in range(2):
                b = ((hh*2+odd)*2+t)*8
                for hf in range(2):
                    for u in range(2):
                        g(f"ds_read_b64_tr_b16 {ar(b+4*hf+2*u,2)}, v{14+2*u+t} offset:{buf*8192+hf*4096+odd*512}")
    for ff in range(4):
        units.append((lambda buf, ff=ff: wide_issue(g, 12, "s49", ff, buf, 2),
                      lambda buf, ff=ff: wide_read(g, lambda c: ("v", 128+(ff*4+c)*8), buf, 4), None))
    for hh in range(8):
        units.append((lambda buf, hh=hh: o_issue(hh, buf), lambda buf, hh=hh: o_read(hh, buf), None))
    run_ring(g, units)
    g("s_barrier")
    idx_reg(g, 2, 11)
    g(f"""
    v_lshlrev_b32 v3, 4, v1
    s_lshl_b32 s43, s24, 12
    v_add_u32 v4, s43, v3
    v_add_u32 v4, {MEM}, v4
    s_lshl_b32 s43, s24, 13
    s_lshl_b32 s47, s26, 15
    s_add_u32 s43, s43, s47
    s_add_u32 s43, s43, {OM}
    v_add_u32 v5, s43, v3
    v_add_u32 v12, 4096, v5
    v_lshrrev_b32 v16, 5, v1
    v_lshlrev_b32 v6, 3, v1
    v_lshl_add_u32 v6, v16, 6, v6
    s_mul_i32 s43, s24, 2560
    v_add_u32 v6, s43, v6
    v_lshrrev_b32 v17, 2, v1
    v_and_b32 v18, 3, v1
    v_lshlrev_b32 v7, 3, v17
    v_lshl_add_u32 v7, v18, 7, v7
    v_lshrrev_b32 v19, 1, v18
    v_lshl_add_u32 v7, v19, 6, v7
    s_mul_i32 s43, s24, 640
    v_add_u32 v7, s43, v7
    s_lshl_b32 s43, s27, 11
    s_lshl_b32 s47, s26, 10
    s_add_u32 s43, s43, s47
    s_lshl_b32 s47, s24, 8
    s_add_u32 s43, s43, s47
    s_add_u32 s43, s43, {VM}
    v_lshlrev_b32 v8, 4, v17
    v_add_u32 v8, s43, v8
    v_and_b32 v19, 15, v1
    v_lshlrev_b32 v9, 2, v19
    v_bfe_u32 v20, v1, 4, 1
    v_lshl_add_u32 v9, v20, 8, v9
    v_lshl_add_u32 v9, v16, 9, v9
    s_lshl_b32 s43, s24, 10
    s_add_u32 s43, s43, {ROB}
    v_add_u32 v9, s43, v9
    v_lshlrev_b32 v10, 3, v1
    v_add_u32 v10, {ROB}, v10
    v_lshrrev_b32 v20, 4, v1
    v_lshlrev_b32 v13, 5, v20
    v_bfe_u32 v20, v1, 2, 1
    v_lshl_add_u32 v13, v20, 4, v13
    v_bfe_u32 v20, v1, 3, 1
    v_lshl_add_u32 v13, v20, 8, v13
    s_lshl_b32 s43, s27, 9
    s_lshl_b32 s47, s26, 7
    s_add_u32 s43, s43, s47
    s_add_u32 s43, s43, {MEM+16384}
    v_add_u32 v13, s43, v13
    v_mov_b32 v20, {OOB}
    v_cmp_eq_u32 vcc, 0, v18
    s_mov_b32 s60, 0
    s_mov_b32 s61, 0
    v_cndmask_b32 v8, v20, v8, vcc
    v_cndmask_b32 v13, v20, v13, vcc
    s_mov_b32 s65, 0
    s_mov_b32 s67, -2
    s_mov_b32 s68, 0
    s_mov_b32 s69, 0
    """)
    g(f"""
    s_mov_b32 s59, {CAN+4096}
    v_lshlrev_b32 v0, 7, v1
    v_cmp_gt_u32 vcc, 2, v1
    s_lshl_b32 s43, s26, 7
    s_add_u32 s43, s43, 4096
    v_cndmask_b32 v0, v20, v0, vcc
    v_lshlrev_b32 v119, 8, v1
    v_add_u32 v119, s43, v119
    s_xor_b32 s43, s24, {opt.get("cW", 0)}
    s_or_b32 s43, s43, s27
    s_cmp_eq_u32 s43, 0
    s_cselect_b32 s43, 16, 0
    v_cmp_gt_u32 vcc, s43, v1
    s_nop 1
    v_cndmask_b32 v119, v20, v119, vcc
    """)
    g("s_lshl_b32 s43, s25, 5\ns_add_u32 s43, s43, s27")
    stamp_init(g, opt, "s43")
    def ldm(f): return f"buffer_load_dwordx4 {vr(16+4*f,4)}, v4, s[4:7], s61 offen offset:{f*1024} sc1"
    def ldo(f): return f"buffer_load_dwordx4 {vr(32+4*f,4)}, v{5 if f < 4 else 12}, s[4:7], s65 offen offset:{(f%4)*1024} sc1"
    def gather4(dst):
        g("s_nop 1")
        for q in range(1, 4):
            g(f"v_mov_b32_dpp v{dst+q}, v{dst} quad_perm:[{q},{q},{q},{q}] row_mask:0xf bank_mask:0xf")
    g("V_LOOP:")
    for i in range(32): g(f"v_mov_b32 v{64+i}, 0")
    g("s_mov_b32 s44, 0")
    backoff(g, "s69")
    stamp(g, opt, 0)
    for f in range(4):
        g(ldm(f))
        if f < 3 and opt.get("stV", 4): g(f"s_nop {opt.get('stV', 4)-1}")
    R = [g.lab("VR") for f in range(4)]; C = [g.lab("VC") for f in range(4)]
    g("s_waitcnt vmcnt(3)")
    g(cmp1(16))
    g(f"s_cbranch_vccnz {R[0]}\n{C[0]}:")
    for f in range(4):
        for c in range(4):
            g(f"{SMF} {vr(64+4*c,4)}, {vr(16+4*f,4)}, {vr(128+(f*4+c)*8,8)}, v2")
            if c == 2 and f < 3:
                g(f"s_waitcnt vmcnt({2-f})")
                g(cmp1(16+4*(f+1)))
            if c == 3 and f < 3:
                g(f"s_cbranch_vccnz {R[f+1]}\n{C[f+1]}:")
    stamp(g, opt, 1)
    g("s_nop 4")
    for c in range(4):
        a = 64 + 4*c
        g(f"v_add_f32 v{a}, v{a}, v{a+1}")
        g(f"v_add_f32 v{a+1}, v{a+2}, v{a+3}")
        g(f"ds_write_b64 v6, {vr(a,2)} offset:{RVB+640*c}")
    g("s_waitcnt lgkmcnt(0)\ns_barrier")
    for w in range(4): g(f"ds_read_b64 {vr(96+2*w,2)}, v7 offset:{RVB+2560*w}")
    g("""
    s_waitcnt lgkmcnt(2)
    v_pk_add_f32 v[96:97], v[96:97], v[98:99]
    s_waitcnt lgkmcnt(0)
    v_pk_add_f32 v[100:101], v[100:101], v[102:103]
    v_pk_add_f32 v[96:97], v[96:97], v[100:101]
    v_cvt_pk_bf16_f32 v104, v96, v97
    v_min_u32 v104, s67, v104
    """)
    gather4(104)
    g("buffer_store_dwordx4 v[104:107], v8, s[4:7], s65 offen sc1")
    stamp(g, opt, 2)
    g("s_cmp_eq_u32 s60, 63\ns_cbranch_scc1 V_END")
    g("s_mov_b32 s44, 0")
    if opt.get("can", 1): probe(g, opt, "O", 0, 32, opt.get("dO", 0))
    else: backoff(g, opt.get("dO", 0))
    stamp(g, opt, 3)
    for f in range(8):
        g(ldo(f))
        if f < 7 and opt.get("stO", 8): g(f"s_nop {opt.get('stO', 8)-1}")
    RO = [g.lab("OR") for f in range(8)]; CO = [g.lab("OC") for f in range(8)]
    g("s_waitcnt vmcnt(7)")
    g(cmp1(32))
    g(f"s_cbranch_vccnz {RO[0]}\n{CO[0]}:")
    stamp(g, opt, 4)
    fC = opt.get("fC", 0) if opt.get("can", 1) else 99
    for f in range(8):
        for c in range(4):
            g(f"{SMF} {vr(80+4*c,4)}, {vr(32+4*f,4)}, {ar((f*4+c)*8,8)}, v2")
            if c == 0 and f == fC: g("buffer_store_dword v1, v119, s[4:7], s59 offen sc1")
            if c == 2 and f < 7:
                g(f"s_waitcnt vmcnt({6-f+(1 if f >= fC else 0)})")
                g(cmp1(32+4*(f+1)))
            if c == 3 and f < 7:
                g(f"s_cbranch_vccnz {RO[f+1]}\n{CO[f+1]}:")
    stamp(g, opt, 5)
    g("""
    s_mov_b32 exec_hi, 0
    s_nop 4
    v_add_f32 v96, v80, v81
    v_add_f32 v98, v82, v83
    v_add_f32 v97, v84, v85
    v_add_f32 v99, v86, v87
    s_not_b64 exec, exec
    v_add_f32 v96, v88, v89
    v_add_f32 v98, v90, v91
    v_add_f32 v97, v92, v93
    v_add_f32 v99, v94, v95
    s_mov_b64 exec, -1
    ds_write2_b32 v9, v96, v97 offset0:0 offset1:16
    ds_write2_b32 v9, v98, v99 offset0:32 offset1:48
    s_waitcnt lgkmcnt(0)
    s_barrier
    s_cmp_lg_u32 s24, 0
    s_cbranch_scc1 V_NEXT
    """)
    for k in range(8): g(f"ds_read_b64 {vr(96+2*k,2)}, v10 offset:{512*k}")
    g("""
    s_waitcnt lgkmcnt(6)
    v_pk_add_f32 v[96:97], v[96:97], v[98:99]
    s_waitcnt lgkmcnt(4)
    v_pk_add_f32 v[100:101], v[100:101], v[102:103]
    s_waitcnt lgkmcnt(2)
    v_pk_add_f32 v[104:105], v[104:105], v[106:107]
    v_pk_add_f32 v[96:97], v[96:97], v[100:101]
    s_waitcnt lgkmcnt(0)
    v_pk_add_f32 v[108:109], v[108:109], v[110:111]
    v_pk_add_f32 v[96:97], v[96:97], v[104:105]
    v_pk_add_f32 v[96:97], v[96:97], v[108:109]
    v_cvt_pk_bf16_f32 v112, v96, v97
    v_min_u32 v112, s67, v112
    """)
    gather4(112)
    g("buffer_store_dwordx4 v[112:115], v13, s[4:7], s61 offen sc1")
    g("V_NEXT:")
    g("s_barrier")
    stamp(g, opt, 6)
    stamp_dump(g, opt)
    g(f"""
    s_add_u32 s60, s60, 1
    s_add_u32 s61, s61, 16384
    s_add_u32 s65, s65, 65536
    s_add_u32 s59, s59, 8192
    s_mov_b32 s69, {opt.get("dV", 0)}
    s_branch V_LOOP
    """)
    for (RR, CC, n, ldf, base, inc) in ((R, C, 4, ldm, 16, 1), (RO, CO, 8, ldo, 32, 0x10000)):
        for f in range(n):
            g(f"{RR[f]}:")
            g(f"s_add_u32 s68, s68, {inc}\ns_add_u32 s44, s44, 1\ns_cmp_gt_u32 s44, {TMO}\ns_cbranch_scc1 V_END")
            for k in range(f, n): g(ldf(k))
            g("s_waitcnt vmcnt(0)")
            g(cmp1(base+4*f))
            g(f"s_cbranch_vccz {CC[f]}\ns_branch {RR[f]}")
    g("V_END:")
    g("s_endpgm")
```

```python
import sys, os
sys.path.insert(0, os.path.dirname(os.path.abspath(__file__)))
from common import *
from k0 import gen_k0, K0_GRID
from gemm import gen_gemm
LDS_BYTES = 163840
BC = LDS_BYTES - 16

def task_groups():
    G_ = []
    def kv(b): G_.extend([("K", b, 16), ("V", b, 16)])
    kv(0)
    for b in range(4): G_.append(("F1", b, 14))
    kv(1)
    for b in range(4, 8): G_.append(("F1", b, 14))
    kv(2)
    for b in range(8): G_.append(("F2", b, 4))
    kv(3)
    for b in range(2): G_.append(("Q", b, 16))
    kv(4)
    for b in range(2, 4): G_.append(("Q", b, 16))
    kv(5); kv(6); kv(7)
    for b in range(4, 8): G_.append(("Q", b, 16))
    return G_

def bcast_atomic(g, soff, dst):
    sk = g.lab("BA")
    g(f"""
    s_cmp_lg_u32 s24, 0
    s_cbranch_scc1 {sk}
    v_mov_b32 v2, 1
    v_mov_b32 v3, 0
    v_mov_b32 v4, {BC}
    s_mov_b64 exec, 1
    buffer_atomic_add v2, v3, s[4:7], {soff} offen sc0 sc1
    s_waitcnt vmcnt(0)
    ds_write_b32 v4, v2
    s_mov_b64 exec, -1
    s_waitcnt lgkmcnt(0)
    {sk}:
    s_barrier
    v_mov_b32 v4, {BC}
    ds_read_b32 v2, v4
    s_waitcnt lgkmcnt(0)
    v_readfirstlane_b32 {dst}, v2
    s_barrier
    """)

def gen_main(g, opt):
    g("""
    s_cmp_ge_u32 s2, 256
    s_cbranch_scc1 M_END
    """)
    srd(g, 4, A_WS, WS_BYTES)
    g("""
    v_and_b32 v1, 63, v0
    v_lshrrev_b32 v2, 6, v0
    s_getreg_b32 s22, hwreg(HW_REG_XCC_ID, 0, 4)
    v_readfirstlane_b32 s24, v2
    s_mov_b32 s23, 0
    s_waitcnt lgkmcnt(0)
    M_TRY:
    s_add_u32 s25, s22, s23
    s_and_b32 s25, s25, 7
    s_lshl_b32 s26, s25, 8
    """)
    g(f"s_add_u32 s26, s26, {FLG+F_CLS}")
    bcast_atomic(g, "s26", "s27")
    g("""
    s_cmp_lt_u32 s27, 32
    s_cbranch_scc1 M_GOT
    s_add_u32 s23, s23, 1
    s_cmp_lt_u32 s23, 8
    s_cbranch_scc1 M_TRY
    s_branch M_END
    M_GOT:
    s_mov_b32 s20, s25
    s_mov_b32 s21, s27
    """)
    mark(g, opt, 0)
    if opt.get("chain", True):
        g("""
        s_cmp_eq_u32 s25, 0
        s_cbranch_scc1 R_S
        """)
        if opt.get("solo"): g("s_branch M_END")
        g("""
        s_cmp_lt_u32 s25, 3
        s_cbranch_scc1 R_VO
        """)
    elif not opt.get("allwork"):
        g("s_cmp_lt_u32 s25, 3\ns_cbranch_scc1 M_END")
    g("W_LOOP:")
    g(f"s_mov_b32 s26, {FLG+F_Q}")
    bcast_atomic(g, "s26", "s27")
    start = 0
    for typ, b, n in task_groups():
        nx = g.lab("TK")
        g(f"""
        s_cmp_lt_u32 s27, {start+n}
        s_cbranch_scc0 {nx}
        s_sub_u32 s29, s27, {start}
        s_mov_b32 s28, {b}
        s_branch T_{typ}
        {nx}:
        """)
        start += n
    mark(g, opt, 1)
    if opt.get("ap", True):
        g(f"""
        s_mov_b32 s27, s21
        s_cmp_eq_u32 s20, 3
        s_cbranch_scc1 R_A
        s_sub_u32 s26, s20, 4
        s_branch R_P
        """)
    g("s_branch M_END")
    for typ in ("K", "V", "Q", "F1", "F2"):
        gen_gemm(g, typ, "W_LOOP", "M_END")
    if opt.get("chain", True):
        from s4 import gen_s
        from vo2 import gen_vo
        gen_s(g, opt); gen_vo(g, opt)
    if opt.get("ap", True):
        from ap import gen_a, gen_p
        gen_a(g, opt); gen_p(g, opt)
    g("M_END2:")
    mark(g, opt, 2)
    g("M_END:")
    g("s_endpgm")

def build(opt=None):
    opt = opt or {}
    ref = open("cdna_kernels/" + NAME + ".s.ref").read().split("\n")
    hdr = [l for l in ref if l.startswith(";") and "@launch" not in l and "Override" not in l and "grid=ceil" not in l]
    out = "\n".join(hdr) + "\n"
    out += f"; @launch kernel=prep_kernel grid=({K0_GRID},1,1) block=(256,1,1) lds=1024\n"
    out += f"; @launch kernel={NAME}_kernel grid=(256,1,1) block=(256,1,1) lds={LDS_BYTES}\n"
    out += '.amdgcn_target "amdgcn-amd-amdhsa--gfx950"\n.text\n'
    g = G(); gen_k0(g)
    out += ".globl prep_kernel\n.p2align 8\n.type prep_kernel,@function\nprep_kernel:\n" + g.text()
    g = G(); gen_main(g, opt)
    out += f".globl {NAME}_kernel\n.p2align 8\n.type {NAME}_kernel,@function\n{NAME}_kernel:\n" + g.text()
    out += '.section .rodata,"a"\n.p2align 6\n' + kdesc("prep_kernel", 128, 128) + ".p2align 6\n" + kdesc(NAME + "_kernel", 512, 256)
    return out

if __name__ == "__main__":
    import json
    opt = json.loads(sys.argv[2]) if len(sys.argv) > 2 else {}
    open(sys.argv[1], "w").write(build(opt))
```

```python
from common import *
from gemm import f2u, poll_flags
from chain import MF32, MF16, CEXP, chk, run_ring, TMO, stamp, stamp_dump

def gen_a(g, opt):
    Q, KXR, VXR, KMR, VMR = 32, 64, 96, 128, 144
    MKD, MKM, ONE = 16, 20, 28
    SA0, SM0, SB0, SB1, SM1 = 160, 164, 168, 172, 176
    P0X, P0M, P1X, P1M = 180, 182, 184, 188
    L0, L1, O0, O1, OUT = 192, 196, 200, 32, 64
    g("R_A:")
    g(f"""
    v_lshlrev_b32 v3, 4, v1
    v_and_b32 v11, 15, v1
    v_lshrrev_b32 v12, 4, v1
    v_add_u32 v5, 4096, v3
    v_and_b32 v13, 7, v1
    v_lshlrev_b32 v7, 4, v13
    v_lshl_add_u32 v7, v12, 7, v7
    v_lshlrev_b32 v8, 4, v11
    v_and_b32 v13, 1, v12
    v_lshl_add_u32 v8, v13, 3, v8
    v_mov_b32 v14, {hex(f2u(-1e30))}
    v_mov_b32 v15, 0
    v_lshlrev_b32 v12, 2, v12
    """)
    for r in range(4):
        g(f"v_add_u32 v13, {r}, v12\nv_cmp_le_u32 vcc, v13, v11\ns_nop 1\nv_cndmask_b32 v{MKD+r}, v14, v15, vcc")
    g("v_cmp_gt_u32 vcc, 32, v1\ns_nop 1")
    for r in range(4): g(f"v_cndmask_b32 v{MKM+r}, v14, v15, vcc")
    for r in range(4): g(f"v_mov_b32 v{ONE+r}, 0x3f803f80")
    g(f"""
    s_lshl_b32 s49, s27, 13
    s_lshl_b32 s43, s24, 18
    s_add_u32 s49, s49, s43
    s_add_u32 s50, s49, {QX}
    s_add_u32 s51, s49, {KX}
    s_add_u32 s52, s49, {VX}
    s_and_b32 s49, s27, 3
    s_lshl_b32 s49, s49, 11
    s_lshr_b32 s47, s27, 2
    s_lshl_b32 s47, s47, 14
    s_add_u32 s62, s49, s47
    s_add_u32 s62, s62, {REC+VM}
    s_lshl_b32 s63, s27, 11
    s_add_u32 s63, s63, {KM}
    s_lshl_b32 s49, s27, 12
    s_add_u32 s49, s49, s43
    s_add_u32 s55, s49, {OX}
    s_and_b32 s49, s27, 3
    s_lshl_b32 s49, s49, 2
    s_lshr_b32 s43, s27, 2
    s_lshl_b32 s43, s43, 7
    s_add_u32 s49, s49, s43
    s_lshl_b32 s43, s24, 10
    s_add_u32 s49, s49, s43
    s_add_u32 s56, s49, {FLG+F_O}
    s_lshr_b32 s57, s27, 1
    s_lshl_b32 s57, s57, 4
    s_add_u32 s57, s57, {FLG+F_KVQ}
    s_mov_b32 s60, s24
    s_mov_b32 s66, {hex(f2u(CEXP))}
    v_mov_b32 v9, 0
    v_mov_b32 v10, 1
    v_mov_b32 v6, {3*512}
    """)
    par_init(g, opt, 12)
    def km_loads():
        for b in range(4): g(f"buffer_load_dwordx4 {vr(KMR+4*b,4)}, v7, s[4:7], s53 offen offset:{512*b} sc1")
    def vm_loads():
        for t in range(8): g(f"buffer_load_dwordx2 {vr(VMR+2*t,2)}, v8, s[4:7], s54 offen offset:{256*t} sc1")
    def maxchk(base, n, st):
        R = list(range(base, base+n, st))
        g(f"v_max3_u32 v11, v{R[0]}, v{R[1]}, v{R[2]}")
        i = 3
        while i + 1 < len(R):
            g(f"v_max3_u32 v11, v11, v{R[i]}, v{R[i+1]}"); i += 2
        if i < len(R): g(f"v_max_u32 v11, v11, v{R[i]}")
        g("v_cmp_eq_u32 vcc, -1, v11")
    RK, CK, RV, CV, NOFL = g.lab("ARK"), g.lab("ACK"), g.lab("ARV"), g.lab("ACV"), g.lab("ANF")
    g("A_LOOP:")
    g(f"""
    s_mul_i32 s43, s60, 43
    s_lshr_b32 s43, s43, 8
    s_mul_i32 s43, s43, {2*MB - 6*RECB}
    s_mul_i32 s54, s60, {RECB}
    s_add_u32 s54, s54, s43
    s_add_u32 s54, s54, s62
    s_bitcmp1_b64 s[86:87], s60
    s_cselect_b32 s43, 8192, 0
    s_add_u32 s54, s54, s43
    s_lshl_b32 s53, s60, 16
    s_add_u32 s53, s53, s63
    s_cmp_lt_u32 s60, 8
    s_cselect_b32 s43, 0, 4
    s_and_b32 s43, s43, s60
    s_cbranch_scc1 {NOFL}
    s_lshr_b32 s45, s60, 3
    s_lshl_b32 s45, s45, 8
    s_add_u32 s45, s45, s57
    s_add_u32 s46, s45, 8
    s_lshr_b32 s47, s60, 1
    s_add_u32 s47, s47, 8
    s_lshl_b32 s47, s47, 8
    s_add_u32 s47, s47, s57
    s_cmp_lt_u32 s60, 8
    s_cselect_b32 s45, s47, s45
    """)
    poll_flags(g, 2, "s45", "M_END")
    poll_flags(g, 1, "s46", "M_END")
    g(f"{NOFL}:")
    for base, so in ((Q, "s50"), (KXR, "s51")):
        for q in range(8): g(f"buffer_load_dwordx4 {vr(base+4*q,4)}, v{3 if q < 4 else 5}, s[4:7], {so} offen offset:{1024*(q%4)} sc1")
    km_loads()
    for q in range(8): g(f"buffer_load_dwordx4 {vr(VXR+4*q,4)}, v{3 if q < 4 else 5}, s[4:7], s52 offen offset:{1024*(q%4)} sc1")
    g("s_mov_b32 s44, 0")
    g("s_waitcnt vmcnt(12)")
    for b in range(4):
        for S, A, X, ini in ((SA0, KXR+4*b, Q+4*b, vr(MKD,4)), (SB0, KXR+4*b, Q+16+4*b, "0"), (SB1, KXR+16+4*b, Q+16+4*b, vr(MKD,4))):
            g(f"{MF32} {vr(S,4)}, {vr(A,4)}, {vr(X,4)}, {ini if b == 0 else vr(S,4)}")
    g("s_waitcnt vmcnt(8)")
    maxchk(KMR, 16, 4)
    g(f"s_cbranch_vccnz {RK}\n{CK}:")
    for b in range(4):
        for S, X in ((SM0, Q+4*b), (SM1, Q+16+4*b)):
            g(f"{MF32} {vr(S,4)}, {vr(KMR+4*b,4)}, {vr(X,4)}, {vr(MKM,4) if b == 0 else vr(S,4)}")
    vm_loads()
    g(f"""
    v_max3_f32 v12, v{SA0}, v{SA0+1}, v{SA0+2}
    v_max3_f32 v14, v{SB0}, v{SB0+1}, v{SB0+2}
    v_max3_f32 v15, v{SB0+3}, v{SB1}, v{SB1+1}
    v_max3_f32 v14, v14, v{SB1+2}, v{SB1+3}
    v_max3_f32 v12, v12, v{SA0+3}, v{SM0}
    v_max3_f32 v13, v{SM0+1}, v{SM0+2}, v{SM0+3}
    v_max3_f32 v14, v14, v15, v{SM1}
    v_max3_f32 v15, v{SM1+1}, v{SM1+2}, v{SM1+3}
    v_max_f32 v12, v12, v13
    v_max_f32 v14, v14, v15
    v_mov_b32 v13, v12
    v_mov_b32 v15, v14
    s_nop 1
    v_permlane32_swap_b32 v12, v13
    v_permlane32_swap_b32 v14, v15
    s_nop 0
    v_max_f32 v12, v12, v13
    v_max_f32 v14, v14, v15
    v_mov_b32 v13, v12
    v_mov_b32 v15, v14
    s_nop 1
    v_permlane16_swap_b32 v12, v13
    v_permlane16_swap_b32 v14, v15
    s_nop 0
    v_max_f32 v12, v12, v13
    v_max_f32 v14, v14, v15
    v_mul_f32 v12, s66, v12
    v_mul_f32 v14, s66, v14
    """)
    for i in range(8): g(f"v_fma_f32 v{SA0+i}, v{SA0+i}, s66, -v12")
    for i in range(12): g(f"v_fma_f32 v{SB0+i}, v{SB0+i}, s66, -v14")
    for i in range(20): g(f"v_exp_f32 v{SA0+i}, v{SA0+i}")
    for i in range(10): g(f"v_cvt_pk_bf16_f32 v{P0X+i}, v{SA0+2*i}, v{SA0+2*i+1}")
    g("s_waitcnt vmcnt(8)")
    g(f"{MF16} {vr(L0,4)}, {vr(ONE,2)}, {vr(P0X,2)}, 0")
    g(f"{MF32} {vr(L1,4)}, {vr(ONE,4)}, {vr(P1X,4)}, 0")
    for t in range(8):
        g(f"{MF16} {vr(O0+4*t,4)}, {vr(VXR+4*t,2)}, {vr(P0X,2)}, 0")
        g(f"{MF32} {vr(O1+4*t,4)}, {vr(VXR+4*t,4)}, {vr(P1X,4)}, 0")
    g(f"{MF16} {vr(L0,4)}, {vr(ONE,2)}, {vr(P0M,2)}, {vr(L0,4)}")
    g(f"{MF16} {vr(L1,4)}, {vr(ONE,2)}, {vr(P1M,2)}, {vr(L1,4)}")
    g("s_waitcnt vmcnt(0)")
    maxchk(VMR, 16, 2)
    g(f"s_cbranch_vccnz {RV}\n{CV}:")
    for t in range(8): g(f"{MF16} {vr(O0+4*t,4)}, {vr(VMR+2*t,2)}, {vr(P0M,2)}, {vr(O0+4*t,4)}")
    g(f"v_rcp_f32 v{L0}, v{L0}\nv_rcp_f32 v{L1}, v{L1}")
    for t in range(8): g(f"{MF16} {vr(O1+4*t,4)}, {vr(VMR+2*t,2)}, {vr(P1M,2)}, {vr(O1+4*t,4)}")
    g("s_add_u32 s48, s55, 131072")
    for O, L, so, ob in ((O0, L0, "s55", OUT), (O1, L1, "s48", OUT+16)):
        for i in range(4):
            for j in range(0, 8, 2): g(f"v_pk_mul_f32 {vr(O+8*i+j,2)}, {vr(O+8*i+j,2)}, {vr(L,2)} op_sel_hi:[1,0]")
            for j in range(4): g(f"v_cvt_pk_bf16_f32 v{ob+4*i+j}, v{O+8*i+2*j}, v{O+8*i+2*j+1}")
            g(f"buffer_store_dwordx4 {vr(ob+4*i,4)}, v3, s[4:7], {so} offen offset:{1024*i} sc1")
    g(f"""
    s_add_u32 s60, s60, 4
    s_add_u32 s50, s50, {4*262144}
    s_add_u32 s51, s51, {4*262144}
    s_add_u32 s52, s52, {4*262144}
    s_add_u32 s55, s55, {4*262144}
    s_waitcnt vmcnt(0)
    s_mov_b64 exec, 1
    buffer_store_dword v10, v9, s[4:7], s56 offen sc1
    s_mov_b64 exec, -1
    s_add_u32 s56, s56, 4096
    s_cmp_lt_u32 s60, 64
    s_cbranch_scc1 A_LOOP
    s_branch M_END2
    {RK}:
    s_add_u32 s44, s44, 1
    s_cmp_gt_u32 s44, {TMO}
    s_cbranch_scc1 M_END
    s_sleep {opt.get("aS", 4)}
    buffer_load_dword v11, v6, s[4:7], s53 offen sc1
    s_waitcnt vmcnt(0)
    v_cmp_eq_u32 vcc, -1, v11
    s_cbranch_vccnz {RK}
    """)
    km_loads()
    g("s_waitcnt vmcnt(0)")
    maxchk(KMR, 16, 4)
    g(f"s_cbranch_vccz {CK}\ns_branch {RK}")
    g(f"""
    {RV}:
    s_add_u32 s44, s44, 1
    s_cmp_gt_u32 s44, {TMO}
    s_cbranch_scc1 M_END
    """)
    vm_loads()
    g("s_waitcnt vmcnt(0)")
    maxchk(VMR, 16, 2)
    g(f"s_cbranch_vccz {CV}\ns_branch {RV}")

def gen_p(g, opt):
    g("R_P:")
    srd(g, 8, A_WO, 8*MB); srd(g, 12, A_X, 4*MB); srd(g, 16, A_OUT, 4*MB)
    g(f"""
    s_lshl_b32 s40, s24, 15
    s_lshl_b32 s42, s24, 21
    s_lshl_b32 s43, s27, 6
    s_add_u32 s42, s42, s43
    v_bfe_u32 v8, v1, 4, 1
    v_lshlrev_b32 v8, 1, v8
    v_xor_b32 v9, v8, v1
    v_and_b32 v9, 3, v9
    v_lshrrev_b32 v10, 2, v1
    v_lshlrev_b32 v2, 11, v10
    v_lshl_add_u32 v2, v9, 4, v2
    v_lshlrev_b32 v10, 6, v10
    v_and_b32 v9, 3, v1
    v_lshl_add_u32 v10, v9, 3, v10
    v_add_u32 v10, s40, v10
    v_lshl_add_u32 v4, v8, 4, v10
    v_xor_b32 v8, 2, v8
    v_lshl_add_u32 v5, v8, 4, v10
    s_waitcnt lgkmcnt(0)
    """)
    def issue(hh, buf):
        for i in range(8):
            if i % 4 == 0: g(f"s_add_u32 m0, s40, {buf*8192 + i*1024}")
            g(f"s_add_u32 s41, s42, {hh*262144 + i*32768 - (i&3)*1024}")
            g(f"buffer_load_dwordx4 v2, s[8:11], s41 offen offset:{(i&3)*1024} lds")
    def read(hh, buf):
        for kbl in range(4):
            for t in range(2):
                for j in range(2):
                    g(f"ds_read_b64_tr_b16 {ar(((hh*4+kbl)*2+t)*4+2*j,2)}, v{4+t} offset:{buf*8192+kbl*2048+j*1024}")
    run_ring(g, [(lambda buf, hh=hh: issue(hh, buf), lambda buf, hh=hh: read(hh, buf), None) for hh in range(8)])
    g(f"""
    s_barrier
    v_lshlrev_b32 v3, 4, v1
    s_lshl_b32 s43, s24, 11
    v_add_u32 v4, s43, v3
    s_lshl_b32 s43, s24, 10
    v_add_u32 v5, s43, v3
    s_lshl_b32 s43, s24, 3
    v_add_u32 v6, s43, v3
    v_and_b32 v8, 15, v1
    v_lshlrev_b32 v7, 11, v8
    v_lshrrev_b32 v8, 4, v1
    v_lshl_add_u32 v7, v8, 3, v7
    s_lshl_b32 s43, s24, 5
    s_lshl_b32 s47, s27, 6
    s_add_u32 s43, s43, s47
    v_add_u32 v7, s43, v7
    s_lshl_b32 s50, s26, 17
    s_lshl_b32 s43, s24, 15
    s_add_u32 s50, s50, s43
    s_add_u32 s50, s50, {OX}
    s_lshl_b32 s51, s26, 15
    s_lshl_b32 s43, s27, 10
    s_add_u32 s52, s51, s43
    s_add_u32 s52, s52, {GB}
    s_lshr_b32 s53, s26, 1
    s_lshl_b32 s53, s53, 10
    s_add_u32 s53, s53, {FLG+F_O}
    s_lshr_b32 s54, s27, 3
    s_lshl_b32 s54, s54, 2
    s_add_u32 s54, s54, {FLG+F_G}
    v_lshrrev_b32 v8, 2, v1
    v_and_b32 v9, 3, v1
    v_lshlrev_b32 v9, 2, v9
    v_lshl_add_u32 v9, v8, 7, v9
    v_mov_b32 v10, {OOB}
    v_cmp_gt_u32 s[56:57], 32, v1
    v_cmp_gt_u32 s[58:59], 33, v1
    s_mov_b32 s60, -1
    s_mov_b32 s61, 0
    P_WAIT:
    """)
    def flag_addr():
        g("""
        s_lshl_b32 s43, s61, 11
        s_add_u32 s43, s43, s53
        s_lshr_b32 s47, s61, 2
        s_lshl_b32 s47, s47, 7
        s_add_u32 s47, s47, s54
        v_add_u32 v11, s43, v9
        v_mov_b32 v12, s47
        s_cmp_lt_u32 s61, 32
        s_cselect_b64 s[62:63], s[58:59], 0
        v_cndmask_b32 v11, v12, v11, s[56:57]
        s_add_u32 s61, s61, 1
        v_cndmask_b32 v11, v10, v11, s[62:63]
        """)
    def head():
        g("""
        buffer_load_dword v13, v11, s[4:7], 0 offen sc1
        buffer_load_dwordx2 v[16:17], v6, s[4:7], s52 offen sc1
        buffer_load_dwordx2 v[18:19], v7, s[12:15], s55 offen
        """)
    def ld(k):
        if k % 4 == 0: g(f"s_add_u32 s41, s50, {k*1024}")
        g(f"buffer_load_dwordx4 {vr(64+4*k,4)}, v3, s[4:7], s41 offen offset:{(k%4)*1024} sc1")
    def bump():
        g("s_add_u32 s50, s50, 524288\ns_add_u32 s52, s52, 131072")
    def mm(k):
        for t in range(2):
            g(f"{MF32} {vr(24+4*t,4)}, {ar((k*2+t)*4,4)}, {vr(64+4*k,4)}, {'0' if k == 0 else vr(24+4*t,4)}")
    g("s_add_u32 s61, s60, 1")
    flag_addr()
    g(f"""
    s_mov_b32 s44, 0
    P_POLL:
    buffer_load_dword v13, v11, s[4:7], 0 offen sc1
    s_waitcnt vmcnt(0)
    v_cmp_ne_u32 vcc, 0, v13
    s_cmp_eq_u64 vcc, s[58:59]
    s_cbranch_scc1 P_GO
    s_sleep {opt.get("pS", 4)}
    s_add_u32 s44, s44, 1
    s_cmp_lt_u32 s44, 80000
    s_cbranch_scc1 P_POLL
    s_branch M_END
    P_GO:
    s_add_u32 s55, s60, 1
    s_lshl_b32 s55, s55, 17
    s_add_u32 s55, s55, s51
    """)
    flag_addr(); head()
    for k in range(32): ld(k)
    bump()
    g("""
    P_LOOP:
    s_add_u32 s60, s60, 1
    s_mov_b32 s49, s55
    s_waitcnt vmcnt(32)
    v_cmp_ne_u32 vcc, 0, v13
    v_lshlrev_b32 v48, 16, v16
    v_and_b32 v49, 0xffff0000, v16
    v_lshlrev_b32 v50, 16, v17
    v_and_b32 v51, 0xffff0000, v17
    v_lshlrev_b32 v52, 16, v18
    v_and_b32 v53, 0xffff0000, v18
    v_lshlrev_b32 v54, 16, v19
    v_and_b32 v55, 0xffff0000, v19
    s_cmp_eq_u64 vcc, s[58:59]
    s_cselect_b32 s48, 1, 0
    s_cbranch_scc0 P_SOLO
    s_add_u32 s55, s55, 131072
    """)
    flag_addr(); head()
    for k in range(32):
        g("s_waitcnt vmcnt(34)"); mm(k); ld(k)
    bump()
    g("s_branch P_RED\nP_SOLO:")
    for k in range(32):
        g(f"s_waitcnt vmcnt({31-k})"); mm(k)
    g(f"""
    P_RED:
    s_nop 7
    ds_write_b128 v4, v[24:27]
    ds_write_b128 v4, v[28:31] offset:1024
    s_waitcnt lgkmcnt(0)
    s_barrier
    s_cmp_ge_u32 s24, 2
    s_cbranch_scc1 P_NEXT
    """)
    for w in range(4): g(f"ds_read_b128 {vr(32+4*w,4)}, v5 offset:{2048*w}")
    g("s_waitcnt lgkmcnt(0)")
    for i in range(4):
        g(f"v_add_f32 v{32+i}, v{32+i}, v{36+i}")
        g(f"v_add_f32 v{40+i}, v{40+i}, v{44+i}")
    for i in range(4): g(f"v_add_f32 v{32+i}, v{32+i}, v{40+i}")
    def rnd(a):
        for i in range(2):
            g(f"v_cvt_pk_bf16_f32 v{56+i}, v{a+2*i}, v{a+2*i+1}")
        for i in range(2):
            g(f"v_lshlrev_b32 v{a+2*i}, 16, v{56+i}")
            g(f"v_and_b32 v{a+2*i+1}, 0xffff0000, v{56+i}")
    rnd(32)
    for i in range(4): g(f"v_mul_f32 v{32+i}, v{32+i}, v{48+i}")
    rnd(32)
    for i in range(4): g(f"v_add_f32 v{32+i}, v{32+i}, v{52+i}")
    g("""
    v_cvt_pk_bf16_f32 v58, v32, v33
    v_cvt_pk_bf16_f32 v59, v34, v35
    buffer_store_dwordx2 v[58:59], v7, s[16:19], s49 offen
    P_NEXT:
    v_xor_b32 v4, 8192, v4
    v_xor_b32 v5, 8192, v5
    s_cmp_lg_u32 s48, 0
    s_cbranch_scc1 P_LOOP
    s_cmp_lt_u32 s60, 31
    s_cbranch_scc1 P_WAIT
    s_branch M_END2
    """)
```

```python
from common import *
from gemm import f2u
import math
TMO = 30000
SMF = "v_smfmac_f32_16x16x64_bf16"
MF32 = "v_mfma_f32_16x16x32_bf16"
MF16 = "v_mfma_f32_16x16x16_bf16"
CEXP = 128 ** -0.5 * math.log2(math.e)

def delay(g, clks):
    clks = int(clks)
    if clks >= 128:
        g(f"s_sleep {min(127, clks//64)}"); clks %= 64
    while clks >= 64:
        g("s_nop 15"); clks -= 64
    if clks >= 4: g(f"s_nop {clks//4-1}")

def stamp(g, opt, k):
    if not opt.get("stamps"): return
    if opt.get("only") is not None and k not in opt["only"]: return
    g(f"{'s_memtime' if opt.get('clk') else 's_memrealtime'} s[{72+2*k}:{73+2*k}]")

def stamp_init(g, opt, idreg):
    if not opt.get("stamps"): return
    g(f"""
    s_lshl_b32 s70, {idreg}, 2
    s_add_u32 s70, s70, s24
    s_lshl_b32 s70, s70, 11
    s_add_u32 s70, s70, {FLG+MB}
    v_lshlrev_b32 v14, 2, v1
    s_mov_b32 s58, 0
    """)

def stamp_dump(g, opt, n=7):
    if not opt.get("stamps"): return
    g("s_waitcnt lgkmcnt(0)")
    for k in range(n): g(f"v_writelane_b32 v15, s{72+2*k}, {k}")
    g("""
    s_lshl_b32 s58, s58, 8
    s_or_b32 s68, s68, s58
    v_writelane_b32 v15, s68, 7
    s_mov_b64 exec, 0xff
    buffer_store_dword v15, v14, s[4:7], s70 offen
    s_mov_b64 exec, -1
    s_add_u32 s70, s70, 32
    s_mov_b32 s68, 0
    s_mov_b32 s58, 0
    """)

def wide_addrs(g, vpar, vtr, t0):
    g(f"""
    v_lshrrev_b32 v{t0}, 3, v1
    v_lshlrev_b32 v{t0}, 13, v{t0}
    v_lshrrev_b32 v{t0+1}, 5, v1
    v_lshlrev_b32 v{t0+1}, 1, v{t0+1}
    v_and_b32 v{t0+2}, 7, v1
    v_xor_b32 v{t0+1}, v{t0+1}, v{t0+2}
    v_lshl_add_u32 v{vpar}, v{t0+1}, 4, v{t0}
    v_xor_b32 v{t0+1}, 4, v{t0+1}
    v_lshl_add_u32 v{vpar+1}, v{t0+1}, 4, v{t0}
    """)
    g(f"""
    v_bfe_u32 v{t0}, v1, 2, 1
    v_bfe_u32 v{t0+1}, v1, 4, 1
    v_bfe_u32 v{t0+2}, v1, 3, 1
    v_lshl_add_u32 v{t0+1}, v{t0+2}, 1, v{t0+1}
    v_lshl_add_u32 v{t0}, v{t0+1}, 2, v{t0}
    v_bfe_u32 v{t0+2}, v1, 5, 1
    v_lshl_add_u32 v{t0}, v{t0+2}, 4, v{t0}
    v_lshlrev_b32 v{t0}, 7, v{t0}
    v_and_b32 v{t0+2}, 3, v1
    v_lshl_add_u32 v{t0}, v{t0+2}, 3, v{t0}
    v_add_u32 v{t0}, s40, v{t0}
    """)
    for c in range(4):
        g(f"v_xor_b32 v{t0+2}, {c}, v{t0+1}")
        g(f"v_lshl_add_u32 v{vtr+c}, v{t0+2}, 5, v{t0}")

def wide_issue(g, srdreg, sbase, f, buf, vpar):
    for i in range(8):
        if i % 4 == 0: g(f"s_add_u32 m0, s40, {buf*8192 + i*1024}")
        g(f"s_add_u32 s41, {sbase}, {(64*f+8*i)*8192 - (i&3)*1024}")
        g(f"buffer_load_dwordx4 v{vpar+(i&1)}, s[{srdreg}:{srdreg+3}], s41 offen offset:{(i&3)*1024} lds")

def wide_read(g, dst, buf, vtr):
    for c in range(4):
        k, b = dst(c)
        for hf in range(2):
            for u in range(2):
                g(f"ds_read_b64_tr_b16 {vr(b+4*hf+2*u,2,k)}, v{vtr+c} offset:{buf*8192+hf*4096+u*256}")

def run_ring(g, units, dbg=False):
    n = len(units)
    if dbg: g("s_memrealtime s[72:73]")
    for u in range(min(4, n)): units[u][0](u % 4)
    for u in range(n):
        g(f"s_waitcnt vmcnt({8*min(3, n-1-u)})")
        if dbg and u % 2 == 0: g(f"s_memrealtime s[{74+u}:{75+u}]")
        units[u][1](u % 4)
        g("s_waitcnt lgkmcnt(0)")
        if units[u][2]: units[u][2](u % 4)
        if u + 4 < n: units[u+4][0](u % 4)

def chk(g, r, n=4, t=11):
    L = []
    if n == 4:
        L.append(f"v_max3_u32 v{t}, v{r}, v{r+1}, v{r+2}")
        L.append(f"v_max_u32 v{t}, v{t}, v{r+3}")
    L.append(f"v_cmp_eq_u32 vcc, -1, v{t}")
    return L

def idx_reg(g, v, t):
    g(f"""
    v_and_b32 v{t}, 1, v1
    v_mov_b32 v{v}, 0x4444
    v_cmp_eq_u32 vcc, 1, v{t}
    v_mov_b32 v{t}, 0xeeee
    s_nop 0
    v_cndmask_b32 v{v}, v{v}, v{t}, vcc
    """)

def kv_flags(g, fail):
    top = g.lab("KF"); ok = g.lab("KFOK")
    g(f"""
    s_lshl_b32 s47, s45, 8
    s_add_u32 s47, s47, s46
    s_mov_b32 s44, 0
    v_mov_b32 v11, 0
    {top}:
    buffer_load_dwordx2 v[16:17], v11, s[4:7], s47 offen sc1
    s_waitcnt vmcnt(0)
    v_and_b32 v16, v16, v17
    s_nop 0
    v_readfirstlane_b32 s48, v16
    s_cmp_lg_u32 s48, 0
    s_cbranch_scc1 {ok}
    s_sleep 8
    s_add_u32 s44, s44, 1
    s_cmp_lt_u32 s44, {TMO}
    s_cbranch_scc1 {top}
    s_branch {fail}
    {ok}:
    """)

LKX, LVX, LIMG, LW = 0, 16384, 24576, 32768
AF = [0, 1, 2, 4, 5, 6, 8, 9]; VF = [10, 12, 13, 14]; LF = [3, 7, 11, 15]
def s_op(f, c):
    if f in AF: return ("a", AF.index(f)*32 + 8*c)
    if f in VF: return ("v", 128 + VF.index(f)*32 + 8*c)
    return ("v", 32 + 8*c)
M0R = 64
def gen_s(g, opt):
    F0 = opt.get("F0", 11)
    g("R_S:")
    g("s_setprio 3")
    srd(g, 8, A_WQ, 8*MB); srd(g, 12, A_WK, 8*MB)
    g(f"""
    s_lshl_b32 s40, s24, 15
    s_add_u32 s40, s40, {LW}
    s_lshl_b32 s42, s27, 8
    s_and_b32 s43, s24, 1
    s_lshl_b32 s43, s43, 7
    s_add_u32 s42, s42, s43
    s_waitcnt lgkmcnt(0)
    s_cmp_ge_u32 s24, 2
    s_cselect_b32 s8, s12, s8
    s_cselect_b32 s9, s13, s9
    """)
    wide_addrs(g, 2, 4, 8)
    g("v_lshlrev_b32 v12, 4, v1\nv_add_u32 v12, s40, v12")
    units = []
    for f in AF + VF + LF:
        def post(buf):
            for c in range(4):
                for q in range(2):
                    g(f"ds_write_b128 v12, {vr(32+8*c+4*q,4)} offset:{buf*8192+(2*c+q)*1024}")
            g("s_waitcnt lgkmcnt(0)")
        units.append((lambda buf, f=f: wide_issue(g, 8, "s42", f, buf, 2),
                      lambda buf, f=f: wide_read(g, lambda c: s_op(f, c), buf, 4),
                      post if f in LF else None))
    run_ring(g, units)
    idx_reg(g, 2, 11)
    g(f"""
    v_lshlrev_b32 v3, 4, v1
    v_mov_b32 v4, v12
    v_and_b32 v11, 15, v1
    v_lshrrev_b32 v16, 4, v1
    s_and_b32 s43, s24, 1
    s_lshl_b32 s43, s43, 11
    s_lshr_b32 s47, s24, 1
    s_lshl_b32 s47, s47, 4
    s_add_u32 s43, s43, s47
    s_add_u32 s43, s43, {LIMG}
    v_lshlrev_b32 v5, 5, v11
    v_lshl_add_u32 v5, v16, 2, v5
    v_add_u32 v5, s43, v5
    v_lshlrev_b32 v6, 3, v1
    v_add_u32 v6, {LIMG}, v6
    v_mov_b32 v7, v3
    s_lshl_b32 s43, s24, 11
    v_add_u32 v12, s43, v3
    s_lshl_b32 s43, s27, 11
    s_lshl_b32 s47, s24, 9
    s_add_u32 s43, s43, s47
    v_lshlrev_b32 v8, 4, v11
    v_and_b32 v17, 1, v16
    v_lshl_add_u32 v8, v17, 3, v8
    v_add_u32 v8, s43, v8
    v_add_u32 v8, {VM}, v8
    v_and_b32 v18, 7, v1
    v_lshlrev_b32 v10, 4, v18
    v_lshl_add_u32 v10, v16, 7, v10
    v_add_u32 v10, s43, v10
    v_add_u32 v10, {KM}, v10
    v_bfe_u32 v18, v1, 2, 1
    v_lshlrev_b32 v9, 15, v18
    v_and_b32 v18, 3, v1
    v_lshl_add_u32 v9, v18, 5, v9
    v_lshl_add_u32 v9, v17, 4, v9
    v_lshrrev_b32 v18, 5, v1
    v_lshl_add_u32 v9, v18, 7, v9
    s_lshl_b32 s43, s27, 10
    s_lshl_b32 s47, s24, 8
    s_add_u32 s43, s43, s47
    s_add_u32 s43, s43, {OM}
    v_add_u32 v9, s43, v9
    v_mov_b32 v18, {OOB}
    v_cmp_gt_u32 vcc, 8, v11
    v_mov_b32 v13, 0
    s_nop 0
    v_cndmask_b32 v9, v18, v9, vcc
    v_cndmask_b32 v10, v10, v18, vcc
    v_mov_b32 v18, {hex(f2u(-1e30))}
    v_cmp_gt_u32 vcc, 32, v1
    s_lshr_b32 s46, s27, 1
    s_lshl_b32 s46, s46, 4
    v_cndmask_b32 v13, v13, v18, vcc
    s_add_u32 s46, s46, {FLG+F_KVQ}
    s_lshl_b32 s49, s27, 13
    s_add_u32 s50, s49, {KX}
    s_add_u32 s51, s49, {VX}
    s_lshl_b32 s52, s24, 11
    s_add_u32 s53, s52, {LVX}
    s_mov_b32 s60, 0
    s_mov_b32 s61, {MEM}
    s_mov_b32 s65, 0
    s_mov_b32 s66, {hex(f2u(CEXP))}
    s_mov_b32 s67, -2
    s_mov_b32 s68, 0
    s_mov_b32 s45, 0
    """)
    stamp_init(g, opt, "s27")
    kv_flags(g, "S_END")
    def dma_k():
        g(f"""
        s_mov_b32 m0, s52
        s_xor_b32 s52, s52, 8192
        buffer_load_dwordx4 v12, s[4:7], s50 offen sc1 lds
        buffer_load_dwordx4 v12, s[4:7], s50 offen offset:1024 sc1 lds
        s_add_u32 s50, s50, 262144
        """)
    def dma_v():
        g(f"""
        s_mov_b32 m0, s53
        s_nop 0
        buffer_load_dwordx4 v12, s[4:7], s51 offen sc1 lds
        buffer_load_dwordx4 v12, s[4:7], s51 offen offset:1024 sc1 lds
        s_add_u32 s51, s51, 262144
        """)
    dma_k(); dma_k(); dma_v()
    g("s_waitcnt vmcnt(0)\ns_barrier")
    def tread(j):
        return [f"ds_read_b128 {vr(32+4*q,4)}, v4 offset:{j*8192+q*1024}" for q in range(8)]
    def ld(f): return f"buffer_load_dwordx4 {vr(M0R+4*f,4)}, v3, s[4:7], s{61+f//4} offen offset:{(f%4)*1024} sc1"
    g("S_LOOP:")
    g("""
    s_add_u32 s62, s61, 4096
    s_add_u32 s63, s61, 8192
    s_add_u32 s64, s61, 12288
    """)
    for x in tread(0): g(x)
    for i in range(16): g(f"v_mov_b32 v{16+i}, 0")
    delay(g, opt.get("dS", 0))
    stamp(g, opt, 0)
    for f in range(16): g(ld(f))
    R = [g.lab("SR") for f in range(16)]; C = [g.lab("SC") for f in range(16)]
    g("s_mov_b32 s44, 0")
    g("s_waitcnt vmcnt(15)")
    for x in chk(g, M0R): g(x)
    g(f"s_cbranch_vccnz {R[0]}")
    g(f"{C[0]}:")
    stamp(g, opt, 1)
    extra = {f: [] for f in range(16)}
    t1, t2, t3 = tread(1), tread(2), tread(3)
    extra[4] += t1[:4]; extra[5] += t1[4:]
    kx = [f"ds_read_b128 {vr(68+4*q,4)}, v7 offset:{LKX+q*1024}" for q in range(8)]
    extra[6] += kx[:4]; extra[7] += kx[4:6]
    extra[8] += t2[:4]; extra[9] += t2[4:]; extra[10] += kx[6:]
    extra[12] += t3[:4]; extra[13] += t3[4:]
    extra[11] += [f"ds_read_b128 {vr(100+4*t,4)}, v12 offset:{LVX+t*1024}" for t in range(2)]
    extra[14] += [f"v_mov_b32 v{108+i}, v13" for i in range(4)]
    vm = [f"buffer_load_dwordx2 {vr(64+2*t,2)}, v8, s[4:7], s65 offen offset:{256*t} sc1" for t in range(2)]
    extra[F0] = vm + extra[F0]
    for f in range(16):
        if f in LF: g("s_waitcnt lgkmcnt(0)")
        ex = list(extra[f])
        for c in range(4):
            k, b = s_op(f, c)
            g(f"{SMF} {vr(16+4*c,4)}, {vr(M0R+4*f,4)}, {vr(b,8,k)}, v2")
            if c < 2:
                for x in ex[2*c:2*c+2]: g(x)
            if c == 2 and f < 15:
                for x in ex[4:]: g(x)
                g(f"s_waitcnt vmcnt({14-f + (2 if f >= F0 else 0)})")
                for x in chk(g, M0R+4*(f+1))[:2]: g(x)
            if c == 3 and f < 15:
                g(chk(g, M0R+4*(f+1))[2])
                g(f"s_cbranch_vccnz {R[f+1]}")
                g(f"{C[f+1]}:")
    stamp(g, opt, 2)
    g("s_nop 4")
    for c in range(4):
        a = 16 + 4*c
        g(f"v_add_f32 v{a}, v{a}, v{a+1}")
        g(f"v_add_f32 v{a+2}, v{a+2}, v{a+3}")
        g(f"v_cvt_pk_bf16_f32 v{a}, v{a}, v{a+2}")
        if c % 2 == 1: g(f"ds_write2_b32 v5, v{a-4}, v{a} offset0:{(c-1)*128 % 256} offset1:{(c*128) % 256}" if c == 1 else
                         f"ds_write2st64_b32 v5, v{a-4}, v{a} offset0:4 offset1:6")
    g("s_waitcnt lgkmcnt(0)")
    g("s_barrier")
    for b in range(4):
        for j in range(2):
            g(f"ds_read_b64_tr_b16 {vr(32+4*b+2*j,2)}, v6 offset:{b*1024+j*512}")
    for i in range(4): g(f"v_mov_b32 v{112+i}, 0x3f803f80")
    stamp(g, opt, 3)
    g("s_cmp_eq_u32 s60, 63")
    g("s_cbranch_scc1 S_KM")
    for b in range(4):
        g(f"s_waitcnt lgkmcnt({6-2*b})")
        X = vr(32+4*b, 4)
        g(f"{MF32} v[48:51], {vr(68+4*b,4)}, {X}, {'0' if b == 0 else 'v[48:51]'}")
        g(f"{MF32} v[52:55], {vr(68+16+4*b,4)}, {X}, {'0' if b == 0 else 'v[52:55]'}")
        g(f"{MF32} v[56:59], {X}, {X}, {'v[108:111]' if b == 0 else 'v[56:59]'}")
    g(f"""
    s_nop 5
    v_max3_f32 v60, v48, v49, v50
    v_max3_f32 v60, v60, v51, v52
    v_max3_f32 v60, v60, v53, v54
    v_max3_f32 v61, v55, v56, v57
    v_max3_f32 v61, v61, v58, v59
    v_max_f32 v60, v60, v61
    v_max_f32 v61, v60, v61
    s_nop 1
    v_permlane32_swap_b32 v60, v61
    v_max_f32 v60, v60, v61
    v_max_f32 v61, v60, v61
    s_nop 1
    v_permlane16_swap_b32 v60, v61
    v_max_f32 v60, v60, v61
    v_mul_f32 v60, s66, v60
    """)
    for i in range(12): g(f"v_fma_f32 v{48+i}, v{48+i}, s66, -v60")
    for i in range(12): g(f"v_exp_f32 v{48+i}, v{48+i}")
    for i in range(4): g(f"v_cvt_pk_bf16_f32 v{60+i}, v{48+2*i}, v{49+2*i}")
    for i in range(2): g(f"v_cvt_pk_bf16_f32 v{116+i}, v{56+2*i}, v{57+2*i}")
    stamp(g, opt, 4)
    RV, CV = g.lab("SRV"), g.lab("SCV")
    g("s_nop 0")
    g(f"{MF32} v[24:27], v[112:115], v[60:63], 0")
    g(f"{MF32} v[16:19], v[100:103], v[60:63], 0")
    g("s_waitcnt vmcnt(0)")
    for x in chk(g, 64)[:2]: g(x)
    g(f"{MF32} v[20:23], v[104:107], v[60:63], 0")
    g(chk(g, 64)[2])
    g(f"{MF16} v[24:27], v[112:113], v[116:117], v[24:27]")
    g(f"s_cbranch_vccnz {RV}")
    g(f"{CV}:")
    stamp(g, opt, 5)
    g(f"{MF16} v[16:19], v[64:65], v[116:117], v[16:19]")
    g(f"{MF16} v[20:23], v[66:67], v[116:117], v[20:23]")
    g("s_nop 5")
    g("v_rcp_f32 v24, v24")
    g("s_nop 0")
    for i in range(8): g(f"v_mul_f32 v{16+i}, v{16+i}, v24")
    for i in range(4): g(f"v_cvt_pk_bf16_f32 v{28+i}, v{16+2*i}, v{17+2*i}")
    for i in range(4): g(f"v_min_u32 v{28+i}, s67, v{28+i}")
    g("buffer_store_dwordx4 v[28:31], v9, s[4:7], s65 offen sc1")
    stamp(g, opt, 6)
    g("S_KM:")
    g("s_waitcnt lgkmcnt(0)")
    done = g.lab("KMD")
    for b in range(4):
        nx = g.lab("KM")
        if b < 3: g(f"s_cmp_lg_u32 s24, {b}\ns_cbranch_scc1 {nx}")
        for i in range(4): g(f"v_min_u32 v{120+i}, s67, v{32+4*b+i}")
        if b < 3: g(f"s_branch {done}\n{nx}:")
    g(f"{done}:")
    g("buffer_store_dwordx4 v[120:123], v10, s[4:7], s65 offen sc1")
    stamp_dump(g, opt)
    nopf = g.lab("NP"); nofl = g.lab("NF")
    g(f"""
    s_cmp_eq_u32 s60, 63
    s_cbranch_scc1 S_END
    s_add_u32 s60, s60, 1
    s_add_u32 s61, s61, 16384
    s_add_u32 s65, s65, 65536
    v_xor_b32 v7, 8192, v7
    s_cmp_ge_u32 s60, 63
    s_cbranch_scc1 S_LOOP
    """)
    dma_v()
    g(f"""
    s_cmp_ge_u32 s60, 62
    s_cbranch_scc1 S_LOOP
    s_add_u32 s45, s60, 1
    s_and_b32 s47, s45, 7
    s_cmp_lg_u32 s47, 0
    s_cbranch_scc1 {nofl}
    s_lshr_b32 s45, s45, 3
    """)
    kv_flags(g, "S_END")
    g(f"{nofl}:")
    dma_k()
    g("s_branch S_LOOP")
    for f in range(16):
        g(f"{R[f]}:")
        g(f"s_add_u32 s68, s68, 1\ns_add_u32 s44, s44, 1\ns_cmp_gt_u32 s44, {TMO}\ns_cbranch_scc1 S_END")
        for k in range(f, 16): g(ld(k))
        g("s_waitcnt vmcnt(0)")
        for x in chk(g, M0R+4*f): g(x)
        g(f"s_cbranch_vccz {C[f]}\ns_branch {R[f]}")
    g(f"{RV}:")
    g(f"s_add_u32 s68, s68, 0x10000\ns_add_u32 s44, s44, 1\ns_cmp_gt_u32 s44, {TMO}\ns_cbranch_scc1 S_END")
    for x in vm: g(x)
    g("s_waitcnt vmcnt(0)")
    for x in chk(g, 64): g(x)
    g(f"s_cbranch_vccz {CV}\ns_branch {RV}")
    g("S_END:")
    g("s_endpgm")

RVB, ROB = 0, 16384
def gen_vo(g, opt):
    g("R_VO:")
    g("s_setprio 3")
    srd(g, 8, A_WO, 8*MB); srd(g, 12, A_WV, 8*MB)
    g(f"""
    s_sub_u32 s26, s25, 1
    s_lshl_b32 s40, s24, 15
    s_lshl_b32 s42, s24, 21
    s_lshl_b32 s43, s27, 6
    s_add_u32 s42, s42, s43
    s_lshl_b32 s49, s27, 8
    s_lshl_b32 s43, s26, 7
    s_add_u32 s49, s49, s43
    s_lshl_b32 s43, s24, 21
    s_add_u32 s49, s49, s43
    """)
    wide_addrs(g, 2, 4, 8)
    g("""
    v_bfe_u32 v8, v1, 4, 1
    v_lshlrev_b32 v8, 3, v8
    v_xor_b32 v8, v8, v1
    v_lshrrev_b32 v9, 2, v8
    v_lshlrev_b32 v9, 11, v9
    v_and_b32 v8, 3, v8
    v_lshl_add_u32 v12, v8, 4, v9
    v_xor_b32 v8, 2, v8
    v_lshl_add_u32 v13, v8, 4, v9
    v_lshrrev_b32 v8, 4, v1
    v_lshlrev_b32 v8, 10, v8
    v_bfe_u32 v9, v1, 3, 1
    v_lshl_add_u32 v8, v9, 8, v8
    v_bfe_u32 v10, v1, 2, 1
    v_lshl_add_u32 v8, v10, 6, v8
    v_and_b32 v10, 3, v1
    v_lshl_add_u32 v8, v10, 3, v8
    v_add_u32 v8, s40, v8
    v_bfe_u32 v10, v1, 4, 1
    v_lshlrev_b32 v10, 5, v10
    v_lshl_add_u32 v9, v9, 7, v10
    """)
    for u in range(2):
        for t in range(2):
            g(f"v_xor_b32 v10, {128*u+32*t}, v9")
            g(f"v_add_u32 v{14+2*u+t}, v8, v10")
    g("s_waitcnt lgkmcnt(0)")
    units = []
    def o_issue(hh, buf):
        for i in range(8):
            if i % 4 == 0: g(f"s_add_u32 m0, s40, {buf*8192 + i*1024}")
            g(f"s_add_u32 s41, s42, {hh*262144 + i*32768 - (i&3)*1024}")
            g(f"buffer_load_dwordx4 v{12+(i&1)}, s[8:11], s41 offen offset:{(i&3)*1024} lds")
    def o_read(hh, buf):
        for odd in range(2):
            for t in range(2):
                b = ((hh*2+odd)*2+t)*8
                for hf in range(2):
                    for u in range(2):
                        g(f"ds_read_b64_tr_b16 {ar(b+4*hf+2*u,2)}, v{14+2*u+t} offset:{buf*8192+hf*4096+odd*512}")
    for ff in range(4):
        units.append((lambda buf, ff=ff: wide_issue(g, 12, "s49", ff, buf, 2),
                      lambda buf, ff=ff: wide_read(g, lambda c: ("v", 128+(ff*4+c)*8), buf, 4), None))
    for hh in range(8):
        units.append((lambda buf, hh=hh: o_issue(hh, buf), lambda buf, hh=hh: o_read(hh, buf), None))
    run_ring(g, units)
    g("s_barrier")
    idx_reg(g, 2, 11)
    g(f"""
    v_lshlrev_b32 v3, 4, v1
    s_lshl_b32 s43, s24, 12
    v_add_u32 v4, s43, v3
    v_add_u32 v4, {MEM}, v4
    s_lshl_b32 s43, s24, 13
    s_lshl_b32 s47, s26, 15
    s_add_u32 s43, s43, s47
    s_add_u32 s43, s43, {OM}
    v_add_u32 v5, s43, v3
    v_add_u32 v12, 4096, v5
    v_lshrrev_b32 v16, 5, v1
    v_lshlrev_b32 v6, 3, v1
    v_lshl_add_u32 v6, v16, 6, v6
    s_mul_i32 s43, s24, 2560
    v_add_u32 v6, s43, v6
    v_lshrrev_b32 v17, 2, v1
    v_and_b32 v18, 3, v1
    v_lshlrev_b32 v7, 3, v17
    v_lshl_add_u32 v7, v18, 7, v7
    v_lshrrev_b32 v19, 1, v18
    v_lshl_add_u32 v7, v19, 6, v7
    s_mul_i32 s43, s24, 640
    v_add_u32 v7, s43, v7
    s_lshl_b32 s43, s27, 11
    s_lshl_b32 s47, s26, 10
    s_add_u32 s43, s43, s47
    s_lshl_b32 s47, s24, 8
    s_add_u32 s43, s43, s47
    s_add_u32 s43, s43, {VM}
    v_lshlrev_b32 v8, 4, v17
    v_add_u32 v8, s43, v8
    v_and_b32 v19, 15, v1
    v_lshlrev_b32 v9, 2, v19
    v_bfe_u32 v20, v1, 4, 1
    v_lshl_add_u32 v9, v20, 8, v9
    v_lshl_add_u32 v9, v16, 9, v9
    s_lshl_b32 s43, s24, 10
    s_add_u32 s43, s43, {ROB}
    v_add_u32 v9, s43, v9
    v_lshlrev_b32 v10, 3, v1
    v_add_u32 v10, {ROB}, v10
    v_lshrrev_b32 v20, 4, v1
    v_lshlrev_b32 v13, 5, v20
    v_bfe_u32 v20, v1, 2, 1
    v_lshl_add_u32 v13, v20, 4, v13
    v_bfe_u32 v20, v1, 3, 1
    v_lshl_add_u32 v13, v20, 8, v13
    s_lshl_b32 s43, s27, 9
    s_lshl_b32 s47, s26, 7
    s_add_u32 s43, s43, s47
    s_add_u32 s43, s43, {MEM+16384}
    v_add_u32 v13, s43, v13
    v_mov_b32 v20, {OOB}
    v_cmp_eq_u32 vcc, 0, v18
    s_mov_b32 s60, 0
    s_mov_b32 s61, 0
    v_cndmask_b32 v8, v20, v8, vcc
    v_cndmask_b32 v13, v20, v13, vcc
    s_mov_b32 s65, 0
    s_mov_b32 s67, -2
    s_mov_b32 s68, 0
    """)
    g("s_lshl_b32 s43, s25, 5\ns_add_u32 s43, s43, s27")
    stamp_init(g, opt, "s43")
    def ldm(f): return f"buffer_load_dwordx4 {vr(16+4*f,4)}, v4, s[4:7], s61 offen offset:{f*1024} sc1"
    def ldo(f): return f"buffer_load_dwordx4 {vr(32+4*f,4)}, v{5 if f < 4 else 12}, s[4:7], s65 offen offset:{(f%4)*1024} sc1"
    def gather4(dst):
        g("s_nop 1")
        for q in range(1, 4):
            g(f"v_mov_b32_dpp v{dst+q}, v{dst} quad_perm:[{q},{q},{q},{q}] row_mask:0xf bank_mask:0xf")
    g("V_LOOP:")
    for i in range(32): g(f"v_mov_b32 v{64+i}, 0")
    delay(g, opt.get("dV", 0))
    stamp(g, opt, 0)
    for f in range(4): g(ldm(f))
    R = [g.lab("VR") for f in range(4)]; C = [g.lab("VC") for f in range(4)]
    g("s_mov_b32 s44, 0")
    g("s_waitcnt vmcnt(3)")
    for x in chk(g, 16): g(x)
    g(f"s_cbranch_vccnz {R[0]}\n{C[0]}:")
    for f in range(4):
        for c in range(4):
            g(f"{SMF} {vr(64+4*c,4)}, {vr(16+4*f,4)}, {vr(128+(f*4+c)*8,8)}, v2")
            if c == 2 and f < 3:
                g(f"s_waitcnt vmcnt({2-f})")
                for x in chk(g, 16+4*(f+1))[:2]: g(x)
            if c == 3 and f < 3:
                g(chk(g, 16+4*(f+1))[2])
                g(f"s_cbranch_vccnz {R[f+1]}\n{C[f+1]}:")
    stamp(g, opt, 1)
    g("s_nop 4")
    for c in range(4):
        a = 64 + 4*c
        g(f"v_add_f32 v{a}, v{a}, v{a+1}")
        g(f"v_add_f32 v{a+1}, v{a+2}, v{a+3}")
        g(f"ds_write_b64 v6, {vr(a,2)} offset:{RVB+640*c}")
    g("s_waitcnt lgkmcnt(0)\ns_barrier")
    for w in range(4): g(f"ds_read_b64 {vr(96+2*w,2)}, v7 offset:{RVB+2560*w}")
    g("""
    s_waitcnt lgkmcnt(2)
    v_pk_add_f32 v[96:97], v[96:97], v[98:99]
    s_waitcnt lgkmcnt(0)
    v_pk_add_f32 v[100:101], v[100:101], v[102:103]
    v_pk_add_f32 v[96:97], v[96:97], v[100:101]
    v_cvt_pk_bf16_f32 v104, v96, v97
    v_min_u32 v104, s67, v104
    """)
    gather4(104)
    g("buffer_store_dwordx4 v[104:107], v8, s[4:7], s65 offen sc1")
    stamp(g, opt, 2)
    g("s_cmp_eq_u32 s60, 63\ns_cbranch_scc1 V_END")
    delay(g, opt.get("dO", 0))
    stamp(g, opt, 3)
    for f in range(8): g(ldo(f))
    RO = [g.lab("OR") for f in range(8)]; CO = [g.lab("OC") for f in range(8)]
    g("s_mov_b32 s44, 0")
    g("s_waitcnt vmcnt(7)")
    for x in chk(g, 32): g(x)
    g(f"s_cbranch_vccnz {RO[0]}\n{CO[0]}:")
    stamp(g, opt, 4)
    for f in range(8):
        for c in range(4):
            g(f"{SMF} {vr(80+4*c,4)}, {vr(32+4*f,4)}, {ar((f*4+c)*8,8)}, v2")
            if c == 2 and f < 7:
                g(f"s_waitcnt vmcnt({6-f})")
                for x in chk(g, 32+4*(f+1))[:2]: g(x)
            if c == 3 and f < 7:
                g(chk(g, 32+4*(f+1))[2])
                g(f"s_cbranch_vccnz {RO[f+1]}\n{CO[f+1]}:")
    stamp(g, opt, 5)
    g("""
    s_mov_b32 exec_hi, 0
    s_nop 4
    v_add_f32 v96, v80, v81
    v_add_f32 v98, v82, v83
    v_add_f32 v97, v84, v85
    v_add_f32 v99, v86, v87
    s_not_b64 exec, exec
    v_add_f32 v96, v88, v89
    v_add_f32 v98, v90, v91
    v_add_f32 v97, v92, v93
    v_add_f32 v99, v94, v95
    s_mov_b64 exec, -1
    ds_write2_b32 v9, v96, v97 offset0:0 offset1:16
    ds_write2_b32 v9, v98, v99 offset0:32 offset1:48
    s_waitcnt lgkmcnt(0)
    s_barrier
    s_cmp_lg_u32 s24, 0
    s_cbranch_scc1 V_NEXT
    """)
    for k in range(8): g(f"ds_read_b64 {vr(96+2*k,2)}, v10 offset:{512*k}")
    g("""
    s_waitcnt lgkmcnt(6)
    v_pk_add_f32 v[96:97], v[96:97], v[98:99]
    s_waitcnt lgkmcnt(4)
    v_pk_add_f32 v[100:101], v[100:101], v[102:103]
    s_waitcnt lgkmcnt(2)
    v_pk_add_f32 v[104:105], v[104:105], v[106:107]
    v_pk_add_f32 v[96:97], v[96:97], v[100:101]
    s_waitcnt lgkmcnt(0)
    v_pk_add_f32 v[108:109], v[108:109], v[110:111]
    v_pk_add_f32 v[96:97], v[96:97], v[104:105]
    v_pk_add_f32 v[96:97], v[96:97], v[108:109]
    v_cvt_pk_bf16_f32 v112, v96, v97
    v_min_u32 v112, s67, v112
    """)
    gather4(112)
    g("buffer_store_dwordx4 v[112:115], v13, s[4:7], s61 offen sc1")
    g("V_NEXT:")
    stamp(g, opt, 6)
    stamp_dump(g, opt)
    g("""
    s_add_u32 s60, s60, 1
    s_add_u32 s61, s61, 16384
    s_add_u32 s65, s65, 65536
    s_branch V_LOOP
    """)
    for (RR, CC, n, ldf, base, inc) in ((R, C, 4, ldm, 16, 1), (RO, CO, 8, ldo, 32, 0x10000)):
        for f in range(n):
            g(f"{RR[f]}:")
            g(f"s_add_u32 s68, s68, {inc}\ns_add_u32 s44, s44, 1\ns_cmp_gt_u32 s44, {TMO}\ns_cbranch_scc1 V_END")
            for k in range(f, n): g(ldf(k))
            g("s_waitcnt vmcnt(0)")
            for x in chk(g, base+4*f): g(x)
            g(f"s_cbranch_vccz {CC[f]}\ns_branch {RR[f]}")
    g("V_END:")
    g("s_endpgm")
```

```python
NAME = "recurrent_scan__memory_aug_recurrent_mem_tr__dense_activation_gelu__prompt"
MB = 1 << 20
XN   = 0
HB   = 4 * MB
GB   = 18 * MB
QX   = 24 * MB
KX   = 40 * MB
VX   = 56 * MB
OX   = 72 * MB
REC  = 88 * MB
RECB = 344064
OM, VM, MEM, CAN = 0, 131072, 262144, 294912
CALB = 6 * RECB
PAR  = REC + 2*MB - 4096
KM   = 110 * MB
FLG  = 114 * MB
def sp(o): return (o & 8191) | ((o >> 13) << 14)
def rec(s): return REC + (s//6)*2*MB + (s%6)*RECB
WS_BYTES = 256 * MB
F_CLS  = 0
F_Q    = 2048
F_KVQ  = 4096
F_H    = 8192
F_G    = 12288
F_O    = 16384
F_END  = 81920
A_X, A_MEM0, A_WQ, A_WK, A_WV, A_WO, A_W1, A_B1, A_W2, A_B2, A_OUT, A_DBG, A_WS = 0, 8, 16, 24, 32, 40, 64, 72, 80, 88, 96, 104, 112
OOB = 0x80000000

class G:
    def __init__(s):
        s.l = []; s.n = 0
    def __call__(s, x):
        for line in x.strip("\n").split("\n"):
            line = line.strip()
            if line: s.l.append(line)
    def lab(s, p="L"):
        s.n += 1; return f"{p}_{s.n}"
    def text(s): return "\n".join(s.l) + "\n"

def vr(a, n=1, k="v"):
    return f"{k}{a}" if n == 1 else f"{k}[{a}:{a+n-1}]"
def ar(a, n=1): return vr(a, n, "a")
def sr(a, n=1): return vr(a, n, "s")

def srd(g, s, karg, nbytes):
    g(f"s_load_dwordx2 s[{s}:{s+1}], s[0:1], {karg}")
    g(f"s_mov_b32 s{s+2}, {nbytes}")
    g(f"s_mov_b32 s{s+3}, 0x20000")

def weave(g, main, fill):
    for x in fill.get(-1, []): g(x)
    for i, m in enumerate(main):
        g(m)
        for x in fill.get(i, []): g(x)

def kdesc(name, vgpr, accum, sgpr=102):
    return f""".amdhsa_kernel {name}
  .amdhsa_next_free_vgpr {vgpr}
  .amdhsa_next_free_sgpr {sgpr}
  .amdhsa_accum_offset {accum}
  .amdhsa_group_segment_fixed_size 0
  .amdhsa_kernarg_size 120
  .amdhsa_user_sgpr_count 2
  .amdhsa_user_sgpr_kernarg_segment_ptr 1
  .amdhsa_system_sgpr_workgroup_id_x 1
.end_amdhsa_kernel
"""

def mark(g, opt, k):
    if not opt.get("marks"): return
    sk = g.lab("MK"); ta = 20 if k == 3 else 250
    g(f"""
    s_cmp_lg_u32 s24, 0
    s_cbranch_scc1 {sk}
    s_memrealtime s[90:91]
    s_lshl_b32 s92, s20, 5
    s_add_u32 s92, s92, s21
    s_lshl_b32 s92, s92, 2
    s_add_u32 s92, s92, {FLG+MB+0xC0000 + k*1024}
    s_waitcnt lgkmcnt(0)
    v_mov_b32 v{ta}, s90
    v_mov_b32 v{ta+1}, 0
    s_mov_b64 exec, 1
    buffer_store_dword v{ta}, v{ta+1}, s[4:7], s92 offen
    s_mov_b64 exec, -1
    {sk}:
    """)

def par_init(g, opt, t0):
    g(f"""
    v_lshlrev_b32 v{t0}, 4, v1
    s_mov_b32 s86, {PAR+8}
    buffer_load_dword v{t0+1}, v{t0}, s[4:7], s86 offen sc1
    s_waitcnt vmcnt(0)
    v_cmp_ne_u32 s[86:87], 0, v{t0+1}
    s_nop 3
    """)

def rec_next(g, base, cnt, t):
    g(f"""
    s_add_u32 {cnt}, {cnt}, 1
    s_cmp_eq_u32 {cnt}, 6
    s_cselect_b32 {t}, {2*MB - 6*RECB}, 0
    s_cselect_b32 {cnt}, 0, {cnt}
    s_add_u32 {base}, {base}, {t}
    s_add_u32 {base}, {base}, {RECB}
    """)

def rec_at(g, a, base, step):
    g(f"""
    s_bitcmp1_b64 s[86:87], {step}
    s_cselect_b32 {a}, 8192, 0
    s_add_u32 {a}, {a}, {base}
    """)

def sp_s(g, dst, src, shift, t):
    n = 13 - shift
    g(f"""
    s_lshr_b32 {t}, {src}, {n}
    s_lshl_b32 {t}, {t}, 14
    s_and_b32 {dst}, {src}, {(1 << n) - 1}
    s_lshl_b32 {dst}, {dst}, {shift}
    s_or_b32 {dst}, {dst}, {t}
    """)

def tmark(g, opt, k):
    if not opt.get("marks"): return
    sk = g.lab("MK")
    g(f"""
    s_cmp_lg_u32 s24, 0
    s_cbranch_scc1 {sk}
    s_memrealtime s[90:91]
    s_memtime s[94:95]
    s_lshl_b32 s92, s20, 8
    s_add_u32 s92, s92, s19
    s_lshl_b32 s92, s92, 5
    s_add_u32 s92, s92, {FLG+MB+0xD0000 + k*4}
    s_waitcnt lgkmcnt(0)
    v_mov_b32 v250, s90
    v_mov_b32 v251, 0
    s_mov_b64 exec, 1
    buffer_store_dword v250, v251, s[4:7], s92 offen
    v_mov_b32 v250, s94
    buffer_store_dword v250, v251, s[4:7], s92 offen offset:16
    s_mov_b64 exec, -1
    {sk}:
    """)

def can_regs(g, opt, hop_in, hop_out, vin, vout, sprod, wave, voob, t):
    def spv(d, lin):
        g(f"""
        v_and_b32 v{t}, 0xe000, v{lin}
        v_add3_u32 v{d}, v{lin}, v{t}, s43
        """)
    g(f"""
    v_lshrrev_b32 v{t}, 2, v1
    v_and_b32 v{vin}, 3, v1
    v_lshlrev_b32 v{vin}, 2, v{vin}
    v_lshl_add_u32 v{vin}, v{t}, 10, v{vin}
    v_add_u32 v{vin}, {16384*hop_in}, v{vin}
    s_mov_b32 s43, {CAN}
    v_cmp_gt_u32 vcc, {64 if hop_in == 0 else 32}, v1
    """)
    spv(vin, vin)
    g(f"""
    v_cndmask_b32 v{vin}, v{voob}, v{vin}, vcc
    s_lshr_b32 s48, {sprod}, 2
    s_lshl_b32 s48, s48, 10
    s_and_b32 s47, {sprod}, 3
    s_lshl_b32 s47, s47, 2
    s_add_u32 s48, s48, s47
    s_add_u32 s48, s48, {16384*hop_out}
    v_and_b32 v{vout}, 7, v1
    v_lshlrev_b32 v{vout}, 7, v{vout}
    v_add_u32 v{vout}, s48, v{vout}
    """)
    spv(vout, vout)
    g(f"""
    s_cmp_eq_u32 s24, {wave}
    s_cselect_b32 s47, 8, 0
    v_cmp_gt_u32 vcc, s47, v1
    s_nop 1
    v_cndmask_b32 v{vout}, v{voob}, v{vout}, vcc
    """)
```

```python
from common import *
TIMEOUT = 40000
VWA, VXA, VWG, VXG = 2, 10, 11, 15
SETW = [64, 128]; SETX = [96, 160]

def acc(tn, tm): return (tn * 8 + tm) * 4

def dma_stage(slot):
    L = []
    L.append(f"s_add_u32 m0, s32, {slot*16384}")
    for i in range(4):
        L.append(f"buffer_load_dwordx4 v{VWG+i}, s[8:11], s30 offen offset:{1024*i} lds")
    L.append(f"s_add_u32 m0, s33, {slot*16384}")
    for i in range(4):
        L.append(f"buffer_load_dwordx4 v{VXG}, s[4:7], s31 offen offset:{1024*i} sc1 lds")
    return L

def reads_stage(slot, p):
    L = []
    for tm in range(8):
        L.append(f"ds_read_b128 {vr(SETX[p]+4*tm,4)}, v{VXA} offset:{slot*16384+tm*1024}")
    for tn in range(8):
        for j in range(2):
            L.append(f"ds_read_b64_tr_b16 {vr(SETW[p]+4*tn+2*j,2)}, v{VWA+tn} offset:{slot*16384+j*8192}")
    return L

def step(g, k4, swap, ldw, dma=True, reads=True, vm=8):
    p = k4 & 1
    M = []
    for tn in range(8):
        for tm in range(8):
            a, b = vr(SETW[p]+4*tn, 4), vr(SETX[p]+4*tm, 4)
            if swap: a, b = b, a
            M.append(f"v_mfma_f32_16x16x32_bf16 {ar(acc(tn,tm),4)}, {a}, {b}, {ar(acc(tn,tm),4)}")
    F = {-1: ["s_waitcnt lgkmcnt(0)"]}
    def add(i, x): F.setdefault(i, []).append(x)
    if reads:
        add(1, f"s_waitcnt vmcnt({vm})"); add(1, "s_barrier")
        for i, x in enumerate(reads_stage((k4+1) & 3, p ^ 1)): add(2 + i, x)
    if dma:
        D = dma_stage((k4+3) & 3)
        pos = [27, 28, 32, 36, 40, 43, 44, 48, 52, 56]
        for x, i in zip(D, pos): add(i, x)
        add(58, f"s_add_u32 s30, s30, {32*ldw}")
        add(59, "s_add_u32 s31, s31, 16384")
    weave(g, M, F)

def act_gelu(g, regs):
    n = len(regs)
    T = [224 + i for i in range(n)]
    for i, r in enumerate(regs): g(f"v_mul_f32 v{T[i]}, v{r}, v{r}")
    for i, r in enumerate(regs): g(f"v_fma_f32 v{T[i]}, v{T[i]}, s40, v60")
    for i, r in enumerate(regs): g(f"v_mul_f32 v{T[i]}, v{T[i]}, v{r}")
    for i, r in enumerate(regs): g(f"v_exp_f32 v{T[i]}, v{T[i]}")
    for i, r in enumerate(regs): g(f"v_add_f32 v{T[i]}, 1.0, v{T[i]}")
    for i, r in enumerate(regs): g(f"v_rcp_f32 v{T[i]}, v{T[i]}")
    for i, r in enumerate(regs): g(f"v_mul_f32 v{r}, v{r}, v{T[i]}")

def act_silu(g, regs):
    n = len(regs)
    T = [224 + i for i in range(n)]
    for i, r in enumerate(regs): g(f"v_mul_f32 v{T[i]}, s40, v{r}")
    for i, r in enumerate(regs): g(f"v_exp_f32 v{T[i]}, v{T[i]}")
    for i, r in enumerate(regs): g(f"v_add_f32 v{T[i]}, 1.0, v{T[i]}")
    for i, r in enumerate(regs): g(f"v_rcp_f32 v{T[i]}, v{T[i]}")
    for i, r in enumerate(regs): g(f"v_mul_f32 v{r}, v{r}, v{T[i]}")

import struct
def f2u(x): return struct.unpack("<I", struct.pack("<f", x))[0]

def piece(g, cnt, a0, a1, act, soff, imm):
    base = 64 + (cnt % 4) * 16
    regs = [base + i for i in range(8)]
    for i in range(4): g(f"v_accvgpr_read_b32 v{base+i}, a{a0+i}")
    for i in range(4): g(f"v_accvgpr_read_b32 v{base+4+i}, a{a1+i}")
    if act: act(g, regs)
    for i in range(4): g(f"v_cvt_pk_bf16_f32 v{base+8+i}, v{base+2*i}, v{base+2*i+1}")
    g(f"buffer_store_dwordx4 {vr(base+8,4)}, v61, s[4:7], {soff} offen offset:{imm} sc1")

def poll_flags(g, nflags, soff_sreg, fail):
    top = g.lab("PF"); ok = g.lab("PFOK")
    g(f"""
    v_lshlrev_b32 v62, 2, v1
    v_cmp_gt_u32 vcc, {nflags}, v1
    v_mov_b32 v63, {OOB}
    s_nop 0
    v_cndmask_b32 v62, v63, v62, vcc
    s_mov_b64 s[42:43], vcc
    s_mov_b32 s44, 0
    {top}:
    buffer_load_dword v63, v62, s[4:7], {soff_sreg} offen sc1
    s_waitcnt vmcnt(0)
    v_cmp_ne_u32 vcc, 0, v63
    s_cmp_eq_u64 vcc, s[42:43]
    s_cbranch_scc1 {ok}
    s_sleep 8
    s_add_u32 s44, s44, 1
    s_cmp_lt_u32 s44, {TIMEOUT}
    s_cbranch_scc1 {top}
    s_branch {fail}
    {ok}:
    """)

CFG = {
    "Q":  (A_WQ, 1024, 8192, XN, 32, None),
    "K":  (A_WK, 1024, 8192, XN, 32, None),
    "V":  (A_WV, 1024, 8192, XN, 32, None),
    "F1": (A_W1, 1024, 7168, XN, 32, (A_B1, 7168)),
    "F2": (A_W2, 3584, 2048, HB, 112, (A_B2, 2048)),
}

def gen_gemm(g, typ, ret, fail, opt):
    karg, K, ldw, xbase, KB, bias = CFG[typ]
    swap = typ == "V"
    nst = K // 32
    g(f"T_{typ}:")
    srd(g, 8, karg, K * ldw)
    if bias: srd(g, 12, bias[0], bias[1])
    g(f"""
    s_lshl_b32 s30, s29, 9
    s_mul_i32 s31, s28, {KB*16384}
    s_add_u32 s31, s31, {xbase}
    s_lshl_b32 s32, s24, 12
    s_add_u32 s33, s32, 65536
    s_lshr_b32 s34, s24, 1
    s_and_b32 s35, s24, 1
    v_lshrrev_b32 v16, 5, v1
    v_and_b32 v17, 31, v1
    v_lshlrev_b32 v18, 1, v16
    v_xor_b32 v17, v17, v18
    s_lshl_b32 s36, s24, 3
    v_add_u32 v16, s36, v16
    s_mov_b32 s36, {ldw}
    v_mul_lo_u32 v16, v16, s36
    """)
    for i in range(4):
        g(f"v_xor_b32 v18, {4*i}, v17")
        g(f"v_lshl_add_u32 v18, v18, 4, v16")
        g(f"v_add_u32 v{VWG+i}, {2*i*ldw - 1024*i}, v18")
    g(f"""
    v_lshlrev_b32 v61, 4, v1
    v_add_u32 v{VXG}, s32, v61
    s_lshl_b32 s36, s34, 13
    s_add_u32 s36, s36, 65536
    v_add_u32 v{VXA}, s36, v61
    v_lshrrev_b32 v16, 2, v1
    v_and_b32 v17, 7, v16
    v_lshlrev_b32 v17, 1, v17
    v_lshlrev_b32 v16, 9, v16
    v_and_b32 v18, 3, v1
    v_lshl_add_u32 v16, v18, 3, v16
    s_lshl_b32 s36, s35, 8
    v_add_u32 v16, s36, v16
    """)
    for t in range(8):
        g(f"v_xor_b32 v18, {2*t}, v17")
        g(f"v_lshl_add_u32 v{VWA+t}, v18, 4, v16")
    if typ == "F2":
        g(f"s_lshl_b32 s36, s28, 7")
        g(f"s_add_u32 s36, s36, {FLG+F_H}")
        poll_flags(g, 14, "s36", fail)
    g("s_waitcnt lgkmcnt(0)")
    for i in range(16, 56): g(f"v_mov_b32 v{i}, 0")
    if bias:
        g(f"""
        v_and_b32 v56, 15, v1
        v_lshlrev_b32 v56, 1, v56
        s_lshl_b32 s36, s35, 8
        v_add_u32 v56, s36, v56
        v_mov_b32 v57, {OOB}
        v_cmp_gt_u32 vcc, 16, v1
        v_mov_b32 v48, 0x3f803f80
        s_nop 0
        v_cndmask_b32 v56, v57, v56, vcc
        """)
        for tn in range(8):
            g(f"buffer_load_ushort v{16+4*tn}, v56, s[12:15], s30 offen offset:{32*tn}")
    for s in range(3):
        D = dma_stage(s)
        for x in D:
            g(x)
            if x.startswith("s_add_u32 m0"): g("s_nop 0")
        g(f"s_add_u32 s30, s30, {32*ldw}")
        g("s_add_u32 s31, s31, 16384")
    if bias: g("s_waitcnt vmcnt(24)")
    for tn in range(8):
        for tm in range(8):
            g(f"v_mfma_f32_16x16x32_bf16 {ar(acc(tn,tm),4)}, {vr(16+4*tn,4)}, v[48:51], 0")
    g("s_waitcnt vmcnt(16)")
    g("s_barrier")
    if opt.get("marks"): tmark(g, opt, 1); g("s_waitcnt vmcnt(0)")
    for x in reads_stage(0, 0): g(x)
    loop = g.lab("GL")
    g(f"s_mov_b32 s37, {nst//4 - 1}")
    g(f"{loop}:")
    for k4 in range(4): step(g, k4, swap, ldw)
    g(f"""
    s_sub_u32 s37, s37, 1
    s_cmp_lg_u32 s37, 0
    s_cbranch_scc1 {loop}
    """)
    step(g, 0, swap, ldw)
    step(g, 1, swap, ldw, dma=False, vm=8)
    step(g, 2, swap, ldw, dma=False, vm=0)
    step(g, 3, swap, ldw, dma=False, reads=False)
    g("s_nop 7")
    tmark(g, opt, 2)
    cnt = 0
    if typ in ("Q", "K"):
        base = QX if typ == "Q" else KX
        g(f"""
        s_lshl_b32 s36, s28, 21
        s_lshl_b32 s37, s34, 20
        s_add_u32 s36, s36, s37
        s_lshl_b32 s37, s29, 14
        s_add_u32 s36, s36, s37
        s_lshl_b32 s37, s35, 13
        s_add_u32 s36, s36, s37
        s_add_u32 s36, s36, {base}
        """)
        for tm in range(8):
            g(f"s_add_u32 s38, s36, {(tm>>1)*262144 + (tm&1)*4096}")
            for nb in range(4):
                piece(g, cnt, acc(2*nb, tm), acc(2*nb+1, tm), None, "s38", nb*1024); cnt += 1
        foff = 0 if typ == "K" else 8
        g(f"s_lshl_b32 s36, s28, 8\ns_lshl_b32 s37, s29, 4\ns_add_u32 s36, s36, s37\ns_add_u32 s36, s36, {FLG+F_KVQ+foff}")
    elif typ == "V":
        g(f"""
        s_lshl_b32 s36, s28, 21
        s_lshl_b32 s37, s34, 20
        s_add_u32 s36, s36, s37
        s_lshl_b32 s37, s29, 14
        s_add_u32 s36, s36, s37
        s_lshl_b32 s37, s35, 13
        s_add_u32 s36, s36, s37
        s_add_u32 s36, s36, {VX}
        """)
        for j in range(4):
            for tn in range(8):
                if tn % 4 == 0: g(f"s_add_u32 s38, s36, {j*262144 + (tn>>2)*4096}")
                piece(g, cnt, acc(tn, 2*j), acc(tn, 2*j+1), None, "s38", (tn & 3)*1024); cnt += 1
        g(f"s_lshl_b32 s36, s28, 8\ns_lshl_b32 s37, s29, 4\ns_add_u32 s36, s36, s37\ns_add_u32 s36, s36, {FLG+F_KVQ+4}")
    elif typ == "F1":
        k1 = 2 * 0.7978845608028654 * 1.4426950408889634
        g(f"""
        s_mov_b32 s40, {hex(f2u(-k1*0.044715))}
        v_mov_b32 v60, {hex(f2u(-k1))}
        s_mul_i32 s36, s28, 112
        s_lshl_b32 s37, s29, 3
        s_add_u32 s36, s36, s37
        s_lshl_b32 s37, s35, 2
        s_add_u32 s36, s36, s37
        s_lshl_b32 s36, s36, 14
        s_lshl_b32 s37, s34, 13
        s_add_u32 s36, s36, s37
        s_add_u32 s36, s36, {HB}
        """)
        for nb in range(4):
            for tm in range(8):
                if tm % 4 == 0: g(f"s_add_u32 s38, s36, {nb*16384 + (tm>>2)*4096}")
                piece(g, cnt, acc(2*nb, tm), acc(2*nb+1, tm), act_gelu, "s38", (tm & 3)*1024); cnt += 1
        g(f"s_lshl_b32 s36, s28, 7\ns_lshl_b32 s37, s29, 2\ns_add_u32 s36, s36, s37\ns_add_u32 s36, s36, {FLG+F_H}")
    else:
        g(f"""
        s_mov_b32 s40, {hex(f2u(-1.4426950408889634))}
        s_lshl_b32 s36, s28, 19
        s_lshl_b32 s37, s34, 18
        s_add_u32 s36, s36, s37
        s_lshl_b32 s37, s29, 13
        s_add_u32 s36, s36, s37
        s_lshl_b32 s37, s35, 12
        s_add_u32 s36, s36, s37
        s_add_u32 s36, s36, {GB}
        """)
        for tm in range(8):
            g(f"s_add_u32 s38, s36, {tm*32768}")
            for nb in range(4):
                piece(g, cnt, acc(2*nb, tm), acc(2*nb+1, tm), act_silu, "s38", nb*1024); cnt += 1
        g(f"s_lshl_b32 s36, s28, 7\ns_lshl_b32 s37, s29, 2\ns_add_u32 s36, s36, s37\ns_add_u32 s36, s36, {FLG+F_G}")
    g("s_waitcnt vmcnt(0)")
    tmark(g, opt, 3)
    g(f"""
    s_barrier
    s_cmp_lg_u32 s24, 0
    s_cbranch_scc1 {ret}
    v_mov_b32 v16, 1
    v_mov_b32 v17, 0
    s_mov_b64 exec, 1
    buffer_store_dword v16, v17, s[4:7], s36 offen sc1
    s_mov_b64 exec, -1
    s_branch {ret}
    """)


def gen_gemm64(g, typ, ret, opt):
    karg = A_WK if typ == "K" else A_WV
    ldw = 8192; swap = typ == "V"; NS = 8; XB = 131072
    VWB = 40
    SW = [64, 128]; SX = [96, 160]
    def acc2(tn, tm): return (tn * 2 + tm) * 4
    def dma(slot):
        L = [f"s_add_u32 m0, s32, {slot*16384}"]
        L += [f"buffer_load_dwordx4 v{VWG+i}, s[8:11], s30 offen offset:{1024*i} lds" for i in range(4)]
        L += [f"s_add_u32 m0, s33, {slot*4096}", f"buffer_load_dwordx4 v{VXG}, s[4:7], s31 offen sc1 lds"]
        return L
    def reads(slot, p):
        L = [f"ds_read_b128 {vr(SX[p]+4*tm,4)}, v{VXA} offset:{slot*4096+tm*1024}" for tm in range(2)]
        for tn in range(8):
            for j in range(2):
                L.append(f"ds_read_b64_tr_b16 {vr(SW[p]+4*tn+2*j,2)}, v{(VWA if slot < 4 else VWB)+tn} offset:{(slot&3)*16384+j*8192}")
        return L
    def stp(k, vm, dm, rd=True):
        p = k & 1; M = []
        for tn in range(8):
            for tm in range(2):
                a, b = vr(SW[p]+4*tn, 4), vr(SX[p]+4*tm, 4)
                if swap: a, b = b, a
                M.append(f"v_mfma_f32_16x16x32_bf16 {ar(acc2(tn,tm),4)}, {a}, {b}, {ar(acc2(tn,tm),4)}")
        F = {-1: ["s_waitcnt lgkmcnt(0)"]}
        def add(i, x): F.setdefault(i, []).append(x)
        if rd:
            add(0, f"s_waitcnt vmcnt({vm})"); add(0, "s_barrier")
            for i, x in enumerate(reads((k+1) % NS, p ^ 1)): add(1 + i*2//3, x)
        if dm:
            for x, i in zip(dma((k+7) % NS), [0, 1, 3, 5, 7, 8, 9]): add(i, x)
            add(11, f"s_add_u32 s30, s30, {32*ldw}"); add(12, "s_add_u32 s31, s31, 16384")
        weave(g, M, F)
    g(f"T_{typ}64:")
    srd(g, 8, karg, 1024 * ldw)
    g(f"""
    s_lshl_b32 s30, s29, 9
    s_lshl_b32 s31, s28, 12
    s_add_u32 s31, s31, {XN}
    s_lshl_b32 s32, s24, 12
    s_lshl_b32 s38, s24, 10
    s_add_u32 s33, s38, {XB}
    s_lshr_b32 s34, s24, 1
    s_and_b32 s35, s24, 1
    v_lshrrev_b32 v16, 5, v1
    v_and_b32 v17, 31, v1
    v_lshlrev_b32 v18, 1, v16
    v_xor_b32 v17, v17, v18
    s_lshl_b32 s36, s24, 3
    v_add_u32 v16, s36, v16
    v_lshlrev_b32 v16, 13, v16
    """)
    for i in range(4):
        g(f"v_xor_b32 v18, {4*i}, v17")
        g(f"v_lshl_add_u32 v18, v18, 4, v16")
        g(f"v_add_u32 v{VWG+i}, {2*i*ldw - 1024*i}, v18")
    g(f"""
    v_lshlrev_b32 v61, 4, v1
    v_add_u32 v{VXG}, s38, v61
    s_waitcnt lgkmcnt(0)
    """)
    for s_ in range(7):
        for x in dma(s_):
            g(x)
            if x.startswith("s_add_u32 m0"): g("s_nop 0")
        g(f"s_add_u32 s30, s30, {32*ldw}")
        g("s_add_u32 s31, s31, 16384")
    g(f"""
    s_lshl_b32 s36, s34, 11
    s_add_u32 s36, s36, {XB}
    v_add_u32 v{VXA}, s36, v61
    v_lshrrev_b32 v16, 2, v1
    v_and_b32 v17, 7, v16
    v_lshlrev_b32 v17, 1, v17
    v_lshlrev_b32 v16, 9, v16
    v_and_b32 v18, 3, v1
    v_lshl_add_u32 v16, v18, 3, v16
    s_lshl_b32 s36, s35, 8
    v_add_u32 v16, s36, v16
    """)
    for t in range(8):
        g(f"v_xor_b32 v18, {2*t}, v17")
        g(f"v_lshl_add_u32 v{VWA+t}, v18, 4, v16")
        g(f"v_add_u32 v{VWB+t}, 0x10000, v{VWA+t}")
    for i in range(64): g(f"v_accvgpr_write_b32 a{i}, 0")
    g("s_waitcnt vmcnt(30)\ns_barrier")
    if opt.get("marks"): tmark(g, opt, 1); g("s_waitcnt vmcnt(0)")
    for x in reads(0, 0): g(x)
    loop = g.lab("GL")
    g(f"s_mov_b32 s37, 3\n{loop}:")
    for k in range(8): stp(k, 25, True)
    g(f"s_sub_u32 s37, s37, 1\ns_cmp_lg_u32 s37, 0\ns_cbranch_scc1 {loop}")
    for k in range(24, 32): stp(k, (min(31, k+6) - (k+1))*5, k == 24, k < 31)
    g("s_nop 7")
    tmark(g, opt, 2)
    g(f"""
    s_lshl_b32 s36, s28, 19
    s_lshl_b32 s37, s34, 18
    s_add_u32 s36, s36, s37
    s_lshl_b32 s37, s29, 14
    s_add_u32 s36, s36, s37
    s_lshl_b32 s37, s35, 13
    s_add_u32 s36, s36, s37
    s_add_u32 s36, s36, {VX if swap else KX}
    s_add_u32 s38, s36, 4096
    """)
    cnt = 0
    if not swap:
        for tm in range(2):
            for nb in range(4):
                piece(g, cnt, acc2(2*nb, tm), acc2(2*nb+1, tm), None, ("s36", "s38")[tm], nb*1024); cnt += 1
    else:
        for tn in range(8):
            piece(g, cnt, acc2(tn, 0), acc2(tn, 1), None, ("s36", "s38")[tn >> 2], (tn & 3)*1024); cnt += 1
    g(f"""
    s_lshl_b32 s36, s28, 8
    s_lshl_b32 s37, s29, 4
    s_add_u32 s36, s36, s37
    s_add_u32 s36, s36, {FLG+F_KVQ+2048+(4 if swap else 0)}
    s_waitcnt vmcnt(0)
    """)
    tmark(g, opt, 3)
    g(f"""
    s_barrier
    s_cmp_lg_u32 s24, 0
    s_cbranch_scc1 {ret}
    v_mov_b32 v16, 1
    v_mov_b32 v17, 0
    s_mov_b64 exec, 1
    buffer_store_dword v16, v17, s[4:7], s36 offen sc1
    s_mov_b64 exec, -1
    s_branch {ret}
    """)
```

```python
from common import *
K0_GRID = 192
def rne_bf16(g, d, s):
    g(f"v_cvt_pk_bf16_f32 v{d}, v{s}, v{s}")
    g(f"v_lshlrev_b32 v{d}, 16, v{d}")
def xreduce_add(g, v, t):
    for sw in ("v_permlane16_swap_b32", "v_permlane32_swap_b32"):
        g(f"v_mov_b32 v{t}, v{v}")
        g("s_nop 1")
        g(f"{sw} v{v}, v{t}")
        g("s_nop 1")
        g(f"v_add_f32 v{v}, v{v}, v{t}")
def gen_k0(g, opt={}):
    SC = " sc1" if opt.get("fsc", 1) else ""
    if opt.get("marks"): g("s_memrealtime s[90:91]")
    g(f"""
    s_cmp_ge_u32 s2, {K0_GRID}
    s_cbranch_scc1 K0_EXIT
    """)
    srd(g, 4, A_WS, WS_BYTES)
    g("""
    v_and_b32 v1, 63, v0
    v_lshrrev_b32 v2, 6, v0
    s_nop 0
    v_readfirstlane_b32 s24, v2
    s_cmp_ge_u32 s2, 128
    s_cbranch_scc1 K0_FILL
    """)
    srd(g, 8, A_X, 4 * MB)
    g("""
    v_and_b32 v2, 15, v1
    v_lshrrev_b32 v3, 4, v1
    v_lshlrev_b32 v4, 11, v2
    v_lshl_add_u32 v4, v3, 3, v4
    s_lshl_b32 s25, s2, 15
    s_lshl_b32 s26, s24, 9
    s_add_u32 s25, s25, s26
    s_waitcnt lgkmcnt(0)
    """)
    for kb in range(8):
        for j in range(2):
            r = 16 + kb * 4 + j * 2
            g(f"buffer_load_dwordx2 v[{r}:{r+1}], v4, s[8:11], s25 offen offset:{kb*64+j*32}")
    g("v_mov_b32 v8, 0")
    g("v_mov_b32 v9, 0")
    for i in range(32):
        if i % 2 == 0: g(f"s_waitcnt vmcnt({15 - i//2})")
        g(f"v_lshlrev_b32 v{64+2*i}, 16, v{16+i}")
        g(f"v_and_b32 v{65+2*i}, 0xffff0000, v{16+i}")
        g(f"v_add_f32 v8, v8, v{64+2*i}")
        g(f"v_add_f32 v9, v9, v{65+2*i}")
    g("v_add_f32 v8, v8, v9")
    xreduce_add(g, 8, 9)
    g("""
    s_lshl_b32 s26, s24, 6
    v_lshl_add_u32 v5, v2, 2, s26
    v_lshlrev_b32 v6, 2, v2
    ds_write_b32 v5, v8
    s_waitcnt lgkmcnt(0)
    s_barrier
    ds_read2_b32 v[10:11], v6 offset0:0 offset1:16
    ds_read2_b32 v[12:13], v6 offset0:32 offset1:48
    s_waitcnt lgkmcnt(0)
    v_add_f32 v10, v10, v11
    v_add_f32 v12, v12, v13
    v_add_f32 v8, v10, v12
    v_mul_f32 v8, 0x3a800000, v8
    v_mov_b32 v10, 0
    v_mov_b32 v11, 0
    """)
    for i in range(32):
        g(f"v_sub_f32 v12, v{64+2*i}, v8")
        g(f"v_sub_f32 v13, v{65+2*i}, v8")
        g("v_fmac_f32 v10, v12, v12")
        g("v_fmac_f32 v11, v13, v13")
    g("v_add_f32 v10, v10, v11")
    xreduce_add(g, 10, 11)
    g("""
    ds_write_b32 v5, v10 offset:256
    s_waitcnt lgkmcnt(0)
    s_barrier
    ds_read2_b32 v[10:11], v6 offset0:64 offset1:80
    ds_read2_b32 v[12:13], v6 offset0:96 offset1:112
    s_waitcnt lgkmcnt(0)
    v_add_f32 v10, v10, v11
    v_add_f32 v12, v12, v13
    v_add_f32 v10, v10, v12
    v_mul_f32 v10, 0x3a800000, v10
    """)
    rne_bf16(g, 8, 8)
    rne_bf16(g, 10, 10)
    g("v_add_f32 v10, 0x3727c5ac, v10")
    rne_bf16(g, 10, 10)
    g("v_sqrt_f32 v10, v10")
    g("s_nop 0")
    rne_bf16(g, 10, 10)
    g("v_rcp_f32 v10, v10")
    g(f"""
    s_lshr_b32 s25, s2, 4
    s_lshl_b32 s25, s25, 19
    s_and_b32 s26, s2, 15
    s_lshl_b32 s26, s26, 10
    s_add_u32 s25, s25, s26
    s_lshl_b32 s26, s24, 17
    s_add_u32 s25, s25, s26
    s_add_u32 s25, s25, {XN}
    v_lshlrev_b32 v4, 4, v1
    """)
    for kb in range(8):
        o = 16 + kb * 4
        for q in range(4):
            a = 64 + kb * 8 + 2 * q
            g(f"v_sub_f32 v12, v{a}, v8")
            g(f"v_sub_f32 v13, v{a+1}, v8")
            g("v_cvt_pk_bf16_f32 v12, v12, v13")
            g("v_and_b32 v13, 0xffff0000, v12")
            g("v_lshlrev_b32 v12, 16, v12")
            g("v_mul_f32 v13, v13, v10")
            g("v_mul_f32 v12, v12, v10")
            g(f"v_cvt_pk_bf16_f32 v{o+q}, v12, v13")
        g(f"buffer_store_dwordx4 v[{o}:{o+3}], v4, s[4:7], s25 offen{SC}")
        g("s_add_u32 s25, s25, 16384")
    g("s_branch K0_END")
    def fill(n, r, alt):
        for i in range(n):
            g(f"buffer_store_dwordx4 v[8:11], v4, s[4:7], {r} offen{SC}")
            g(f"s_add_u32 {r}, {r}, {alt if i & 1 else 4096}")
    g(f"""
    K0_FILL:
    v_lshlrev_b32 v4, 4, v0
    v_mov_b32 v8, -1
    v_mov_b32 v9, -1
    v_mov_b32 v10, -1
    v_mov_b32 v11, -1
    s_sub_u32 s25, s2, 128
    s_mul_i32 s28, s25, 43
    s_lshr_b32 s28, s28, 8
    s_mul_i32 s26, s28, {2*MB - 6*RECB}
    s_mul_i32 s27, s25, {RECB}
    s_add_u32 s26, s26, s27
    s_add_u32 s26, s26, {REC}
    s_lshl_b32 s27, s24, 10
    s_add_u32 s27, s27, s26
    s_add_u32 s28, s27, 8192
    s_getreg_b32 s34, hwreg(HW_REG_XCC_ID, 0, 4)
    v_lshlrev_b32 v5, 4, v1
    v_mov_b32 v6, 0
    s_mov_b32 s36, -1
    s_mov_b32 s37, -1
    s_waitcnt lgkmcnt(0)
    buffer_store_dwordx4 v[8:11], v5, s[4:7], s27 offen sc1
    buffer_store_dwordx4 v[8:11], v5, s[4:7], s28 offen sc1
    s_mov_b64 exec, 1
    """)
    for i in range(opt.get("nS", 2)):
        for q in range(2):
            g(f"""
            s_waitcnt vmcnt(0)
            s_barrier
            s_memtime s[38:39]
            s_waitcnt lgkmcnt(0)
            buffer_load_dword v7, v6, s[4:7], s{27+q} offen offset:{256*i} sc1
            s_waitcnt vmcnt(0)
            s_memtime s[40:41]
            s_waitcnt lgkmcnt(0)
            s_sub_u32 s40, s40, s38
            s_min_u32 s{36+q}, s{36+q}, s40
            """)
    g(f"""
    s_mov_b64 exec, -1
    s_lshl_b32 s28, s24, 3
    v_mov_b32 v7, s28
    v_mov_b32 v12, s36
    v_mov_b32 v13, s37
    ds_write_b64 v7, v[12:13]
    s_waitcnt lgkmcnt(0)
    s_barrier
    ds_read_b128 v[12:15], v6
    ds_read_b128 v[16:19], v6 offset:16
    s_waitcnt lgkmcnt(0)
    v_min_u32 v14, v14, v16
    v_min_u32 v15, v15, v17
    v_min_u32 v12, v12, v18
    v_min_u32 v13, v13, v19
    v_min_u32 v12, v12, v14
    v_min_u32 v13, v13, v15
    s_nop 0
    v_readfirstlane_b32 s36, v12
    v_readfirstlane_b32 s37, v13
    s_lshr_b32 s34, s34, 2
    s_cmp_lt_u32 s37, s36
    s_cselect_b32 s35, 1, 0
    s_xor_b32 s35, s35, s34
    s_xor_b32 s35, s35, {1 if opt.get("flip") else 0}
    s_lshl_b32 s35, s35, 13
    s_add_u32 s26, s26, s35
    """)
    fill(32, "s26", 12288)
    g("s_cmp_eq_u32 s25, 0\ns_cbranch_scc1 K0_MEM0")
    fill(4, "s26", 12288)
    g("K0_FILL2:")
    fill(6, "s26", 12288)
    g(f"""
    s_lshl_b32 s28, s25, 4
    s_add_u32 s28, s28, {PAR}
    v_mov_b32 v14, s35
    v_mov_b32 v15, 0
    s_mov_b64 exec, 1
    buffer_store_dwordx4 v[12:15], v15, s[4:7], s28 offen
    s_mov_b64 exec, -1
    s_lshl_b32 s30, s25, 16
    s_add_u32 s30, s30, {KM}
    """)
    fill(16, "s30", 4096)
    g(f"""
    s_cmp_ge_u32 s25, {F_END//4096}
    s_cbranch_scc1 K0_END
    s_lshl_b32 s25, s25, 12
    s_add_u32 s25, s25, {FLG}
    v_mov_b32 v12, 0
    v_mov_b32 v13, 0
    v_mov_b32 v14, 0
    v_mov_b32 v15, 0
    buffer_store_dwordx4 v[12:15], v4, s[4:7], s25 offen{SC}
    s_branch K0_END
    K0_MEM0:
    """)
    srd(g, 8, A_MEM0, 16384)
    g("""
    v_bfe_u32 v2, v1, 1, 3
    v_lshlrev_b32 v5, 11, v2
    v_lshrrev_b32 v2, 4, v1
    v_lshl_add_u32 v5, v2, 5, v5
    v_and_b32 v2, 1, v1
    v_lshl_add_u32 v5, v2, 4, v5
    s_lshl_b32 s27, s24, 9
    s_waitcnt lgkmcnt(0)
    """)
    for i in range(4):
        g(f"buffer_load_dwordx4 v[{16+4*i}:{19+4*i}], v5, s[8:11], s27 offen offset:{128*i}")
    g(f"""
    v_lshlrev_b32 v6, 4, v1
    s_mov_b32 s28, -2
    """)
    sp_s(g, "s27", "s24", 12, "s29")
    g(f"s_add_u32 s27, s27, s26\ns_waitcnt vmcnt(0)")
    for i in range(16): g(f"v_min_u32 v{16+i}, s28, v{16+i}")
    for i in range(4):
        g(f"buffer_store_dwordx4 v[{16+4*i}:{19+4*i}], v6, s[4:7], s27 offen offset:{1024*i}{SC}")
    g("s_add_u32 s26, s26, 32768")
    g("s_branch K0_FILL2")
    g("K0_END:")
    if opt.get("marks"):
        g(f"""
        s_waitcnt vmcnt(0)
        s_memrealtime s[92:93]
        s_lshl_b32 s94, s2, 3
        s_add_u32 s94, s94, {FLG+MB+0xF8000}
        s_waitcnt lgkmcnt(0)
        v_mov_b32 v100, s90
        v_mov_b32 v101, s92
        v_mov_b32 v102, 0
        s_mov_b64 exec, 1
        buffer_store_dwordx2 v[100:101], v102, s[4:7], s94 offen
        """)
    g("K0_EXIT:")
    g("s_endpgm")
```

```python
from common import *
from gemm import f2u
from chain import (TMO, SMF, MF32, MF16, CEXP, stamp, stamp_init, stamp_dump, run_ring, idx_reg, kv_flags)

class Seq:
    def __init__(s, g): s.g = g; s.q = []
    def ds(s, text, tag=None):
        s.g(text); s.q.append(tag)
    def need(s, *tags):
        idx = max((i for i, t in enumerate(s.q) if t in tags), default=-1)
        if idx < 0: return
        n = len(s.q) - 1 - idx
        s.g(f"s_waitcnt lgkmcnt({min(n, 15)})")
        s.q = s.q[idx+1:] if n <= 15 else s.q[-15:]
    def drain(s):
        s.g("s_waitcnt lgkmcnt(0)"); s.q = []

def backoff(g, reg):
    top = g.lab("BK")
    g(f"s_mov_b32 s71, {reg}\n.p2alignl 4, 0xBF800000\n{top}:\ns_sub_u32 s71, s71, 1\ns_cbranch_scc0 {top}")

def probe(g, opt, key, va, reg0):
    k = opt.get("k"+key, 6); pad = opt.get("pad"+key, 0)
    go = g.lab("GO"); top = g.lab("PT"); got = g.lab("GOT")
    g(f"s_cmp_lg_u32 s24, 0\ns_cbranch_scc1 {go}")
    if key == "S": g(f"s_cmp_eq_u32 s60, 0\ns_cbranch_scc1 {go}")
    for i in range(k): g(f"v_mov_b32 v{reg0+i}, -1")
    backoff(g, "s69")
    g(f"s_memrealtime s[88:89]\ns_mov_b32 s53, 0\n{top}:")
    for i in range(k):
        g(f"""
        s_waitcnt lgkmcnt(0)
        s_lshl_b32 s54, s88, 5
        s_memrealtime s[88:89]
        s_and_b32 s54, s54, 0x380
        s_add_u32 s54, s54, s65
        buffer_load_dword v{reg0+i}, v{va}, s[4:7], s54 offen sc1
        s_add_u32 s53, s53, 1
        s_waitcnt vmcnt({k-1})
        v_cmp_eq_u32 vcc, -1, v{reg0+(i+1)%k}
        s_cbranch_vccz {got}
        """)
        if pad: g(f"s_nop {pad-1}")
    g(f"""
    s_cmp_lt_u32 s53, {opt.get("cT", 1000)}
    s_cbranch_scc1 {top}
    {got}:
    """)
    post = opt.get("post"+key, 0)
    while post > 0:
        g(f"s_nop {min(post, 16)-1}"); post -= 16
    g(f"{go}:\ns_barrier")

def adapt(g, opt, key):
    if opt.get("stamps"): g("s_min_u32 s58, s53, 255")
    if opt.get("adapt", 1):
        g(f"s_sub_u32 s53, s53, {opt.get('t'+key, 9)}\ns_min_i32 s53, s53, {opt.get('up', 1)}\ns_add_u32 s69, s69, s53\ns_max_i32 s69, s69, 0")

LKX, LSH, LIMG, LW = 0, 8192, 24576, 32768
T0, M0, VX0, VM0, MSK, ONE = 32, 64, 96, 104, 108, 112
LH = [(0,0), (0,1), (1,0), (3,1), (5,1), (7,0), (8,1), (9,1)]
RH = [(s, m) for s in range(16) for m in range(2) if (s, m) not in LH]
LBUF = {0: 80, 1: 88, 2: T0, 3: T0+8, 4: T0+16, 5: T0+24, 14: 120,
        15: T0, 22: T0+8, 23: T0+16, 28: T0+24, 29: T0, 34: T0+8, 35: T0+16, 38: T0+24, 39: T0}
def s_op(sl, c):
    h = (sl, c >> 1)
    if h in LH: return ("v", LBUF[4*sl + c])
    i = RH.index(h)*16 + 8*(c & 1)
    return ("a", i) if i < 256 else ("v", i - 128)
def l_off(p): return (LH.index((p >> 2, (p >> 1) & 1))*2 + (p & 1))*2048
JR = [(0,0), (0,1), (1,0), (2,0), (3,0), (1,1), (2,1), (3,1), (0,2), (0,3), (1,2), (1,3), (2,2), (2,3), (3,2), (3,3)]
def slot_jr(sl): return JR[sl]
MREG = [0, 1, 4, 5, 6, 7, 0, 1, 2, 3, 4, 5, 6, 7, 0, 1]
def mreg(sl): return M0 + 4*MREG[sl]

def gen_s(g, opt):
    pV = opt.get("pV", 52)
    g("R_S:")
    g("s_setprio 3")
    srd(g, 8, A_WQ, 8*MB); srd(g, 12, A_WK, 8*MB)
    g(f"""
    s_lshl_b32 s40, s24, 15
    s_add_u32 s40, s40, {LW}
    s_lshl_b32 s42, s27, 8
    s_lshl_b32 s43, s24, 6
    s_add_u32 s42, s42, s43
    """)
    for j in range(4):
        g(f"""
        s_add_u32 s43, s24, {j}
        s_and_b32 s43, s43, 3
        s_lshl_b32 s47, s43, 21
        s_add_u32 s{52+j}, s47, s42
        """)
        if j: g(f"s_lshl_b32 s43, s43, 12\ns_add_u32 s43, s43, {LSH}\nv_lshlrev_b32 v{115+j}, 4, v1\nv_add_u32 v{115+j}, s43, v{115+j}")
    g("""
    v_bfe_u32 v8, v1, 4, 1
    v_bfe_u32 v9, v1, 5, 1
    v_lshlrev_b32 v10, 1, v8
    v_lshl_add_u32 v10, v9, 3, v10
    v_xor_b32 v10, v10, v1
    v_lshrrev_b32 v11, 2, v10
    v_lshlrev_b32 v11, 13, v11
    v_and_b32 v10, 3, v10
    v_lshl_add_u32 v2, v10, 4, v11
    v_bfe_u32 v10, v1, 3, 1
    v_lshlrev_b32 v11, 10, v9
    v_lshl_add_u32 v11, v8, 8, v11
    v_lshl_add_u32 v11, v10, 9, v11
    v_bfe_u32 v9, v1, 2, 1
    v_lshl_add_u32 v11, v9, 6, v11
    v_and_b32 v9, 3, v1
    v_lshl_add_u32 v11, v9, 3, v11
    v_add_u32 v11, s40, v11
    v_lshlrev_b32 v8, 5, v8
    v_lshl_add_u32 v8, v10, 7, v8
    """)
    for u in range(2):
        for t in range(2):
            g(f"v_xor_b32 v9, {128*u+32*t}, v8")
            g(f"v_add_u32 v{4+2*u+t}, v11, v9")
    g("v_lshlrev_b32 v12, 4, v1\nv_add_u32 v12, s40, v12\ns_waitcnt lgkmcnt(0)")
    def issue(un, buf):
        for i in range(8):
            sl, m = un[i >> 2]; j, r = slot_jr(sl)
            if i % 4 == 0: g(f"s_add_u32 m0, s40, {buf*8192 + i*1024}")
            g(f"s_add_u32 s41, s{52+j}, {r*524288 + (i&3)*131072 - (i&3)*1024}")
            g(f"buffer_load_dwordx4 v2, s[{8+4*m}:{11+4*m}], s41 offen offset:{(i&3)*1024} lds")
    def read(un, buf):
        for c in range(4):
            sl, m = un[c >> 1]
            k, b = ("v", T0 + 8*c) if un[0] in LH else s_op(sl, 2*m + (c & 1))
            for hf in range(2):
                for u in range(2):
                    g(f"ds_read_b64_tr_b16 {vr(b+4*hf+2*u,2,k)}, v{4+2*u+(c&1)} offset:{buf*8192+(c>>1)*4096+hf*2048}")
    def post(buf):
        for c in range(4):
            for q in range(2):
                g(f"ds_write_b128 v12, {vr(T0+8*c+4*q,4)} offset:{buf*8192+(2*c+q)*1024}")
        g("s_waitcnt lgkmcnt(0)")
    HU = RH + LH
    run_ring(g, [(lambda buf, un=un: issue(un, buf), lambda buf, un=un: read(un, buf), post if un[0] in LH else None)
                 for un in [HU[2*i:2*i+2] for i in range(16)]], dbg=opt.get("ringdbg"))
    if opt.get("ringdbg"):
        g("s_waitcnt lgkmcnt(0)")
        for k in range(9): g(f"v_writelane_b32 v20, s{72+2*k}, {k}")
        g(f"""
        s_lshl_b32 s92, s27, 2
        s_add_u32 s92, s92, s24
        s_lshl_b32 s92, s92, 6
        s_add_u32 s92, s92, {FLG+MB+0xF0000}
        v_lshlrev_b32 v21, 2, v1
        s_mov_b64 exec, 0x1ff
        buffer_store_dword v20, v21, s[4:7], s92 offen
        s_mov_b64 exec, -1
        """)
    mark(g, opt, 3)
    idx_reg(g, 2, 11)
    g(f"""
    v_mov_b32 v4, v12
    v_lshlrev_b32 v7, 4, v1
    s_lshl_b32 s43, s24, 12
    v_add_u32 v13, s43, v7
    v_add_u32 v13, {LSH}, v13
    s_and_b32 s43, s24, 1
    s_lshl_b32 s43, s43, 12
    s_lshr_b32 s47, s24, 1
    s_lshl_b32 s47, s47, 14
    s_or_b32 s43, s43, s47
    s_add_u32 s43, s43, {MEM}
    v_add_u32 v3, s43, v7
    v_and_b32 v11, 15, v1
    v_lshrrev_b32 v16, 4, v1
    s_lshl_b32 s43, s24, 10
    s_add_u32 s43, s43, {LIMG}
    v_lshlrev_b32 v5, 5, v11
    v_lshl_add_u32 v5, v16, 2, v5
    v_add_u32 v5, s43, v5
    v_lshlrev_b32 v6, 3, v1
    v_add_u32 v6, {LIMG}, v6
    s_lshl_b32 s43, s24, 11
    v_add_u32 v12, s43, v7
    s_and_b32 s43, s27, 3
    s_lshl_b32 s43, s43, 11
    s_lshr_b32 s47, s27, 2
    s_lshl_b32 s47, s47, 14
    s_add_u32 s43, s43, s47
    s_lshl_b32 s47, s24, 9
    s_add_u32 s43, s43, s47
    v_lshlrev_b32 v8, 4, v11
    v_and_b32 v17, 1, v16
    v_lshl_add_u32 v8, v17, 3, v8
    v_add_u32 v8, s43, v8
    v_add_u32 v8, {VM}, v8
    v_and_b32 v18, 7, v1
    v_lshlrev_b32 v10, 4, v18
    v_lshl_add_u32 v10, v16, 7, v10
    s_lshl_b32 s43, s27, 11
    v_add_u32 v10, s43, v10
    v_bfe_u32 v18, v1, 2, 1
    v_lshlrev_b32 v9, 16, v18
    v_and_b32 v18, 3, v1
    v_lshl_add_u32 v9, v18, 5, v9
    v_lshl_add_u32 v9, v17, 4, v9
    v_lshrrev_b32 v18, 5, v1
    v_lshl_add_u32 v9, v18, 7, v9
    s_and_b32 s43, s27, 7
    s_lshl_b32 s43, s43, 10
    s_lshr_b32 s47, s27, 3
    s_lshl_b32 s47, s47, 14
    s_add_u32 s43, s43, s47
    s_lshl_b32 s47, s24, 8
    s_add_u32 s43, s43, s47
    s_add_u32 s43, s43, {OM}
    v_add_u32 v9, s43, v9
    v_mov_b32 v18, {OOB}
    v_cmp_gt_u32 vcc, 8, v11
    v_mov_b32 v{MSK}, 0
    s_nop 0
    v_cndmask_b32 v9, v18, v9, vcc
    v_cndmask_b32 v10, v10, v18, vcc
    v_mov_b32 v18, {hex(f2u(-1e30))}
    v_cmp_gt_u32 vcc, 32, v1
    s_lshr_b32 s46, s27, 1
    s_lshl_b32 s46, s46, 4
    v_cndmask_b32 v{MSK}, v{MSK}, v18, vcc
    s_add_u32 s46, s46, {FLG+F_KVQ}
    s_lshl_b32 s49, s27, 13
    s_add_u32 s50, s49, {KX}
    s_add_u32 s51, s49, {VX}
    s_lshl_b32 s52, s24, 10
    s_sub_u32 s52, s52, 1024
    s_mov_b32 s60, 0
    s_mov_b32 s66, {hex(f2u(CEXP))}
    s_mov_b32 s62, s66
    s_mov_b32 s63, s66
    s_mov_b32 s67, -2
    s_mov_b32 s68, 0
    s_mov_b32 s45, 8
    s_mov_b32 s69, {opt.get("dS", 0)}
    s_mov_b32 s53, {opt.get("tS", 9)}
    """)
    g(f"""
    s_mov_b32 s61, {REC}
    s_mov_b32 s56, 0
    s_mov_b32 s59, {KM}
    v_mov_b32 v18, {OOB}
    """)
    can_regs(g, opt, 0, 1, 0, 119, "s27", opt.get("cWS", 1), 18, 17)
    for i in range(1, 4): g(f"v_mov_b32 v{MSK+i}, v{MSK}")
    for i in range(4): g(f"v_mov_b32 v{ONE+i}, 0x3f803f80")
    stamp_init(g, opt, "s27")
    if not opt.get("solo"): kv_flags(g, "S_END")
    par_init(g, opt, 16)
    rec_at(g, "s65", "s61", "s60")
    def prefetch():
        sk = g.lab("PF")
        g(f"""
        s_cmp_eq_u32 s24, 0
        s_cbranch_scc1 {sk}
        s_mov_b32 m0, s52
        s_add_u32 s47, s50, s52
        buffer_load_dwordx4 v7, s[4:7], s47 offen sc1 lds
        buffer_load_dwordx4 v7, s[4:7], s47 offen offset:3072 sc1 lds
        s_cmp_eq_u32 s24, 3
        s_cbranch_scc1 {sk}
        s_add_u32 m0, s52, 6144
        s_add_u32 s47, s47, 6144
        buffer_load_dwordx4 v7, s[4:7], s47 offen sc1 lds
        {sk}:
        s_add_u32 s50, s50, {0 if opt.get("solo") else 262144}
        """)
    prefetch()
    def ld(r, so="s65"): return f"buffer_load_dwordx4 {vr(M0+4*r,4)}, v3, s[4:7], {so} offen offset:{r*1024} sc1"
    SEN = "0x12345" if opt.get("solo") else "-1"
    def cmp(r): return f"v_cmp_eq_u32 vcc, {SEN}, v{r}"
    Q = Seq(g)
    g("S_LOOP:")
    def tr(p, q): return lambda: Q.ds(f"ds_read_b128 {vr(LBUF[p]+4*q,4)}, v4 offset:{l_off(p)+q*1024}", ("T", p >> 2, p & 3))
    for p in (0, 1, 2, 3, 4, 5, 14): tr(p, 0)(); tr(p, 1)()
    for i in range(16): g(f"v_mov_b32 v{16+i}, 0")
    g("s_mov_b32 s44, 0")
    if opt.get("can", 1) and not opt.get("solo"): probe(g, opt, "S", 0, M0)
    else: backoff(g, "s69")
    stamp(g, opt, 0)
    for r in range(4):
        g(ld(r))
        if r < 3 and opt.get("stS", 4): g(f"s_nop {opt.get('stS', 4)-1}")
    adapt(g, opt, "S")
    R = [g.lab("SR") for r in range(4)]; C = [g.lab("SC") for r in range(4)]
    Q.drain()
    g("s_waitcnt vmcnt(3)")
    g(cmp(M0))
    g(f"s_cbranch_vccnz {R[0]}")
    g(f"{C[0]}:")
    stamp(g, opt, 1)
    SMS = [(s, c) for s in range(10) for c in range(4)]
    SMS += [(s, c) for s in range(10, 16) for c in (0, 1)]
    SMS += [(s, 2) for s in range(10, 16)] + [(s, 3) for s in range(10, 16)]
    F = {p: [] for p in range(64)}
    def wr(r): return lambda: Q.ds(f"ds_write_b128 v13, {vr(M0+4*r,4)} offset:{r*1024}", ("W", r))
    def rd(sl):
        j, r = slot_jr(sl)
        return lambda: Q.ds(f"ds_read_b128 {vr(mreg(sl),4)}, v{115+j} offset:{r*1024}", ("M", sl))
    def x(t): return lambda: g(t)
    def bar(*tags): return [lambda: Q.need(*tags), x("s_barrier")]
    def chk(r): return [x(f"s_waitcnt vmcnt({3-r})"), x(cmp(M0+4*r))]
    def br(r): return x(f"s_cbranch_vccnz {R[r]}\n{C[r]}:")
    F[3] += bar(("W", 0)) + [rd(2), rd(3)] + chk(1) + [br(1)]
    pX = opt.get("pX", 8)
    F[pX] += [x(f"buffer_load_dwordx4 {vr(VX0,4)}, v12, s[4:7], s51 offen sc1")]
    F[pX+1] += [x(f"buffer_load_dwordx4 {vr(VX0+4,4)}, v12, s[4:7], s51 offen offset:1024 sc1"), x(f"s_add_u32 s51, s51, {0 if opt.get('solo') else 262144}")]
    F[21] += [x("s_waitcnt vmcnt(2)"), x(f"v_max_u32 v11, v{M0+8}, v{M0+12}")]; F[22] += [x(cmp(11))]; F[23] += [br(2)]
    F[11] += bar(("W", 1)); F[31] += bar(("W", 3))
    for gp, r in ((0, 0), (6, 1), (25, 2), (27, 3)): F[gp] += [wr(r)]
    for ga, p in ((4, 15), (9, 22), (13, 23), (16, 28), (18, 29), (23, 34), (29, 35), (31, 38), (33, 39)):
        F[ga] += [tr(p, 0)]; F[ga+1] += [tr(p, 1)]
    for gp, sl in ((8, 4), (12, 5), (15, 6), (20, 7), (35, 10), (36, 11), (37, 12), (38, 13), (39, 14), (40, 15)):
        F[gp] += [rd(sl)]
    for gp, q in ((41, 2), (42, 3), (43, 4), (44, 5), (45, 6), (46, 7), (47, 0), (48, 1)):
        F[gp] += [lambda q=q: Q.ds(f"ds_read_b128 {vr(T0+4*q,4)}, v7 offset:{LKX+q*1024}", ("K",))]
    def epi(c):
        a = 16 + 4*c
        return [x(f"v_add_f32 v{a}, v{a}, v{a+1}"), x(f"v_add_f32 v{a+2}, v{a+2}, v{a+3}"), x(f"v_cvt_pk_bf16_f32 v{a}, v{a}, v{a+2}")]
    e0, e1, e2, e3 = epi(0), epi(1), epi(2), epi(3)
    XQ = [72, 76, 120, 124]; XN = [80, 84, 88, 92]
    def trx(dst, b, j, tag): return lambda: Q.ds(f"ds_read_b64_tr_b16 {vr(dst[b]+2*j,2)}, v6 offset:{b*1024+j*512}", (tag, b))
    F[54] = e0[:2]
    F[55] = [e0[2], e1[0]]
    F[56] = e1[1:]
    F[57] = [lambda: Q.ds("ds_write2_b32 v5, v16, v20 offset0:0 offset1:128", ("I", 0))]
    F[60] = bar(("I", 0))
    F[61] = [trx(XQ,0,0,"XQ"), trx(XQ,0,1,"XQ"), e2[0]]
    F[62] = [trx(XQ,1,0,"XQ"), trx(XQ,1,1,"XQ"), e2[1]]
    F[63] = [trx(XQ,2,0,"XQ"), trx(XQ,2,1,"XQ"), trx(XQ,3,0,"XQ"), trx(XQ,3,1,"XQ"), e2[2],
             lambda: Q.ds("ds_write_b32 v5, v24 offset:16", ("I", 1)), x("s_nop 1")] + e3 + \
            [lambda: Q.ds("ds_write_b32 v5, v28 offset:528", ("I", 2))]
    def vml(so): return [f"buffer_load_dwordx2 {vr(VM0+2*t,2)}, v8, s[4:7], {so} offen offset:{256*t} sc1" for t in range(2)]
    vm = vml("s65")
    vm[0] = "s_waitcnt vmcnt(0)\n" + vm[0]
    if pV < 64: F[pV] = [x(vm[0])] + F[pV]; F[pV+opt.get("pVd", 1)] = [x(vm[1])] + F[pV+opt.get("pVd", 1)]
    pC = opt.get("pC", 63)
    if opt.get("can", 1):
        cst = x("buffer_store_dword v1, v119, s[4:7], s65 offen sc1")
        if pC == 63: F[63][6] = lambda: (cst(), g("s_nop 0"))
        elif pC < 63: F[pC] = F[pC] + [cst]
    def can_at(k):
        if opt.get("can", 1) and pC == k: cst()
    for p, (s, c) in enumerate(SMS):
        Q.need(("M", s), ("T", s, c))
        k, b = s_op(s, c)
        g(f"{SMF} {vr(16+4*c,4)}, {vr(mreg(s),4)}, {vr(b,8,k)}, v2")
        if p == 63: stamp(g, opt, 2)
        if p in opt.get("sp", []): g(f"s_memtime s[{72+2*(2+opt['sp'].index(p))}:{73+2*(2+opt['sp'].index(p))}]")
        for f in F[p]: f()
    S0, S1, S2 = 16, 20, 64
    def xs(b):
        Q.need(("XQ", b))
        for t, S in ((0, S0), (1, S1)):
            yield f"{MF32} {vr(S,4)}, {vr(T0+16*t+4*b,4)}, {vr(XQ[b],4)}, {'0' if b == 0 else vr(S,4)}"
    for b in (0, 1):
        for m in xs(b): g(m)
    if pV >= 64:
        for v in vm: g(v)
    can_at(64)
    Q.drain()
    g("s_barrier")
    can_at(645)
    rest = [m for b in (2, 3) for m in xs(b)]
    for b in range(4):
        trx(XN, b, 0, "XN")(); trx(XN, b, 1, "XN")()
        g(rest[b])
    can_at(65)
    stamp(g, opt, 3)
    g("s_cmp_eq_u32 s60, 63")
    g("s_cbranch_scc1 S_LAST")
    mx = [f"v_max3_f32 v26, v{S0}, v{S0+1}, v{S0+2}", f"v_max3_f32 v27, v{S1}, v{S1+1}, v{S1+2}",
          f"v_max3_f32 v26, v26, v{S0+3}, v{S1+3}", "v_max_f32 v26, v26, v27"]
    for b in range(4):
        Q.need(("XN", b))
        X = vr(XN[b], 4)
        g(f"{MF32} {vr(S2,4)}, {X}, {X}, {vr(MSK,4) if b == 0 else vr(S2,4)}")
    for m in mx: g(m)
    can_at(66)
    g(f"""
    s_nop 3
    v_max3_f32 v26, v26, v{S2}, v{S2+1}
    v_max3_f32 v27, v26, v{S2+2}, v{S2+3}
    v_max3_f32 v26, v26, v{S2+2}, v{S2+3}
    s_nop 1
    v_permlane32_swap_b32 v26, v27
    v_max_f32 v24, v26, v27
    v_max_f32 v25, v26, v27
    s_nop 1
    v_permlane16_swap_b32 v24, v25
    v_max_f32 v26, v24, v25
    v_mul_f32 v26, s66, v26
    """)
    can_at(67)
    PX, PM, O0, O1, L = 68, 24, 32, 36, 40
    xr = [S0+i for i in range(4)] + [S1+i for i in range(4)]
    pk = opt.get("pk", 1)
    def pkf(r): return f"v_pk_fma_f32 {vr(r,2)}, {vr(r,2)}, s[62:63], v[26:27] op_sel_hi:[1,1,0] neg_lo:[0,0,1] neg_hi:[0,0,1]"
    if pk:
        for r in xr[::2]: g(pkf(r))
    else:
        for r in xr: g(f"v_fma_f32 v{r}, v{r}, s66, -v26")
    for r in xr: g(f"v_exp_f32 v{r}, v{r}")
    can_at(68)
    g(f"v_fma_f32 v{S2}, v{S2}, s66, -v26")
    for i in range(4): g(f"v_cvt_pk_bf16_f32 v{PX+i}, v{xr[2*i]}, v{xr[2*i+1]}")
    for i in range(1, 3): g(f"v_fma_f32 v{S2+i}, v{S2+i}, s66, -v26")
    RV, CV = g.lab("SRV"), g.lab("SCV")
    g(f"""
    {MF32} {vr(L,4)}, {vr(ONE,4)}, {vr(PX,4)}, 0
    v_fma_f32 v{S2+3}, v{S2+3}, s66, -v26
    v_exp_f32 v{S2}, v{S2}
    {MF32} {vr(O0,4)}, {vr(VX0,4)}, {vr(PX,4)}, 0
    v_exp_f32 v{S2+1}, v{S2+1}
    {MF32} {vr(O1,4)}, {vr(VX0+4,4)}, {vr(PX,4)}, 0
    v_exp_f32 v{S2+2}, v{S2+2}
    v_exp_f32 v{S2+3}, v{S2+3}
    """)
    stamp(g, opt, 4)
    g(f"""
    v_cvt_pk_bf16_f32 v{PM}, v{S2}, v{S2+1}
    v_cvt_pk_bf16_f32 v{PM+1}, v{S2+2}, v{S2+3}
    s_waitcnt vmcnt({1 if opt.get("can", 1) else 0})
    v_max_u32 v11, v{VM0}, v{VM0+2}
    {MF16} {vr(L,4)}, {vr(ONE,2)}, {vr(PM,2)}, {vr(L,4)}
    v_cmp_eq_u32 vcc, {SEN}, v11
    s_cbranch_vccnz {RV}
    {CV}:
    """)
    stamp(g, opt, 5)
    g(f"""
    {MF16} {vr(O0,4)}, {vr(VM0,2)}, {vr(PM,2)}, {vr(O0,4)}
    {MF16} {vr(O1,4)}, {vr(VM0+2,2)}, {vr(PM,2)}, {vr(O1,4)}
    s_nop {opt.get("n1", 3)}
    v_rcp_f32 v{L}, v{L}
    s_nop {opt.get("n2", 1)}
    """)
    def mul4(o):
        if pk:
            for i in (0, 2): g(f"v_pk_mul_f32 {vr(o+i,2)}, {vr(o+i,2)}, {vr(L,2)} op_sel_hi:[1,0]")
        else:
            for i in range(4): g(f"v_mul_f32 v{o+i}, v{o+i}, v{L}")
    mul4(O0)
    for i in range(2): g(f"v_cvt_pk_bf16_f32 v{28+i}, v{O0+2*i}, v{O0+2*i+1}")
    mul4(O1)
    g("v_min_u32 v28, s67, v28")
    for i in range(2): g(f"v_cvt_pk_bf16_f32 v{30+i}, v{O1+2*i}, v{O1+2*i+1}")
    g("buffer_store_dwordx4 v[28:31], v9, s[4:7], s65 offen sc1")
    stamp(g, opt, 6)
    g("S_KM:")
    Q.drain()
    done = g.lab("KMD")
    g(f"s_cmp_eq_u32 s24, 0\ns_cbranch_scc1 {done}")
    for b in (3, 2, 1, 0):
        nx = g.lab("KM")
        if b > 1: g(f"s_cmp_lg_u32 s24, {b}\ns_cbranch_scc1 {nx}")
        R_ = VM0 if b else VX0
        for i in range(4): g(f"v_min_u32 v{R_+i}, s67, v{XN[b]+i}")
        g(f"buffer_store_dwordx4 {vr(R_,4)}, v10, s[4:7], s59 offen offset:{512*b} sc1")
        if b > 1: g(f"s_branch {done}\n{nx}:")
    g(f"{done}:")
    stamp_dump(g, opt)
    nofl = g.lab("NF")
    g(f"""
    s_cmp_eq_u32 s60, 63
    s_cbranch_scc1 S_END
    s_add_u32 s60, s60, 1
    s_add_u32 s59, s59, 65536
    """)
    if not opt.get("solo"):
        rec_next(g, "s61", "s56", "s47")
        rec_at(g, "s65", "s61", "s60")
    g(f"""
    s_cmp_eq_u32 s60, 63
    s_cbranch_scc1 S_LOOP
    s_lshr_b32 s45, s60, 3
    s_lshr_b32 s48, s60, 1
    s_add_u32 s48, s48, 8
    s_cmp_lt_u32 s60, 8
    s_cselect_b32 s45, s48, s45
    s_cselect_b32 s47, 1, 7
    s_and_b32 s47, s60, s47
    s_cmp_lg_u32 s47, 0
    s_cbranch_scc1 {nofl}
    s_cmp_eq_u32 s24, 0
    s_cbranch_scc1 {nofl}
    """)
    if not opt.get("solo"): kv_flags(g, "S_END")
    g(f"{nofl}:")
    prefetch()
    g("s_branch S_LOOP")
    g("S_LAST:\ns_waitcnt vmcnt(0)\ns_branch S_KM")
    for r in range(3):
        g(f"{R[r]}:")
        g(f"s_add_u32 s68, s68, 1\ns_add_u32 s44, s44, 1\ns_cmp_gt_u32 s44, {TMO}\ns_cbranch_scc1 S_END")
        for k in range(r, 4): g(ld(k))
        g("s_waitcnt vmcnt(0)")
        if r == 2: g(f"v_max_u32 v11, v{M0+8}, v{M0+12}")
        g(cmp(M0+4*r if r < 2 else 11))
        g(f"s_cbranch_vccz {C[r]}\ns_branch {R[r]}")
    g(f"{RV}:")
    g(f"s_add_u32 s68, s68, 0x10000\ns_add_u32 s44, s44, 1\ns_cmp_gt_u32 s44, {TMO}\ns_cbranch_scc1 S_END")
    for v in vml("s65"): g(v)
    g(f"s_waitcnt vmcnt(0)\nv_max_u32 v11, v{VM0}, v{VM0+2}\nv_cmp_eq_u32 vcc, -1, v11")
    g(f"s_cbranch_vccz {CV}\ns_branch {RV}")
    g("S_END:")
    g("s_endpgm")
```

```python
from common import *
from gemm import f2u
from chain import (TMO, SMF, MF32, MF16, CEXP, stamp, stamp_init, stamp_dump, run_ring, idx_reg, wide_addrs, wide_issue, wide_read)
from s4 import backoff, probe, adapt
def cmp1(r): return f"v_cmp_eq_u32 vcc, -1, v{r}"
RVB, ROB = 0, 16384
def gen_vo(g, opt):
    g("R_VO:")
    g("s_setprio 3")
    srd(g, 8, A_WO, 8*MB); srd(g, 12, A_WV, 8*MB)
    g(f"""
    s_sub_u32 s26, s25, 1
    s_lshl_b32 s40, s24, 15
    s_lshl_b32 s42, s24, 21
    s_lshl_b32 s43, s27, 6
    s_add_u32 s42, s42, s43
    s_lshl_b32 s49, s27, 8
    s_lshl_b32 s43, s26, 7
    s_add_u32 s49, s49, s43
    s_lshl_b32 s43, s24, 21
    s_add_u32 s49, s49, s43
    """)
    wide_addrs(g, 2, 4, 8)
    g("""
    v_bfe_u32 v8, v1, 4, 1
    v_lshlrev_b32 v8, 3, v8
    v_xor_b32 v8, v8, v1
    v_lshrrev_b32 v9, 2, v8
    v_lshlrev_b32 v9, 11, v9
    v_and_b32 v8, 3, v8
    v_lshl_add_u32 v12, v8, 4, v9
    v_xor_b32 v8, 2, v8
    v_lshl_add_u32 v13, v8, 4, v9
    v_lshrrev_b32 v8, 4, v1
    v_lshlrev_b32 v8, 10, v8
    v_bfe_u32 v9, v1, 3, 1
    v_lshl_add_u32 v8, v9, 8, v8
    v_bfe_u32 v10, v1, 2, 1
    v_lshl_add_u32 v8, v10, 6, v8
    v_and_b32 v10, 3, v1
    v_lshl_add_u32 v8, v10, 3, v8
    v_add_u32 v8, s40, v8
    v_bfe_u32 v10, v1, 4, 1
    v_lshlrev_b32 v10, 5, v10
    v_lshl_add_u32 v9, v9, 7, v10
    """)
    for u in range(2):
        for t in range(2):
            g(f"v_xor_b32 v10, {128*u+32*t}, v9")
            g(f"v_add_u32 v{14+2*u+t}, v8, v10")
    g("s_waitcnt lgkmcnt(0)")
    units = []
    def o_issue(hh, buf):
        for i in range(8):
            if i % 4 == 0: g(f"s_add_u32 m0, s40, {buf*8192 + i*1024}")
            g(f"s_add_u32 s41, s42, {hh*262144 + i*32768 - (i&3)*1024}")
            g(f"buffer_load_dwordx4 v{12+(i&1)}, s[8:11], s41 offen offset:{(i&3)*1024} lds")
    def o_read(hh, buf):
        for odd in range(2):
            for t in range(2):
                b = ((hh*2+odd)*2+t)*8
                for hf in range(2):
                    for u in range(2):
                        g(f"ds_read_b64_tr_b16 {ar(b+4*hf+2*u,2)}, v{14+2*u+t} offset:{buf*8192+hf*4096+odd*512}")
    for ff in range(4):
        units.append((lambda buf, ff=ff: wide_issue(g, 12, "s49", ff, buf, 2),
                      lambda buf, ff=ff: wide_read(g, lambda c: ("v", 128+(ff*4+c)*8), buf, 4), None))
    for hh in range(8):
        units.append((lambda buf, hh=hh: o_issue(hh, buf), lambda buf, hh=hh: o_read(hh, buf), None))
    run_ring(g, units)
    g("s_barrier")
    mark(g, opt, 3)
    idx_reg(g, 2, 11)
    g(f"""
    v_lshlrev_b32 v3, 4, v1
    s_and_b32 s43, s24, 1
    s_lshl_b32 s43, s43, 12
    s_lshr_b32 s47, s24, 1
    s_lshl_b32 s47, s47, 14
    s_or_b32 s43, s43, s47
    v_add_u32 v4, s43, v3
    v_add_u32 v4, {MEM}, v4
    s_lshl_b32 s43, s24, 14
    s_lshl_b32 s47, s26, 16
    s_add_u32 s43, s43, s47
    s_add_u32 s43, s43, {OM}
    v_add_u32 v5, s43, v3
    v_add_u32 v12, 4096, v5
    v_lshrrev_b32 v16, 5, v1
    v_lshlrev_b32 v6, 3, v1
    v_lshl_add_u32 v6, v16, 6, v6
    s_mul_i32 s43, s24, 2560
    v_add_u32 v6, s43, v6
    v_lshrrev_b32 v17, 2, v1
    v_and_b32 v18, 3, v1
    v_lshlrev_b32 v7, 3, v17
    v_lshl_add_u32 v7, v18, 7, v7
    v_lshrrev_b32 v19, 1, v18
    v_lshl_add_u32 v7, v19, 6, v7
    s_mul_i32 s43, s24, 640
    v_add_u32 v7, s43, v7
    s_and_b32 s43, s27, 3
    s_lshl_b32 s43, s43, 11
    s_lshr_b32 s47, s27, 2
    s_lshl_b32 s47, s47, 14
    s_add_u32 s43, s43, s47
    s_lshl_b32 s47, s26, 10
    s_add_u32 s43, s43, s47
    s_lshl_b32 s47, s24, 8
    s_add_u32 s43, s43, s47
    s_add_u32 s43, s43, {VM}
    v_lshlrev_b32 v8, 4, v17
    v_add_u32 v8, s43, v8
    v_and_b32 v19, 15, v1
    v_lshlrev_b32 v9, 2, v19
    v_bfe_u32 v20, v1, 4, 1
    v_lshl_add_u32 v9, v20, 8, v9
    v_lshl_add_u32 v9, v16, 7, v9
    s_lshl_b32 s43, s24, 9
    s_add_u32 s43, s43, {ROB}
    v_add_u32 v9, s43, v9
    v_lshlrev_b32 v10, 3, v1
    v_add_u32 v10, {ROB}, v10
    v_lshrrev_b32 v20, 4, v1
    v_lshlrev_b32 v13, 5, v20
    v_bfe_u32 v20, v1, 2, 1
    v_lshl_add_u32 v13, v20, 4, v13
    v_bfe_u32 v20, v1, 3, 1
    v_lshl_add_u32 v13, v20, 8, v13
    s_and_b32 s43, s27, 15
    s_lshl_b32 s43, s43, 9
    s_lshr_b32 s47, s27, 4
    s_lshl_b32 s47, s47, 14
    s_add_u32 s43, s43, s47
    s_lshl_b32 s47, s26, 7
    s_add_u32 s43, s43, s47
    s_add_u32 s43, s43, {MEM}
    v_add_u32 v13, s43, v13
    v_mov_b32 v20, {OOB}
    v_cmp_eq_u32 vcc, 0, v18
    s_mov_b32 s60, 0
    s_nop 0
    v_cndmask_b32 v8, v20, v8, vcc
    v_cndmask_b32 v13, v20, v13, vcc
    s_mov_b32 s67, -2
    s_mov_b32 s68, 0
    s_mov_b32 s69, 0
    """)
    g(f"""
    s_mov_b32 s61, {REC}
    s_mov_b32 s56, 0
    s_lshl_b32 s53, s26, 5
    s_add_u32 s53, s53, s27
    """)
    can_regs(g, opt, 1, 0, 0, 119, "s53", opt.get("cW", 1), 20, 19)
    g("s_lshl_b32 s43, s25, 5\ns_add_u32 s43, s43, s27")
    stamp_init(g, opt, "s43")
    par_init(g, opt, 16)
    rec_at(g, "s50", "s61", "0")
    g(f"s_mov_b32 s62, {REC}\ns_mov_b32 s60, -1\ns_mov_b32 s69, {opt.get('dO', 0)}\ns_mov_b32 s53, {opt.get('tO', 9)}")
    def ldm(f, so="s50"): return f"buffer_load_dwordx4 {vr(16+4*f,4)}, v4, s[4:7], {so} offen offset:{f*1024} sc1"
    def ldo(f, so="s65"): return f"buffer_load_dwordx4 {vr(32+4*f,4)}, v{5 if f < 4 else 12}, s[4:7], {so} offen offset:{(f%4)*1024} sc1"
    def gather4(dst):
        g("s_nop 1")
        for q in (1, 2, 3):
            g(f"v_mov_b32_dpp v{dst+q}, v{dst} quad_perm:[{q},{q},{q},{q}] row_mask:0xf bank_mask:0xf")
    for i in range(16): g(f"v_mov_b32 v{64+i}, 0")
    g("V_LOOP:")
    stamp(g, opt, 0)
    for f in range(4):
        g(ldm(f))
        if f < 3 and opt.get("stV", 4): g(f"s_nop {opt.get('stV', 4)-1}")
    g("""
    s_add_u32 s60, s60, 1
    s_mov_b32 s65, s50
    s_mov_b32 s44, 0
    """)
    rec_next(g, "s62", "s56", "s47")
    g("s_add_u32 s47, s60, 1")
    rec_at(g, "s50", "s62", "s47")
    for i in range(16): g(f"v_mov_b32 v{80+i}, 0")
    R = [g.lab("VR") for f in range(4)]; C = [g.lab("VC") for f in range(4)]
    g("s_waitcnt vmcnt(3)")
    g(cmp1(16))
    g(f"s_cbranch_vccnz {R[0]}\n{C[0]}:")
    for f in range(4):
        for c in range(4):
            g(f"{SMF} {vr(64+4*c,4)}, {vr(16+4*f,4)}, {vr(128+(f*4+c)*8,8)}, v2")
            if c == 2 and f < 3:
                g(f"s_waitcnt vmcnt({2-f})")
                g(cmp1(16+4*(f+1)))
            if c == 3 and f < 3:
                g(f"s_cbranch_vccnz {R[f+1]}\n{C[f+1]}:")
    stamp(g, opt, 1)
    for c in range(4):
        a = 64 + 4*c
        if c in (1, 2): g("s_nop 0")
        g(f"v_add_f32 v{96+2*c}, v{a}, v{a+1}")
        g(f"v_add_f32 v{97+2*c}, v{a+2}, v{a+3}")
        g(f"ds_write_b64 v6, {vr(96+2*c,2)} offset:{RVB+640*c}")
    g("s_waitcnt lgkmcnt(0)\ns_barrier")
    for w in range(4): g(f"ds_read_b64 {vr(96+2*w,2)}, v7 offset:{RVB+2560*w}")
    for i in range(16): g(f"v_mov_b32 v{64+i}, 0")
    g("""
    s_waitcnt lgkmcnt(2)
    v_pk_add_f32 v[96:97], v[96:97], v[98:99]
    s_waitcnt lgkmcnt(0)
    v_pk_add_f32 v[100:101], v[100:101], v[102:103]
    v_pk_add_f32 v[96:97], v[96:97], v[100:101]
    v_cvt_pk_bf16_f32 v104, v96, v97
    v_min_u32 v104, s67, v104
    """)
    gather4(104)
    g("buffer_store_dwordx4 v[104:107], v8, s[4:7], s65 offen sc1")
    stamp(g, opt, 2)
    stamp_dump(g, opt)
    g("s_cmp_eq_u32 s60, 63\ns_cbranch_scc1 V_END")
    g("s_mov_b32 s44, 0")
    if opt.get("can", 1): probe(g, opt, "O", 0, 32)
    else: backoff(g, opt.get("dO", 0))
    stamp(g, opt, 3)
    for f in range(8):
        g(ldo(f))
        if f < 7 and opt.get("stO", 8): g(f"s_nop {opt.get('stO', 8)-1}")
    adapt(g, opt, "O")
    RO = [g.lab("OR") for f in range(8)]; CO = [g.lab("OC") for f in range(8)]
    g("s_waitcnt vmcnt(7)")
    g(cmp1(32))
    g(f"s_cbranch_vccnz {RO[0]}\n{CO[0]}:")
    stamp(g, opt, 4)
    fC = opt.get("fC", 0) if opt.get("can", 1) else 99
    for f in range(8):
        for c in range(4):
            g(f"{SMF} {vr(80+4*c,4)}, {vr(32+4*f,4)}, {ar((f*4+c)*8,8)}, v2")
            if c == 0 and f == fC: g("buffer_store_dword v1, v119, s[4:7], s50 offen sc1")
            if c == 2 and f < 7:
                g(f"s_waitcnt vmcnt({6-f+(1 if f >= fC else 0)})")
                g(cmp1(32+4*(f+1)))
            if c == 3 and f < 7:
                g(f"s_cbranch_vccnz {RO[f+1]}\n{CO[f+1]}:")
    stamp(g, opt, 5)
    g("""
    s_mov_b32 exec_hi, 0
    v_add_f32 v96, v80, v81
    v_add_f32 v98, v82, v83
    s_nop 0
    v_add_f32 v97, v84, v85
    v_add_f32 v99, v86, v87
    s_not_b64 exec, exec
    s_nop 0
    v_add_f32 v96, v88, v89
    v_add_f32 v98, v90, v91
    v_add_f32 v97, v92, v93
    v_add_f32 v99, v94, v95
    s_mov_b64 exec, -1
    """)
    if fC == 8: g("buffer_store_dword v1, v119, s[4:7], s50 offen sc1")
    else: g("s_nop 0")
    g("""
    v_permlane32_swap_b32 v96, v98
    v_permlane32_swap_b32 v97, v99
    s_nop 0
    v_add_f32 v96, v96, v98
    v_add_f32 v97, v97, v99
    ds_write2_b32 v9, v96, v97 offset0:0 offset1:16
    s_waitcnt lgkmcnt(0)
    s_barrier
    s_cmp_lg_u32 s24, 0
    s_cbranch_scc1 V_NEXT
    """)
    for k in range(4): g(f"ds_read_b64 {vr(96+2*k,2)}, v10 offset:{512*k}")
    g("""
    s_waitcnt lgkmcnt(2)
    v_pk_add_f32 v[96:97], v[96:97], v[98:99]
    s_waitcnt lgkmcnt(0)
    v_pk_add_f32 v[100:101], v[100:101], v[102:103]
    v_pk_add_f32 v[96:97], v[96:97], v[100:101]
    v_cvt_pk_bf16_f32 v112, v96, v97
    v_min_u32 v112, s67, v112
    """)
    gather4(112)
    g("buffer_store_dwordx4 v[112:115], v13, s[4:7], s50 offen sc1")
    stamp(g, opt, 6)
    g("V_NEXT:")
    g("s_barrier")
    d = opt.get("dV", 0)
    while d > 0:
        g(f"s_nop {min(d, 16)-1}"); d -= 16
    g("s_branch V_LOOP")
    for (RR, CC, n, ldf, base, inc) in ((R, C, 4, ldm, 16, 1), (RO, CO, 8, ldo, 32, 0x10000)):
        for f in range(n):
            g(f"{RR[f]}:")
            g(f"s_add_u32 s68, s68, {inc}\ns_add_u32 s44, s44, 1\ns_cmp_gt_u32 s44, {TMO}\ns_cbranch_scc1 V_END")
            for k in range(f, n): g(ldf(k, "s65"))
            g("s_waitcnt vmcnt(0)")
            g(cmp1(base+4*f))
            g(f"s_cbranch_vccz {CC[f]}\ns_branch {RR[f]}")
    g("V_END:")
    g("s_endpgm")
```

```python
import sys, os
sys.path.insert(0, os.path.dirname(os.path.abspath(__file__)))
from common import *
from k0 import gen_k0, K0_GRID
from gemm import gen_gemm, gen_gemm64
LDS_BYTES = 163840
BC = LDS_BYTES - 16

def task_lists():
    L = {}
    L[3] = [("K64",0,8,0,4), ("K",0,16,1,1), ("V",0,16,1,1), ("Q",0,8,0,4), ("Q",8,8,0,4)]
    first = {4: [("K64",8,6,0,4)], 5: [("K64",14,2,0,4), ("V64",0,4,0,4)], 6: [("V64",4,6,0,4)], 7: [("V64",10,6,0,4)]}
    for i, c in enumerate((4, 5, 6, 7)):
        t = "KV"[i >> 1]; t0 = 8*(i & 1)
        L[c] = first[c] + [("F1",7*(i&1),7,4*(i>>1),4), (t,t0,8,2,2), ("F2",0,4,2*i,2), (t,t0,8,4,4), ("Q",4*i,4,4,4)]
    return L

def bcast_atomic(g, soff, dst):
    sk = g.lab("BA")
    g(f"""
    s_cmp_lg_u32 s24, 0
    s_cbranch_scc1 {sk}
    v_mov_b32 v2, 1
    v_mov_b32 v3, 0
    v_mov_b32 v4, {BC}
    s_mov_b64 exec, 1
    buffer_atomic_add v2, v3, s[4:7], {soff} offen sc0 sc1
    s_waitcnt vmcnt(0)
    ds_write_b32 v4, v2
    s_mov_b64 exec, -1
    s_waitcnt lgkmcnt(0)
    {sk}:
    s_barrier
    v_mov_b32 v4, {BC}
    ds_read_b32 v2, v4
    s_waitcnt lgkmcnt(0)
    v_readfirstlane_b32 {dst}, v2
    s_barrier
    """)

def gen_main(g, opt):
    g("""
    s_cmp_ge_u32 s2, 256
    s_cbranch_scc1 M_END
    """)
    srd(g, 4, A_WS, WS_BYTES)
    g("""
    v_and_b32 v1, 63, v0
    v_lshrrev_b32 v2, 6, v0
    s_getreg_b32 s22, hwreg(HW_REG_XCC_ID, 0, 4)
    v_readfirstlane_b32 s24, v2
    s_mov_b32 s23, 0
    s_waitcnt lgkmcnt(0)
    M_TRY:
    s_add_u32 s25, s22, s23
    s_and_b32 s25, s25, 7
    s_lshl_b32 s26, s25, 8
    """)
    g(f"s_add_u32 s26, s26, {FLG+F_CLS}")
    bcast_atomic(g, "s26", "s27")
    g("""
    s_cmp_lt_u32 s27, 32
    s_cbranch_scc1 M_GOT
    s_add_u32 s23, s23, 1
    s_cmp_lt_u32 s23, 8
    s_cbranch_scc1 M_TRY
    s_branch M_END
    M_GOT:
    s_mov_b32 s20, s25
    s_mov_b32 s21, s27
    """)
    mark(g, opt, 0)
    if opt.get("chain", True):
        if opt.get("mix", 1):
            g("""
            s_cmp_ge_u32 s25, 3
            s_cbranch_scc1 W_LOOP
            s_lshl_b32 s26, s25, 5
            s_add_u32 s26, s26, s27
            s_mul_i32 s27, s26, 21846
            s_lshr_b32 s27, s27, 16
            s_mul_i32 s25, s27, 3
            s_sub_u32 s25, s26, s25
            """)
            if opt.get("marks"): g("s_mov_b32 s20, s25\ns_mov_b32 s21, s27")
        g("""
        s_cmp_eq_u32 s25, 0
        s_cbranch_scc1 R_S
        """)
        if opt.get("solo"): g("s_branch M_END")
        g("""
        s_cmp_lt_u32 s25, 3
        s_cbranch_scc1 R_VO
        """)
    elif not opt.get("allwork"):
        g("s_cmp_lt_u32 s25, 3\ns_cbranch_scc1 M_END")
    g("W_LOOP:")
    g(f"s_lshl_b32 s26, s20, 8\ns_add_u32 s26, s26, {FLG+F_Q}")
    bcast_atomic(g, "s26", "s27")
    g("s_mov_b32 s19, s27")
    tmark(g, opt, 0)
    TL = task_lists()
    for c in range(3, 8):
        nc = g.lab("TC")
        if c < 7: g(f"s_cmp_lg_u32 s20, {c}\ns_cbranch_scc1 {nc}")
        start = 0
        for typ, t0, nt, b0, nb in TL[c]:
            nx = g.lab("TK"); n = nt*nb
            mul = (65536 + nt - 1)//nt
            assert all((i*mul) >> 16 == i//nt for i in range(n))
            g(f"""
            s_cmp_lt_u32 s27, {start+n}
            s_cbranch_scc0 {nx}
            s_sub_u32 s29, s27, {start}
            s_mul_i32 s28, s29, {mul}
            s_lshr_b32 s28, s28, 16
            s_mul_i32 s26, s28, {nt}
            s_sub_u32 s29, s29, s26
            s_add_u32 s29, s29, {t0}
            s_add_u32 s28, s28, {b0}
            s_branch T_{typ}
            {nx}:
            """)
            start += n
        if c < 7: g(f"s_branch W_END\n{nc}:")
    g("W_END:")
    mark(g, opt, 1)
    if opt.get("ap", True):
        g(f"""
        s_mov_b32 s27, s21
        s_cmp_eq_u32 s20, 3
        s_cbranch_scc1 R_A
        s_sub_u32 s26, s20, 4
        s_branch R_P
        """)
    g("s_branch M_END")
    for typ in ("K", "V", "Q", "F1", "F2"):
        gen_gemm(g, typ, "W_LOOP", "M_END", opt)
    for typ in "KV": gen_gemm64(g, typ, "W_LOOP", opt)
    if opt.get("chain", True):
        from s4 import gen_s
        from vo2 import gen_vo
        gen_s(g, opt); gen_vo(g, opt)
    if opt.get("ap", True):
        from ap import gen_a, gen_p
        gen_a(g, opt); gen_p(g, opt)
    g("M_END2:")
    mark(g, opt, 2)
    g("M_END:")
    g("s_endpgm")

def build(opt=None):
    opt = opt or {}
    ref = open("cdna_kernels/" + NAME + ".s.ref").read().split("\n")
    hdr = [l for l in ref if l.startswith(";") and "@launch" not in l and "Override" not in l and "grid=ceil" not in l]
    out = "\n".join(hdr) + "\n"
    out += f"; @launch kernel=prep_kernel grid=({K0_GRID},1,1) block=(256,1,1) lds=1024\n"
    out += f"; @launch kernel={NAME}_kernel grid=(256,1,1) block=(256,1,1) lds={LDS_BYTES}\n"
    out += '.amdgcn_target "amdgcn-amd-amdhsa--gfx950"\n.text\n'
    g = G(); gen_k0(g, opt)
    out += ".globl prep_kernel\n.p2align 8\n.type prep_kernel,@function\nprep_kernel:\n" + g.text()
    g = G(); gen_main(g, opt)
    out += f".globl {NAME}_kernel\n.p2align 8\n.type {NAME}_kernel,@function\n{NAME}_kernel:\n" + g.text()
    out += '.section .rodata,"a"\n.p2align 6\n' + kdesc("prep_kernel", 128, 128) + ".p2align 6\n" + kdesc(NAME + "_kernel", 512, 256)
    return out

if __name__ == "__main__":
    import json
    opt = json.loads(sys.argv[2]) if len(sys.argv) > 2 else {}
    open(sys.argv[1], "w").write(build(opt))
```

```python
from common import *
from gemm import f2u, poll_flags
from chain import MF32, MF16, CEXP, chk, run_ring, TMO, stamp, stamp_dump

def gen_a(g, opt):
    Q, KXR, VXR, KMR, VMR = 32, 64, 96, 128, 144
    MKD, MKM, ONE = 16, 20, 28
    SA0, SM0, SB0, SB1, SM1 = 160, 164, 168, 172, 176
    P0X, P0M, P1X, P1M = 180, 182, 184, 188
    L0, L1, O0, O1, OUT = 192, 196, 200, 32, 64
    g("R_A:")
    g(f"""
    v_lshlrev_b32 v3, 4, v1
    v_and_b32 v11, 15, v1
    v_lshrrev_b32 v12, 4, v1
    v_add_u32 v5, 4096, v3
    v_and_b32 v13, 7, v1
    v_lshlrev_b32 v7, 4, v13
    v_lshl_add_u32 v7, v12, 7, v7
    v_lshlrev_b32 v8, 4, v11
    v_and_b32 v13, 1, v12
    v_lshl_add_u32 v8, v13, 3, v8
    v_mov_b32 v14, {hex(f2u(-1e30))}
    v_mov_b32 v15, 0
    v_lshlrev_b32 v12, 2, v12
    """)
    for r in range(4):
        g(f"v_add_u32 v13, {r}, v12\nv_cmp_le_u32 vcc, v13, v11\ns_nop 1\nv_cndmask_b32 v{MKD+r}, v14, v15, vcc")
    g("v_cmp_gt_u32 vcc, 32, v1\ns_nop 1")
    for r in range(4): g(f"v_cndmask_b32 v{MKM+r}, v14, v15, vcc")
    for r in range(4): g(f"v_mov_b32 v{ONE+r}, 0x3f803f80")
    g(f"""
    s_lshl_b32 s49, s27, 13
    s_lshl_b32 s43, s24, 18
    s_add_u32 s49, s49, s43
    s_add_u32 s50, s49, {QX}
    s_add_u32 s51, s49, {KX}
    s_add_u32 s52, s49, {VX}
    s_and_b32 s49, s27, 3
    s_lshl_b32 s49, s49, 11
    s_lshr_b32 s47, s27, 2
    s_lshl_b32 s47, s47, 14
    s_add_u32 s62, s49, s47
    s_add_u32 s62, s62, {REC+VM}
    s_lshl_b32 s63, s27, 11
    s_add_u32 s63, s63, {KM}
    s_lshl_b32 s49, s27, 12
    s_add_u32 s49, s49, s43
    s_add_u32 s55, s49, {OX}
    s_and_b32 s49, s27, 3
    s_lshl_b32 s49, s49, 2
    s_lshr_b32 s43, s27, 2
    s_lshl_b32 s43, s43, 7
    s_add_u32 s49, s49, s43
    s_lshl_b32 s43, s24, 10
    s_add_u32 s49, s49, s43
    s_add_u32 s56, s49, {FLG+F_O}
    s_lshr_b32 s57, s27, 1
    s_lshl_b32 s57, s57, 7
    s_add_u32 s57, s57, {FLG+F_KVQ}
    s_mov_b32 s60, s24
    s_mov_b32 s66, {hex(f2u(CEXP))}
    v_mov_b32 v9, 0
    v_mov_b32 v10, 1
    v_mov_b32 v6, {3*512}
    """)
    par_init(g, opt, 32, "M_END")
    def km_loads():
        for b in range(4): g(f"buffer_load_dwordx4 {vr(KMR+4*b,4)}, v7, s[4:7], s53 offen offset:{512*b} sc1")
    def vm_loads():
        for t in range(8): g(f"buffer_load_dwordx2 {vr(VMR+2*t,2)}, v8, s[4:7], s54 offen offset:{256*t} sc1")
    def maxchk(base, n, st):
        R = list(range(base, base+n, st))
        g(f"v_max3_u32 v11, v{R[0]}, v{R[1]}, v{R[2]}")
        i = 3
        while i + 1 < len(R):
            g(f"v_max3_u32 v11, v11, v{R[i]}, v{R[i+1]}"); i += 2
        if i < len(R): g(f"v_max_u32 v11, v11, v{R[i]}")
        g("v_cmp_eq_u32 vcc, -1, v11")
    RK, CK, RV, CV, NOFL = g.lab("ARK"), g.lab("ACK"), g.lab("ARV"), g.lab("ACV"), g.lab("ANF")
    g("A_LOOP:")
    g(f"""
    s_mul_i32 s43, s60, 43
    s_lshr_b32 s43, s43, 8
    s_mul_i32 s43, s43, {2*MB - 6*RECB}
    s_mul_i32 s54, s60, {RECB}
    s_add_u32 s54, s54, s43
    s_add_u32 s54, s54, s62
    s_bitcmp1_b64 s[86:87], s60
    s_cselect_b32 s43, 8192, 0
    s_add_u32 s54, s54, s43
    s_lshl_b32 s53, s60, 16
    s_add_u32 s53, s53, s63
    s_cmp_lt_u32 s60, 8
    s_cselect_b32 s43, 0, 4
    s_and_b32 s43, s43, s60
    s_cbranch_scc1 {NOFL}
    s_lshr_b32 s45, s60, 3
    s_lshl_b32 s45, s45, 11
    s_add_u32 s45, s45, s57
    s_add_u32 s46, s45, 8
    s_lshr_b32 s47, s60, 1
    s_add_u32 s47, s47, 8
    s_lshl_b32 s47, s47, 11
    s_add_u32 s47, s47, s57
    s_cmp_lt_u32 s60, 8
    s_cselect_b32 s45, s47, s45
    """)
    poll_flags(g, 2, "s45", "M_END")
    poll_flags(g, 1, "s46", "M_END")
    g(f"{NOFL}:")
    for base, so in ((Q, "s50"), (KXR, "s51")):
        for q in range(8): g(f"buffer_load_dwordx4 {vr(base+4*q,4)}, v{3 if q < 4 else 5}, s[4:7], {so} offen offset:{1024*(q%4)} sc1")
    km_loads()
    for q in range(8): g(f"buffer_load_dwordx4 {vr(VXR+4*q,4)}, v{3 if q < 4 else 5}, s[4:7], s52 offen offset:{1024*(q%4)} sc1")
    g("s_mov_b32 s44, 0")
    g("s_waitcnt vmcnt(12)")
    for b in range(4):
        for S, A, X, ini in ((SA0, KXR+4*b, Q+4*b, vr(MKD,4)), (SB0, KXR+4*b, Q+16+4*b, "0"), (SB1, KXR+16+4*b, Q+16+4*b, vr(MKD,4))):
            g(f"{MF32} {vr(S,4)}, {vr(A,4)}, {vr(X,4)}, {ini if b == 0 else vr(S,4)}")
    g("s_waitcnt vmcnt(8)")
    maxchk(KMR, 16, 4)
    g(f"s_cbranch_vccnz {RK}\n{CK}:")
    for b in range(4):
        for S, X in ((SM0, Q+4*b), (SM1, Q+16+4*b)):
            g(f"{MF32} {vr(S,4)}, {vr(KMR+4*b,4)}, {vr(X,4)}, {vr(MKM,4) if b == 0 else vr(S,4)}")
    vm_loads()
    g(f"""
    v_max3_f32 v12, v{SA0}, v{SA0+1}, v{SA0+2}
    v_max3_f32 v14, v{SB0}, v{SB0+1}, v{SB0+2}
    v_max3_f32 v15, v{SB0+3}, v{SB1}, v{SB1+1}
    v_max3_f32 v14, v14, v{SB1+2}, v{SB1+3}
    v_max3_f32 v12, v12, v{SA0+3}, v{SM0}
    v_max3_f32 v13, v{SM0+1}, v{SM0+2}, v{SM0+3}
    v_max3_f32 v14, v14, v15, v{SM1}
    v_max3_f32 v15, v{SM1+1}, v{SM1+2}, v{SM1+3}
    v_max_f32 v12, v12, v13
    v_max_f32 v14, v14, v15
    v_mov_b32 v13, v12
    v_mov_b32 v15, v14
    s_nop 1
    v_permlane32_swap_b32 v12, v13
    v_permlane32_swap_b32 v14, v15
    s_nop 0
    v_max_f32 v12, v12, v13
    v_max_f32 v14, v14, v15
    v_mov_b32 v13, v12
    v_mov_b32 v15, v14
    s_nop 1
    v_permlane16_swap_b32 v12, v13
    v_permlane16_swap_b32 v14, v15
    s_nop 0
    v_max_f32 v12, v12, v13
    v_max_f32 v14, v14, v15
    v_mul_f32 v12, s66, v12
    v_mul_f32 v14, s66, v14
    """)
    for i in range(8): g(f"v_fma_f32 v{SA0+i}, v{SA0+i}, s66, -v12")
    for i in range(12): g(f"v_fma_f32 v{SB0+i}, v{SB0+i}, s66, -v14")
    for i in range(20): g(f"v_exp_f32 v{SA0+i}, v{SA0+i}")
    for i in range(10): g(f"v_cvt_pk_bf16_f32 v{P0X+i}, v{SA0+2*i}, v{SA0+2*i+1}")
    g("s_waitcnt vmcnt(8)")
    g(f"{MF16} {vr(L0,4)}, {vr(ONE,2)}, {vr(P0X,2)}, 0")
    g(f"{MF32} {vr(L1,4)}, {vr(ONE,4)}, {vr(P1X,4)}, 0")
    for t in range(8):
        g(f"{MF16} {vr(O0+4*t,4)}, {vr(VXR+4*t,2)}, {vr(P0X,2)}, 0")
        g(f"{MF32} {vr(O1+4*t,4)}, {vr(VXR+4*t,4)}, {vr(P1X,4)}, 0")
    g(f"{MF16} {vr(L0,4)}, {vr(ONE,2)}, {vr(P0M,2)}, {vr(L0,4)}")
    g(f"{MF16} {vr(L1,4)}, {vr(ONE,2)}, {vr(P1M,2)}, {vr(L1,4)}")
    g("s_waitcnt vmcnt(0)")
    maxchk(VMR, 16, 2)
    g(f"s_cbranch_vccnz {RV}\n{CV}:")
    for t in range(8): g(f"{MF16} {vr(O0+4*t,4)}, {vr(VMR+2*t,2)}, {vr(P0M,2)}, {vr(O0+4*t,4)}")
    g(f"v_rcp_f32 v{L0}, v{L0}\nv_rcp_f32 v{L1}, v{L1}")
    for t in range(8): g(f"{MF16} {vr(O1+4*t,4)}, {vr(VMR+2*t,2)}, {vr(P1M,2)}, {vr(O1+4*t,4)}")
    g("s_add_u32 s48, s55, 131072")
    for O, L, so, ob in ((O0, L0, "s55", OUT), (O1, L1, "s48", OUT+16)):
        for i in range(4):
            for j in range(0, 8, 2): g(f"v_pk_mul_f32 {vr(O+8*i+j,2)}, {vr(O+8*i+j,2)}, {vr(L,2)} op_sel_hi:[1,0]")
            for j in range(4): g(f"v_cvt_pk_bf16_f32 v{ob+4*i+j}, v{O+8*i+2*j}, v{O+8*i+2*j+1}")
            g(f"buffer_store_dwordx4 {vr(ob+4*i,4)}, v3, s[4:7], {so} offen offset:{1024*i} sc1")
    g(f"""
    s_add_u32 s60, s60, 4
    s_add_u32 s50, s50, {4*262144}
    s_add_u32 s51, s51, {4*262144}
    s_add_u32 s52, s52, {4*262144}
    s_add_u32 s55, s55, {4*262144}
    s_waitcnt vmcnt(0)
    s_mov_b64 exec, 1
    buffer_store_dword v10, v9, s[4:7], s56 offen sc1
    s_mov_b64 exec, -1
    s_add_u32 s56, s56, 4096
    s_cmp_lt_u32 s60, 64
    s_cbranch_scc1 A_LOOP
    s_branch M_END2
    {RK}:
    s_add_u32 s44, s44, 1
    s_cmp_gt_u32 s44, {TMO}
    s_cbranch_scc1 M_END
    s_sleep {opt.get("aS", 4)}
    buffer_load_dword v11, v6, s[4:7], s53 offen sc1
    s_waitcnt vmcnt(0)
    v_cmp_eq_u32 vcc, -1, v11
    s_cbranch_vccnz {RK}
    """)
    km_loads()
    g("s_waitcnt vmcnt(0)")
    maxchk(KMR, 16, 4)
    g(f"s_cbranch_vccz {CK}\ns_branch {RK}")
    g(f"""
    {RV}:
    s_add_u32 s44, s44, 1
    s_cmp_gt_u32 s44, {TMO}
    s_cbranch_scc1 M_END
    """)
    vm_loads()
    g("s_waitcnt vmcnt(0)")
    maxchk(VMR, 16, 2)
    g(f"s_cbranch_vccz {CV}\ns_branch {RV}")

def gen_p(g, opt):
    g("R_P:")
    srd(g, 8, A_WO, 8*MB); srd(g, 12, A_X, 4*MB); srd(g, 16, A_OUT, 4*MB)
    g(f"""
    s_lshl_b32 s40, s24, 15
    s_lshl_b32 s42, s24, 21
    s_lshl_b32 s43, s27, 6
    s_add_u32 s42, s42, s43
    v_bfe_u32 v8, v1, 4, 1
    v_lshlrev_b32 v8, 1, v8
    v_xor_b32 v9, v8, v1
    v_and_b32 v9, 3, v9
    v_lshrrev_b32 v10, 2, v1
    v_lshlrev_b32 v2, 11, v10
    v_lshl_add_u32 v2, v9, 4, v2
    v_lshlrev_b32 v10, 6, v10
    v_and_b32 v9, 3, v1
    v_lshl_add_u32 v10, v9, 3, v10
    v_add_u32 v10, s40, v10
    v_lshl_add_u32 v4, v8, 4, v10
    v_xor_b32 v8, 2, v8
    v_lshl_add_u32 v5, v8, 4, v10
    s_waitcnt lgkmcnt(0)
    """)
    def issue(hh, buf):
        for i in range(8):
            if i % 4 == 0: g(f"s_add_u32 m0, s40, {buf*8192 + i*1024}")
            g(f"s_add_u32 s41, s42, {hh*262144 + i*32768 - (i&3)*1024}")
            g(f"buffer_load_dwordx4 v2, s[8:11], s41 offen offset:{(i&3)*1024} lds")
    def read(hh, buf):
        for kbl in range(4):
            for t in range(2):
                for j in range(2):
                    g(f"ds_read_b64_tr_b16 {ar(((hh*4+kbl)*2+t)*4+2*j,2)}, v{4+t} offset:{buf*8192+kbl*2048+j*1024}")
    run_ring(g, [(lambda buf, hh=hh: issue(hh, buf), lambda buf, hh=hh: read(hh, buf), None) for hh in range(8)], D=opt.get("pD", 4))
    g(f"""
    s_barrier
    v_lshlrev_b32 v3, 4, v1
    s_lshl_b32 s43, s24, 11
    v_add_u32 v4, s43, v3
    s_lshl_b32 s43, s24, 10
    v_add_u32 v5, s43, v3
    s_lshl_b32 s43, s24, 3
    v_add_u32 v6, s43, v3
    v_and_b32 v8, 15, v1
    v_lshlrev_b32 v7, 11, v8
    v_lshrrev_b32 v8, 4, v1
    v_lshl_add_u32 v7, v8, 3, v7
    s_lshl_b32 s43, s24, 5
    s_lshl_b32 s47, s27, 6
    s_add_u32 s43, s43, s47
    v_add_u32 v7, s43, v7
    s_lshl_b32 s50, s26, 17
    s_lshl_b32 s43, s24, 15
    s_add_u32 s50, s50, s43
    s_add_u32 s50, s50, {OX}
    s_lshl_b32 s51, s26, 15
    s_lshl_b32 s43, s27, 10
    s_add_u32 s52, s51, s43
    s_add_u32 s52, s52, {GB}
    s_lshr_b32 s53, s26, 1
    s_lshl_b32 s53, s53, 10
    s_add_u32 s53, s53, {FLG+F_O}
    s_lshr_b32 s54, s27, 3
    s_lshl_b32 s54, s54, 2
    s_add_u32 s54, s54, {FLG+F_G}
    v_lshrrev_b32 v8, 2, v1
    v_and_b32 v9, 3, v1
    v_lshlrev_b32 v9, 2, v9
    v_lshl_add_u32 v9, v8, 7, v9
    v_mov_b32 v10, {OOB}
    v_cmp_gt_u32 s[56:57], 32, v1
    v_cmp_gt_u32 s[58:59], 33, v1
    s_mov_b32 s60, -1
    s_mov_b32 s61, 0
    P_WAIT:
    """)
    def flag_addr():
        g("""
        s_lshl_b32 s43, s61, 11
        s_add_u32 s43, s43, s53
        s_lshr_b32 s47, s61, 1
        s_lshl_b32 s47, s47, 7
        s_add_u32 s47, s47, s54
        v_add_u32 v11, s43, v9
        v_mov_b32 v12, s47
        s_cmp_lt_u32 s61, 32
        s_cselect_b64 s[62:63], s[58:59], 0
        v_cndmask_b32 v11, v12, v11, s[56:57]
        s_add_u32 s61, s61, 1
        v_cndmask_b32 v11, v10, v11, s[62:63]
        """)
    def head():
        g("""
        buffer_load_dword v13, v11, s[4:7], 0 offen sc1
        buffer_load_dwordx2 v[16:17], v6, s[4:7], s52 offen sc1
        buffer_load_dwordx2 v[18:19], v7, s[12:15], s55 offen
        """)
    def ld(k):
        if k % 4 == 0: g(f"s_add_u32 s41, s50, {k*1024}")
        g(f"buffer_load_dwordx4 {vr(64+4*k,4)}, v3, s[4:7], s41 offen offset:{(k%4)*1024} sc1")
    def bump():
        g("s_add_u32 s50, s50, 524288\ns_add_u32 s52, s52, 131072")
    def mm(k):
        for t in range(2):
            g(f"{MF32} {vr(24+4*t,4)}, {ar((k*2+t)*4,4)}, {vr(64+4*k,4)}, {'0' if k == 0 else vr(24+4*t,4)}")
    g("s_add_u32 s61, s60, 1")
    flag_addr()
    g(f"""
    s_mov_b32 s44, 0
    P_POLL:
    buffer_load_dword v13, v11, s[4:7], 0 offen sc1
    s_waitcnt vmcnt(0)
    v_cmp_ne_u32 vcc, 0, v13
    s_cmp_eq_u64 vcc, s[58:59]
    s_cbranch_scc1 P_GO
    s_sleep {opt.get("pS", 4)}
    s_add_u32 s44, s44, 1
    s_cmp_lt_u32 s44, 80000
    s_cbranch_scc1 P_POLL
    s_branch M_END
    P_GO:
    s_add_u32 s55, s60, 1
    s_lshl_b32 s55, s55, 17
    s_add_u32 s55, s55, s51
    """)
    flag_addr(); head()
    for k in range(32): ld(k)
    bump()
    g("""
    P_LOOP:
    s_add_u32 s60, s60, 1
    s_mov_b32 s49, s55
    s_waitcnt vmcnt(32)
    v_cmp_ne_u32 vcc, 0, v13
    v_lshlrev_b32 v48, 16, v16
    v_and_b32 v49, 0xffff0000, v16
    v_lshlrev_b32 v50, 16, v17
    v_and_b32 v51, 0xffff0000, v17
    v_lshlrev_b32 v52, 16, v18
    v_and_b32 v53, 0xffff0000, v18
    v_lshlrev_b32 v54, 16, v19
    v_and_b32 v55, 0xffff0000, v19
    s_cmp_eq_u64 vcc, s[58:59]
    s_cselect_b32 s48, 1, 0
    s_cbranch_scc0 P_SOLO
    s_add_u32 s55, s55, 131072
    """)
    flag_addr(); head()
    for k in range(32):
        g("s_waitcnt vmcnt(34)"); mm(k); ld(k)
    bump()
    g("s_branch P_RED\nP_SOLO:")
    for k in range(32):
        g(f"s_waitcnt vmcnt({31-k})"); mm(k)
    g(f"""
    P_RED:
    s_nop 7
    ds_write_b128 v4, v[24:27]
    ds_write_b128 v4, v[28:31] offset:1024
    s_waitcnt lgkmcnt(0)
    s_barrier
    s_cmp_ge_u32 s24, 2
    s_cbranch_scc1 P_NEXT
    """)
    for w in range(4): g(f"ds_read_b128 {vr(32+4*w,4)}, v5 offset:{2048*w}")
    g("s_waitcnt lgkmcnt(0)")
    for i in range(4):
        g(f"v_add_f32 v{32+i}, v{32+i}, v{36+i}")
        g(f"v_add_f32 v{40+i}, v{40+i}, v{44+i}")
    for i in range(4): g(f"v_add_f32 v{32+i}, v{32+i}, v{40+i}")
    def rnd(a):
        for i in range(2):
            g(f"v_cvt_pk_bf16_f32 v{56+i}, v{a+2*i}, v{a+2*i+1}")
        for i in range(2):
            g(f"v_lshlrev_b32 v{a+2*i}, 16, v{56+i}")
            g(f"v_and_b32 v{a+2*i+1}, 0xffff0000, v{56+i}")
    rnd(32)
    for i in range(4): g(f"v_mul_f32 v{32+i}, v{32+i}, v{48+i}")
    rnd(32)
    for i in range(4): g(f"v_add_f32 v{32+i}, v{32+i}, v{52+i}")
    g("""
    v_cvt_pk_bf16_f32 v58, v32, v33
    v_cvt_pk_bf16_f32 v59, v34, v35
    buffer_store_dwordx2 v[58:59], v7, s[16:19], s49 offen
    P_NEXT:
    v_xor_b32 v4, 8192, v4
    v_xor_b32 v5, 8192, v5
    s_cmp_lg_u32 s48, 0
    s_cbranch_scc1 P_LOOP
    s_cmp_lt_u32 s60, 31
    s_cbranch_scc1 P_WAIT
    s_branch M_END2
    """)
```

```python
from common import *
from gemm import f2u
import math
TMO = 30000
SMF = "v_smfmac_f32_16x16x64_bf16"
MF32 = "v_mfma_f32_16x16x32_bf16"
MF16 = "v_mfma_f32_16x16x16_bf16"
CEXP = 128 ** -0.5 * math.log2(math.e)

def delay(g, clks):
    clks = int(clks)
    if clks >= 128:
        g(f"s_sleep {min(127, clks//64)}"); clks %= 64
    while clks >= 64:
        g("s_nop 15"); clks -= 64
    if clks >= 4: g(f"s_nop {clks//4-1}")

def stamp(g, opt, k):
    if not opt.get("stamps"): return
    if opt.get("only") is not None and k not in opt["only"]: return
    g(f"{'s_memtime' if opt.get('clk') else 's_memrealtime'} s[{72+2*k}:{73+2*k}]")

def stamp_init(g, opt, idreg):
    if not opt.get("stamps"): return
    g(f"""
    s_lshl_b32 s70, {idreg}, 2
    s_add_u32 s70, s70, s24
    s_lshl_b32 s70, s70, 11
    s_add_u32 s70, s70, {FLG+MB}
    v_lshlrev_b32 v14, 2, v1
    s_mov_b32 s58, 0
    """)

def stamp_dump(g, opt, n=7):
    if not opt.get("stamps"): return
    g("s_waitcnt lgkmcnt(0)")
    for k in range(n): g(f"v_writelane_b32 v15, s{72+2*k}, {k}")
    g("""
    s_lshl_b32 s58, s58, 8
    s_or_b32 s68, s68, s58
    v_writelane_b32 v15, s68, 7
    s_mov_b64 exec, 0xff
    buffer_store_dword v15, v14, s[4:7], s70 offen
    s_mov_b64 exec, -1
    s_add_u32 s70, s70, 32
    s_mov_b32 s68, 0
    s_mov_b32 s58, 0
    """)

def wide_addrs(g, vpar, vtr, t0):
    g(f"""
    v_lshrrev_b32 v{t0}, 3, v1
    v_lshlrev_b32 v{t0}, 13, v{t0}
    v_lshrrev_b32 v{t0+1}, 5, v1
    v_lshlrev_b32 v{t0+1}, 1, v{t0+1}
    v_and_b32 v{t0+2}, 7, v1
    v_xor_b32 v{t0+1}, v{t0+1}, v{t0+2}
    v_lshl_add_u32 v{vpar}, v{t0+1}, 4, v{t0}
    v_xor_b32 v{t0+1}, 4, v{t0+1}
    v_lshl_add_u32 v{vpar+1}, v{t0+1}, 4, v{t0}
    """)
    g(f"""
    v_bfe_u32 v{t0}, v1, 2, 1
    v_bfe_u32 v{t0+1}, v1, 4, 1
    v_bfe_u32 v{t0+2}, v1, 3, 1
    v_lshl_add_u32 v{t0+1}, v{t0+2}, 1, v{t0+1}
    v_lshl_add_u32 v{t0}, v{t0+1}, 2, v{t0}
    v_bfe_u32 v{t0+2}, v1, 5, 1
    v_lshl_add_u32 v{t0}, v{t0+2}, 4, v{t0}
    v_lshlrev_b32 v{t0}, 7, v{t0}
    v_and_b32 v{t0+2}, 3, v1
    v_lshl_add_u32 v{t0}, v{t0+2}, 3, v{t0}
    v_add_u32 v{t0}, s40, v{t0}
    """)
    for c in range(4):
        g(f"v_xor_b32 v{t0+2}, {c}, v{t0+1}")
        g(f"v_lshl_add_u32 v{vtr+c}, v{t0+2}, 5, v{t0}")

def wide_issue(g, srdreg, sbase, f, buf, vpar):
    for i in range(8):
        if i % 4 == 0: g(f"s_add_u32 m0, s40, {buf*8192 + i*1024}")
        g(f"s_add_u32 s41, {sbase}, {(64*f+8*i)*8192 - (i&3)*1024}")
        g(f"buffer_load_dwordx4 v{vpar+(i&1)}, s[{srdreg}:{srdreg+3}], s41 offen offset:{(i&3)*1024} lds")

def wide_read(g, dst, buf, vtr):
    for c in range(4):
        k, b = dst(c)
        for hf in range(2):
            for u in range(2):
                g(f"ds_read_b64_tr_b16 {vr(b+4*hf+2*u,2,k)}, v{vtr+c} offset:{buf*8192+hf*4096+u*256}")

def run_ring(g, units, dbg=False, hook=None, U=6):
    n = len(units)
    if dbg: g("s_memrealtime s[72:73]")
    for u in range(min(4, n)): units[u][0](u % 4)
    for u in range(n):
        g(f"s_waitcnt vmcnt({8*min(3, n-1-u) + (1 if hook and U < u <= U+4 else 0)})")
        if dbg and u % 2 == 0: g(f"s_memrealtime s[{74+u}:{75+u}]")
        units[u][1](u % 4)
        g("s_waitcnt lgkmcnt(0)")
        if units[u][2]: units[u][2](u % 4)
        if u + 4 < n: units[u+4][0](u % 4)
        if hook and u == U: hook(g)

def chk(g, r, n=4, t=11):
    L = []
    if n == 4:
        L.append(f"v_max3_u32 v{t}, v{r}, v{r+1}, v{r+2}")
        L.append(f"v_max_u32 v{t}, v{t}, v{r+3}")
    L.append(f"v_cmp_eq_u32 vcc, -1, v{t}")
    return L

def idx_reg(g, v, t):
    g(f"""
    v_and_b32 v{t}, 1, v1
    v_mov_b32 v{v}, 0x4444
    v_cmp_eq_u32 vcc, 1, v{t}
    v_mov_b32 v{t}, 0xeeee
    s_nop 0
    v_cndmask_b32 v{v}, v{v}, v{t}, vcc
    """)

def kv_flags(g, fail):
    top = g.lab("KF"); ok = g.lab("KFOK")
    g(f"""
    s_lshl_b32 s47, s45, 11
    s_add_u32 s47, s47, s46
    s_mov_b32 s44, 0
    v_mov_b32 v11, 0
    {top}:
    buffer_load_dwordx2 v[16:17], v11, s[4:7], s47 offen sc1
    s_waitcnt vmcnt(0)
    v_and_b32 v16, v16, v17
    s_nop 0
    v_readfirstlane_b32 s48, v16
    s_cmp_lg_u32 s48, 0
    s_cbranch_scc1 {ok}
    s_sleep 8
    s_add_u32 s44, s44, 1
    s_cmp_lt_u32 s44, {TMO}
    s_cbranch_scc1 {top}
    s_branch {fail}
    {ok}:
    """)

LKX, LVX, LIMG, LW = 0, 16384, 24576, 32768
AF = [0, 1, 2, 4, 5, 6, 8, 9]; VF = [10, 12, 13, 14]; LF = [3, 7, 11, 15]
def s_op(f, c):
    if f in AF: return ("a", AF.index(f)*32 + 8*c)
    if f in VF: return ("v", 128 + VF.index(f)*32 + 8*c)
    return ("v", 32 + 8*c)
M0R = 64
def gen_s(g, opt):
    F0 = opt.get("F0", 11)
    g("R_S:")
    g("s_setprio 3")
    srd(g, 8, A_WQ, 8*MB); srd(g, 12, A_WK, 8*MB)
    g(f"""
    s_lshl_b32 s40, s24, 15
    s_add_u32 s40, s40, {LW}
    s_lshl_b32 s42, s27, 8
    s_and_b32 s43, s24, 1
    s_lshl_b32 s43, s43, 7
    s_add_u32 s42, s42, s43
    s_waitcnt lgkmcnt(0)
    s_cmp_ge_u32 s24, 2
    s_cselect_b32 s8, s12, s8
    s_cselect_b32 s9, s13, s9
    """)
    wide_addrs(g, 2, 4, 8)
    g("v_lshlrev_b32 v12, 4, v1\nv_add_u32 v12, s40, v12")
    units = []
    for f in AF + VF + LF:
        def post(buf):
            for c in range(4):
                for q in range(2):
                    g(f"ds_write_b128 v12, {vr(32+8*c+4*q,4)} offset:{buf*8192+(2*c+q)*1024}")
            g("s_waitcnt lgkmcnt(0)")
        units.append((lambda buf, f=f: wide_issue(g, 8, "s42", f, buf, 2),
                      lambda buf, f=f: wide_read(g, lambda c: s_op(f, c), buf, 4),
                      post if f in LF else None))
    run_ring(g, units)
    idx_reg(g, 2, 11)
    g(f"""
    v_lshlrev_b32 v3, 4, v1
    v_mov_b32 v4, v12
    v_and_b32 v11, 15, v1
    v_lshrrev_b32 v16, 4, v1
    s_and_b32 s43, s24, 1
    s_lshl_b32 s43, s43, 11
    s_lshr_b32 s47, s24, 1
    s_lshl_b32 s47, s47, 4
    s_add_u32 s43, s43, s47
    s_add_u32 s43, s43, {LIMG}
    v_lshlrev_b32 v5, 5, v11
    v_lshl_add_u32 v5, v16, 2, v5
    v_add_u32 v5, s43, v5
    v_lshlrev_b32 v6, 3, v1
    v_add_u32 v6, {LIMG}, v6
    v_mov_b32 v7, v3
    s_lshl_b32 s43, s24, 11
    v_add_u32 v12, s43, v3
    s_lshl_b32 s43, s27, 11
    s_lshl_b32 s47, s24, 9
    s_add_u32 s43, s43, s47
    v_lshlrev_b32 v8, 4, v11
    v_and_b32 v17, 1, v16
    v_lshl_add_u32 v8, v17, 3, v8
    v_add_u32 v8, s43, v8
    v_add_u32 v8, {VM}, v8
    v_and_b32 v18, 7, v1
    v_lshlrev_b32 v10, 4, v18
    v_lshl_add_u32 v10, v16, 7, v10
    v_add_u32 v10, s43, v10
    v_add_u32 v10, {KM}, v10
    v_bfe_u32 v18, v1, 2, 1
    v_lshlrev_b32 v9, 15, v18
    v_and_b32 v18, 3, v1
    v_lshl_add_u32 v9, v18, 5, v9
    v_lshl_add_u32 v9, v17, 4, v9
    v_lshrrev_b32 v18, 5, v1
    v_lshl_add_u32 v9, v18, 7, v9
    s_lshl_b32 s43, s27, 10
    s_lshl_b32 s47, s24, 8
    s_add_u32 s43, s43, s47
    s_add_u32 s43, s43, {OM}
    v_add_u32 v9, s43, v9
    v_mov_b32 v18, {OOB}
    v_cmp_gt_u32 vcc, 8, v11
    v_mov_b32 v13, 0
    s_nop 0
    v_cndmask_b32 v9, v18, v9, vcc
    v_cndmask_b32 v10, v10, v18, vcc
    v_mov_b32 v18, {hex(f2u(-1e30))}
    v_cmp_gt_u32 vcc, 32, v1
    s_lshr_b32 s46, s27, 1
    s_lshl_b32 s46, s46, 4
    v_cndmask_b32 v13, v13, v18, vcc
    s_add_u32 s46, s46, {FLG+F_KVQ}
    s_lshl_b32 s49, s27, 13
    s_add_u32 s50, s49, {KX}
    s_add_u32 s51, s49, {VX}
    s_lshl_b32 s52, s24, 11
    s_add_u32 s53, s52, {LVX}
    s_mov_b32 s60, 0
    s_mov_b32 s61, {MEM}
    s_mov_b32 s65, 0
    s_mov_b32 s66, {hex(f2u(CEXP))}
    s_mov_b32 s67, -2
    s_mov_b32 s68, 0
    s_mov_b32 s45, 0
    """)
    stamp_init(g, opt, "s27")
    kv_flags(g, "S_END")
    def dma_k():
        g(f"""
        s_mov_b32 m0, s52
        s_xor_b32 s52, s52, 8192
        buffer_load_dwordx4 v12, s[4:7], s50 offen sc1 lds
        buffer_load_dwordx4 v12, s[4:7], s50 offen offset:1024 sc1 lds
        s_add_u32 s50, s50, 262144
        """)
    def dma_v():
        g(f"""
        s_mov_b32 m0, s53
        s_nop 0
        buffer_load_dwordx4 v12, s[4:7], s51 offen sc1 lds
        buffer_load_dwordx4 v12, s[4:7], s51 offen offset:1024 sc1 lds
        s_add_u32 s51, s51, 262144
        """)
    dma_k(); dma_k(); dma_v()
    g("s_waitcnt vmcnt(0)\ns_barrier")
    def tread(j):
        return [f"ds_read_b128 {vr(32+4*q,4)}, v4 offset:{j*8192+q*1024}" for q in range(8)]
    def ld(f): return f"buffer_load_dwordx4 {vr(M0R+4*f,4)}, v3, s[4:7], s{61+f//4} offen offset:{(f%4)*1024} sc1"
    g("S_LOOP:")
    g("""
    s_add_u32 s62, s61, 4096
    s_add_u32 s63, s61, 8192
    s_add_u32 s64, s61, 12288
    """)
    for x in tread(0): g(x)
    for i in range(16): g(f"v_mov_b32 v{16+i}, 0")
    delay(g, opt.get("dS", 0))
    stamp(g, opt, 0)
    for f in range(16): g(ld(f))
    R = [g.lab("SR") for f in range(16)]; C = [g.lab("SC") for f in range(16)]
    g("s_mov_b32 s44, 0")
    g("s_waitcnt vmcnt(15)")
    for x in chk(g, M0R): g(x)
    g(f"s_cbranch_vccnz {R[0]}")
    g(f"{C[0]}:")
    stamp(g, opt, 1)
    extra = {f: [] for f in range(16)}
    t1, t2, t3 = tread(1), tread(2), tread(3)
    extra[4] += t1[:4]; extra[5] += t1[4:]
    kx = [f"ds_read_b128 {vr(68+4*q,4)}, v7 offset:{LKX+q*1024}" for q in range(8)]
    extra[6] += kx[:4]; extra[7] += kx[4:6]
    extra[8] += t2[:4]; extra[9] += t2[4:]; extra[10] += kx[6:]
    extra[12] += t3[:4]; extra[13] += t3[4:]
    extra[11] += [f"ds_read_b128 {vr(100+4*t,4)}, v12 offset:{LVX+t*1024}" for t in range(2)]
    extra[14] += [f"v_mov_b32 v{108+i}, v13" for i in range(4)]
    vm = [f"buffer_load_dwordx2 {vr(64+2*t,2)}, v8, s[4:7], s65 offen offset:{256*t} sc1" for t in range(2)]
    extra[F0] = vm + extra[F0]
    for f in range(16):
        if f in LF: g("s_waitcnt lgkmcnt(0)")
        ex = list(extra[f])
        for c in range(4):
            k, b = s_op(f, c)
            g(f"{SMF} {vr(16+4*c,4)}, {vr(M0R+4*f,4)}, {vr(b,8,k)}, v2")
            if c < 2:
                for x in ex[2*c:2*c+2]: g(x)
            if c == 2 and f < 15:
                for x in ex[4:]: g(x)
                g(f"s_waitcnt vmcnt({14-f + (2 if f >= F0 else 0)})")
                for x in chk(g, M0R+4*(f+1))[:2]: g(x)
            if c == 3 and f < 15:
                g(chk(g, M0R+4*(f+1))[2])
                g(f"s_cbranch_vccnz {R[f+1]}")
                g(f"{C[f+1]}:")
    stamp(g, opt, 2)
    g("s_nop 4")
    for c in range(4):
        a = 16 + 4*c
        g(f"v_add_f32 v{a}, v{a}, v{a+1}")
        g(f"v_add_f32 v{a+2}, v{a+2}, v{a+3}")
        g(f"v_cvt_pk_bf16_f32 v{a}, v{a}, v{a+2}")
        if c % 2 == 1: g(f"ds_write2_b32 v5, v{a-4}, v{a} offset0:{(c-1)*128 % 256} offset1:{(c*128) % 256}" if c == 1 else
                         f"ds_write2st64_b32 v5, v{a-4}, v{a} offset0:4 offset1:6")
    g("s_waitcnt lgkmcnt(0)")
    g("s_barrier")
    for b in range(4):
        for j in range(2):
            g(f"ds_read_b64_tr_b16 {vr(32+4*b+2*j,2)}, v6 offset:{b*1024+j*512}")
    for i in range(4): g(f"v_mov_b32 v{112+i}, 0x3f803f80")
    stamp(g, opt, 3)
    g("s_cmp_eq_u32 s60, 63")
    g("s_cbranch_scc1 S_KM")
    for b in range(4):
        g(f"s_waitcnt lgkmcnt({6-2*b})")
        X = vr(32+4*b, 4)
        g(f"{MF32} v[48:51], {vr(68+4*b,4)}, {X}, {'0' if b == 0 else 'v[48:51]'}")
        g(f"{MF32} v[52:55], {vr(68+16+4*b,4)}, {X}, {'0' if b == 0 else 'v[52:55]'}")
        g(f"{MF32} v[56:59], {X}, {X}, {'v[108:111]' if b == 0 else 'v[56:59]'}")
    g(f"""
    s_nop 5
    v_max3_f32 v60, v48, v49, v50
    v_max3_f32 v60, v60, v51, v52
    v_max3_f32 v60, v60, v53, v54
    v_max3_f32 v61, v55, v56, v57
    v_max3_f32 v61, v61, v58, v59
    v_max_f32 v60, v60, v61
    v_max_f32 v61, v60, v61
    s_nop 1
    v_permlane32_swap_b32 v60, v61
    v_max_f32 v60, v60, v61
    v_max_f32 v61, v60, v61
    s_nop 1
    v_permlane16_swap_b32 v60, v61
    v_max_f32 v60, v60, v61
    v_mul_f32 v60, s66, v60
    """)
    for i in range(12): g(f"v_fma_f32 v{48+i}, v{48+i}, s66, -v60")
    for i in range(12): g(f"v_exp_f32 v{48+i}, v{48+i}")
    for i in range(4): g(f"v_cvt_pk_bf16_f32 v{60+i}, v{48+2*i}, v{49+2*i}")
    for i in range(2): g(f"v_cvt_pk_bf16_f32 v{116+i}, v{56+2*i}, v{57+2*i}")
    stamp(g, opt, 4)
    RV, CV = g.lab("SRV"), g.lab("SCV")
    g("s_nop 0")
    g(f"{MF32} v[24:27], v[112:115], v[60:63], 0")
    g(f"{MF32} v[16:19], v[100:103], v[60:63], 0")
    g("s_waitcnt vmcnt(0)")
    for x in chk(g, 64)[:2]: g(x)
    g(f"{MF32} v[20:23], v[104:107], v[60:63], 0")
    g(chk(g, 64)[2])
    g(f"{MF16} v[24:27], v[112:113], v[116:117], v[24:27]")
    g(f"s_cbranch_vccnz {RV}")
    g(f"{CV}:")
    stamp(g, opt, 5)
    g(f"{MF16} v[16:19], v[64:65], v[116:117], v[16:19]")
    g(f"{MF16} v[20:23], v[66:67], v[116:117], v[20:23]")
    g("s_nop 5")
    g("v_rcp_f32 v24, v24")
    g("s_nop 0")
    for i in range(8): g(f"v_mul_f32 v{16+i}, v{16+i}, v24")
    for i in range(4): g(f"v_cvt_pk_bf16_f32 v{28+i}, v{16+2*i}, v{17+2*i}")
    for i in range(4): g(f"v_min_u32 v{28+i}, s67, v{28+i}")
    g("buffer_store_dwordx4 v[28:31], v9, s[4:7], s65 offen sc1")
    stamp(g, opt, 6)
    g("S_KM:")
    g("s_waitcnt lgkmcnt(0)")
    done = g.lab("KMD")
    for b in range(4):
        nx = g.lab("KM")
        if b < 3: g(f"s_cmp_lg_u32 s24, {b}\ns_cbranch_scc1 {nx}")
        for i in range(4): g(f"v_min_u32 v{120+i}, s67, v{32+4*b+i}")
        if b < 3: g(f"s_branch {done}\n{nx}:")
    g(f"{done}:")
    g("buffer_store_dwordx4 v[120:123], v10, s[4:7], s65 offen sc1")
    stamp_dump(g, opt)
    nopf = g.lab("NP"); nofl = g.lab("NF")
    g(f"""
    s_cmp_eq_u32 s60, 63
    s_cbranch_scc1 S_END
    s_add_u32 s60, s60, 1
    s_add_u32 s61, s61, 16384
    s_add_u32 s65, s65, 65536
    v_xor_b32 v7, 8192, v7
    s_cmp_ge_u32 s60, 63
    s_cbranch_scc1 S_LOOP
    """)
    dma_v()
    g(f"""
    s_cmp_ge_u32 s60, 62
    s_cbranch_scc1 S_LOOP
    s_add_u32 s45, s60, 1
    s_and_b32 s47, s45, 7
    s_cmp_lg_u32 s47, 0
    s_cbranch_scc1 {nofl}
    s_lshr_b32 s45, s45, 3
    """)
    kv_flags(g, "S_END")
    g(f"{nofl}:")
    dma_k()
    g("s_branch S_LOOP")
    for f in range(16):
        g(f"{R[f]}:")
        g(f"s_add_u32 s68, s68, 1\ns_add_u32 s44, s44, 1\ns_cmp_gt_u32 s44, {TMO}\ns_cbranch_scc1 S_END")
        for k in range(f, 16): g(ld(k))
        g("s_waitcnt vmcnt(0)")
        for x in chk(g, M0R+4*f): g(x)
        g(f"s_cbranch_vccz {C[f]}\ns_branch {R[f]}")
    g(f"{RV}:")
    g(f"s_add_u32 s68, s68, 0x10000\ns_add_u32 s44, s44, 1\ns_cmp_gt_u32 s44, {TMO}\ns_cbranch_scc1 S_END")
    for x in vm: g(x)
    g("s_waitcnt vmcnt(0)")
    for x in chk(g, 64): g(x)
    g(f"s_cbranch_vccz {CV}\ns_branch {RV}")
    g("S_END:")
    g("s_endpgm")

RVB, ROB = 0, 16384
def gen_vo(g, opt):
    g("R_VO:")
    g("s_setprio 3")
    srd(g, 8, A_WO, 8*MB); srd(g, 12, A_WV, 8*MB)
    g(f"""
    s_sub_u32 s26, s25, 1
    s_lshl_b32 s40, s24, 15
    s_lshl_b32 s42, s24, 21
    s_lshl_b32 s43, s27, 6
    s_add_u32 s42, s42, s43
    s_lshl_b32 s49, s27, 8
    s_lshl_b32 s43, s26, 7
    s_add_u32 s49, s49, s43
    s_lshl_b32 s43, s24, 21
    s_add_u32 s49, s49, s43
    """)
    wide_addrs(g, 2, 4, 8)
    g("""
    v_bfe_u32 v8, v1, 4, 1
    v_lshlrev_b32 v8, 3, v8
    v_xor_b32 v8, v8, v1
    v_lshrrev_b32 v9, 2, v8
    v_lshlrev_b32 v9, 11, v9
    v_and_b32 v8, 3, v8
    v_lshl_add_u32 v12, v8, 4, v9
    v_xor_b32 v8, 2, v8
    v_lshl_add_u32 v13, v8, 4, v9
    v_lshrrev_b32 v8, 4, v1
    v_lshlrev_b32 v8, 10, v8
    v_bfe_u32 v9, v1, 3, 1
    v_lshl_add_u32 v8, v9, 8, v8
    v_bfe_u32 v10, v1, 2, 1
    v_lshl_add_u32 v8, v10, 6, v8
    v_and_b32 v10, 3, v1
    v_lshl_add_u32 v8, v10, 3, v8
    v_add_u32 v8, s40, v8
    v_bfe_u32 v10, v1, 4, 1
    v_lshlrev_b32 v10, 5, v10
    v_lshl_add_u32 v9, v9, 7, v10
    """)
    for u in range(2):
        for t in range(2):
            g(f"v_xor_b32 v10, {128*u+32*t}, v9")
            g(f"v_add_u32 v{14+2*u+t}, v8, v10")
    g("s_waitcnt lgkmcnt(0)")
    units = []
    def o_issue(hh, buf):
        for i in range(8):
            if i % 4 == 0: g(f"s_add_u32 m0, s40, {buf*8192 + i*1024}")
            g(f"s_add_u32 s41, s42, {hh*262144 + i*32768 - (i&3)*1024}")
            g(f"buffer_load_dwordx4 v{12+(i&1)}, s[8:11], s41 offen offset:{(i&3)*1024} lds")
    def o_read(hh, buf):
        for odd in range(2):
            for t in range(2):
                b = ((hh*2+odd)*2+t)*8
                for hf in range(2):
                    for u in range(2):
                        g(f"ds_read_b64_tr_b16 {ar(b+4*hf+2*u,2)}, v{14+2*u+t} offset:{buf*8192+hf*4096+odd*512}")
    for ff in range(4):
        units.append((lambda buf, ff=ff: wide_issue(g, 12, "s49", ff, buf, 2),
                      lambda buf, ff=ff: wide_read(g, lambda c: ("v", 128+(ff*4+c)*8), buf, 4), None))
    for hh in range(8):
        units.append((lambda buf, hh=hh: o_issue(hh, buf), lambda buf, hh=hh: o_read(hh, buf), None))
    run_ring(g, units)
    g("s_barrier")
    idx_reg(g, 2, 11)
    g(f"""
    v_lshlrev_b32 v3, 4, v1
    s_lshl_b32 s43, s24, 12
    v_add_u32 v4, s43, v3
    v_add_u32 v4, {MEM}, v4
    s_lshl_b32 s43, s24, 13
    s_lshl_b32 s47, s26, 15
    s_add_u32 s43, s43, s47
    s_add_u32 s43, s43, {OM}
    v_add_u32 v5, s43, v3
    v_add_u32 v12, 4096, v5
    v_lshrrev_b32 v16, 5, v1
    v_lshlrev_b32 v6, 3, v1
    v_lshl_add_u32 v6, v16, 6, v6
    s_mul_i32 s43, s24, 2560
    v_add_u32 v6, s43, v6
    v_lshrrev_b32 v17, 2, v1
    v_and_b32 v18, 3, v1
    v_lshlrev_b32 v7, 3, v17
    v_lshl_add_u32 v7, v18, 7, v7
    v_lshrrev_b32 v19, 1, v18
    v_lshl_add_u32 v7, v19, 6, v7
    s_mul_i32 s43, s24, 640
    v_add_u32 v7, s43, v7
    s_lshl_b32 s43, s27, 11
    s_lshl_b32 s47, s26, 10
    s_add_u32 s43, s43, s47
    s_lshl_b32 s47, s24, 8
    s_add_u32 s43, s43, s47
    s_add_u32 s43, s43, {VM}
    v_lshlrev_b32 v8, 4, v17
    v_add_u32 v8, s43, v8
    v_and_b32 v19, 15, v1
    v_lshlrev_b32 v9, 2, v19
    v_bfe_u32 v20, v1, 4, 1
    v_lshl_add_u32 v9, v20, 8, v9
    v_lshl_add_u32 v9, v16, 9, v9
    s_lshl_b32 s43, s24, 10
    s_add_u32 s43, s43, {ROB}
    v_add_u32 v9, s43, v9
    v_lshlrev_b32 v10, 3, v1
    v_add_u32 v10, {ROB}, v10
    v_lshrrev_b32 v20, 4, v1
    v_lshlrev_b32 v13, 5, v20
    v_bfe_u32 v20, v1, 2, 1
    v_lshl_add_u32 v13, v20, 4, v13
    v_bfe_u32 v20, v1, 3, 1
    v_lshl_add_u32 v13, v20, 8, v13
    s_lshl_b32 s43, s27, 9
    s_lshl_b32 s47, s26, 7
    s_add_u32 s43, s43, s47
    s_add_u32 s43, s43, {MEM+16384}
    v_add_u32 v13, s43, v13
    v_mov_b32 v20, {OOB}
    v_cmp_eq_u32 vcc, 0, v18
    s_mov_b32 s60, 0
    s_mov_b32 s61, 0
    v_cndmask_b32 v8, v20, v8, vcc
    v_cndmask_b32 v13, v20, v13, vcc
    s_mov_b32 s65, 0
    s_mov_b32 s67, -2
    s_mov_b32 s68, 0
    """)
    g("s_lshl_b32 s43, s25, 5\ns_add_u32 s43, s43, s27")
    stamp_init(g, opt, "s43")
    def ldm(f): return f"buffer_load_dwordx4 {vr(16+4*f,4)}, v4, s[4:7], s61 offen offset:{f*1024} sc1"
    def ldo(f): return f"buffer_load_dwordx4 {vr(32+4*f,4)}, v{5 if f < 4 else 12}, s[4:7], s65 offen offset:{(f%4)*1024} sc1"
    def gather4(dst):
        g("s_nop 1")
        for q in range(1, 4):
            g(f"v_mov_b32_dpp v{dst+q}, v{dst} quad_perm:[{q},{q},{q},{q}] row_mask:0xf bank_mask:0xf")
    g("V_LOOP:")
    for i in range(32): g(f"v_mov_b32 v{64+i}, 0")
    delay(g, opt.get("dV", 0))
    stamp(g, opt, 0)
    for f in range(4): g(ldm(f))
    R = [g.lab("VR") for f in range(4)]; C = [g.lab("VC") for f in range(4)]
    g("s_mov_b32 s44, 0")
    g("s_waitcnt vmcnt(3)")
    for x in chk(g, 16): g(x)
    g(f"s_cbranch_vccnz {R[0]}\n{C[0]}:")
    for f in range(4):
        for c in range(4):
            g(f"{SMF} {vr(64+4*c,4)}, {vr(16+4*f,4)}, {vr(128+(f*4+c)*8,8)}, v2")
            if c == 2 and f < 3:
                g(f"s_waitcnt vmcnt({2-f})")
                for x in chk(g, 16+4*(f+1))[:2]: g(x)
            if c == 3 and f < 3:
                g(chk(g, 16+4*(f+1))[2])
                g(f"s_cbranch_vccnz {R[f+1]}\n{C[f+1]}:")
    stamp(g, opt, 1)
    g("s_nop 4")
    for c in range(4):
        a = 64 + 4*c
        g(f"v_add_f32 v{a}, v{a}, v{a+1}")
        g(f"v_add_f32 v{a+1}, v{a+2}, v{a+3}")
        g(f"ds_write_b64 v6, {vr(a,2)} offset:{RVB+640*c}")
    g("s_waitcnt lgkmcnt(0)\ns_barrier")
    for w in range(4): g(f"ds_read_b64 {vr(96+2*w,2)}, v7 offset:{RVB+2560*w}")
    g("""
    s_waitcnt lgkmcnt(2)
    v_pk_add_f32 v[96:97], v[96:97], v[98:99]
    s_waitcnt lgkmcnt(0)
    v_pk_add_f32 v[100:101], v[100:101], v[102:103]
    v_pk_add_f32 v[96:97], v[96:97], v[100:101]
    v_cvt_pk_bf16_f32 v104, v96, v97
    v_min_u32 v104, s67, v104
    """)
    gather4(104)
    g("buffer_store_dwordx4 v[104:107], v8, s[4:7], s65 offen sc1")
    stamp(g, opt, 2)
    g("s_cmp_eq_u32 s60, 63\ns_cbranch_scc1 V_END")
    delay(g, opt.get("dO", 0))
    stamp(g, opt, 3)
    for f in range(8): g(ldo(f))
    RO = [g.lab("OR") for f in range(8)]; CO = [g.lab("OC") for f in range(8)]
    g("s_mov_b32 s44, 0")
    g("s_waitcnt vmcnt(7)")
    for x in chk(g, 32): g(x)
    g(f"s_cbranch_vccnz {RO[0]}\n{CO[0]}:")
    stamp(g, opt, 4)
    for f in range(8):
        for c in range(4):
            g(f"{SMF} {vr(80+4*c,4)}, {vr(32+4*f,4)}, {ar((f*4+c)*8,8)}, v2")
            if c == 2 and f < 7:
                g(f"s_waitcnt vmcnt({6-f})")
                for x in chk(g, 32+4*(f+1))[:2]: g(x)
            if c == 3 and f < 7:
                g(chk(g, 32+4*(f+1))[2])
                g(f"s_cbranch_vccnz {RO[f+1]}\n{CO[f+1]}:")
    stamp(g, opt, 5)
    g("""
    s_mov_b32 exec_hi, 0
    s_nop 4
    v_add_f32 v96, v80, v81
    v_add_f32 v98, v82, v83
    v_add_f32 v97, v84, v85
    v_add_f32 v99, v86, v87
    s_not_b64 exec, exec
    v_add_f32 v96, v88, v89
    v_add_f32 v98, v90, v91
    v_add_f32 v97, v92, v93
    v_add_f32 v99, v94, v95
    s_mov_b64 exec, -1
    ds_write2_b32 v9, v96, v97 offset0:0 offset1:16
    ds_write2_b32 v9, v98, v99 offset0:32 offset1:48
    s_waitcnt lgkmcnt(0)
    s_barrier
    s_cmp_lg_u32 s24, 0
    s_cbranch_scc1 V_NEXT
    """)
    for k in range(8): g(f"ds_read_b64 {vr(96+2*k,2)}, v10 offset:{512*k}")
    g("""
    s_waitcnt lgkmcnt(6)
    v_pk_add_f32 v[96:97], v[96:97], v[98:99]
    s_waitcnt lgkmcnt(4)
    v_pk_add_f32 v[100:101], v[100:101], v[102:103]
    s_waitcnt lgkmcnt(2)
    v_pk_add_f32 v[104:105], v[104:105], v[106:107]
    v_pk_add_f32 v[96:97], v[96:97], v[100:101]
    s_waitcnt lgkmcnt(0)
    v_pk_add_f32 v[108:109], v[108:109], v[110:111]
    v_pk_add_f32 v[96:97], v[96:97], v[104:105]
    v_pk_add_f32 v[96:97], v[96:97], v[108:109]
    v_cvt_pk_bf16_f32 v112, v96, v97
    v_min_u32 v112, s67, v112
    """)
    gather4(112)
    g("buffer_store_dwordx4 v[112:115], v13, s[4:7], s61 offen sc1")
    g("V_NEXT:")
    stamp(g, opt, 6)
    stamp_dump(g, opt)
    g("""
    s_add_u32 s60, s60, 1
    s_add_u32 s61, s61, 16384
    s_add_u32 s65, s65, 65536
    s_branch V_LOOP
    """)
    for (RR, CC, n, ldf, base, inc) in ((R, C, 4, ldm, 16, 1), (RO, CO, 8, ldo, 32, 0x10000)):
        for f in range(n):
            g(f"{RR[f]}:")
            g(f"s_add_u32 s68, s68, {inc}\ns_add_u32 s44, s44, 1\ns_cmp_gt_u32 s44, {TMO}\ns_cbranch_scc1 V_END")
            for k in range(f, n): g(ldf(k))
            g("s_waitcnt vmcnt(0)")
            for x in chk(g, base+4*f): g(x)
            g(f"s_cbranch_vccz {CC[f]}\ns_branch {RR[f]}")
    g("V_END:")
    g("s_endpgm")
```

```python
NAME = "recurrent_scan__memory_aug_recurrent_mem_tr__dense_activation_gelu__prompt"
MB = 1 << 20
XN   = 0
HB   = 4 * MB
GB   = 18 * MB
QX   = 24 * MB
KX   = 40 * MB
VX   = 56 * MB
OX   = 72 * MB
REC  = 88 * MB
RECB = 344064
OM, VM, MEM, CAN = 0, 131072, 262144, 294912
CALB = 6 * RECB
KM   = 110 * MB
FLG  = 114 * MB
def sp(o): return (o & 8191) | ((o >> 13) << 14)
def rec(s): return REC + (s//6)*2*MB + (s%6)*RECB
WS_BYTES = 256 * MB
F_Q    = 0
F_G    = 4096
F_LN   = 8192
F_H    = 24576
F_KVQ  = 40960
F_O    = 65536
F_END  = 131072
D_Z, D_PAR, D_ARM = 192, 196, 200
A_X, A_MEM0, A_WQ, A_WK, A_WV, A_WO, A_W1, A_B1, A_W2, A_B2, A_OUT, A_DBG, A_WS = 0, 8, 16, 24, 32, 40, 64, 72, 80, 88, 96, 104, 112
OOB = 0x80000000

class G:
    def __init__(s):
        s.l = []; s.n = 0
    def __call__(s, x):
        for line in x.strip("\n").split("\n"):
            line = line.strip()
            if line: s.l.append(line)
    def lab(s, p="L"):
        s.n += 1; return f"{p}_{s.n}"
    def text(s): return "\n".join(s.l) + "\n"

def vr(a, n=1, k="v"):
    return f"{k}{a}" if n == 1 else f"{k}[{a}:{a+n-1}]"
def ar(a, n=1): return vr(a, n, "a")
def sr(a, n=1): return vr(a, n, "s")

def srd(g, s, karg, nbytes):
    g(f"s_load_dwordx2 s[{s}:{s+1}], s[0:1], {karg}")
    g(f"s_mov_b32 s{s+2}, {nbytes}")
    g(f"s_mov_b32 s{s+3}, 0x20000")

def weave(g, main, fill):
    for x in fill.get(-1, []): g(x)
    for i, m in enumerate(main):
        g(m)
        for x in fill.get(i, []): g(x)

def kdesc(name, vgpr, accum, sgpr=102):
    return f""".amdhsa_kernel {name}
  .amdhsa_next_free_vgpr {vgpr}
  .amdhsa_next_free_sgpr {sgpr}
  .amdhsa_accum_offset {accum}
  .amdhsa_group_segment_fixed_size 0
  .amdhsa_kernarg_size 120
  .amdhsa_user_sgpr_count 2
  .amdhsa_user_sgpr_kernarg_segment_ptr 1
  .amdhsa_system_sgpr_workgroup_id_x 1
.end_amdhsa_kernel
"""

def mark(g, opt, k):
    if not opt.get("marks"): return
    sk = g.lab("MK"); ta = 20 if k == 3 else 250
    g(f"""
    s_cmp_lg_u32 s24, 0
    s_cbranch_scc1 {sk}
    s_memrealtime s[90:91]
    s_lshl_b32 s92, s20, 5
    s_add_u32 s92, s92, s21
    s_lshl_b32 s92, s92, 2
    s_add_u32 s92, s92, {FLG+MB+0xC0000 + k*1024}
    s_waitcnt lgkmcnt(0)
    v_mov_b32 v{ta}, s90
    v_mov_b32 v{ta+1}, 0
    s_mov_b64 exec, 1
    buffer_store_dword v{ta}, v{ta+1}, s[4:7], s92 offen
    s_mov_b64 exec, -1
    {sk}:
    """)

def par_init(g, opt, t, fail):
    top, ok = g.lab("CW"), g.lab("CWOK")
    g(f"""
    v_mov_b32 v{t}, 0
    s_mov_b32 s44, 0
    {top}:
    buffer_load_dwordx4 v[{t+4}:{t+7}], v{t}, s[16:19], 0 offen offset:{D_Z} sc1
    s_waitcnt vmcnt(0)
    v_readfirstlane_b32 s43, v{t+4}
    v_readfirstlane_b32 s47, v{t+5}
    v_readfirstlane_b32 s48, v{t+6}
    s_lshl_b32 s43, s43, 20
    s_lshl_b32 s48, s48, 11
    s_or_b32 s43, s43, s48
    s_and_b32 s48, s47, 0x7ff
    s_or_b32 s43, s43, s48
    s_cmp_eq_u32 s43, {(4 << 20) | (96 << 11) | 0x7ff}
    s_cbranch_scc1 {ok}
    s_sleep 8
    s_add_u32 s44, s44, 1
    s_cmp_lt_u32 s44, 40000
    s_cbranch_scc1 {top}
    s_branch {fail}
    {ok}:
    v_mul_u32_u24 v{t}, 43, v1
    v_lshrrev_b32 v{t}, 8, v{t}
    v_add_u32 v{t}, 16, v{t}
    v_lshrrev_b32 v{t}, v{t}, v{t+5}
    v_and_b32 v{t}, 1, v{t}
    v_cmp_ne_u32 s[86:87], 0, v{t}
    s_nop 3
    """)

def arm_first(g, stores, km=None, mem0=None):
    top = g.lab("AF")
    g(f"s_mov_b32 s43, {REC}\ns_mov_b32 s47, 0\n{top}:")
    stores("s43")
    g(f"""
    s_add_u32 s47, s47, 1
    s_bitcmp1_b32 s47, 0
    s_cselect_b32 s48, 0, {RECB - 16384}
    s_add_u32 s43, s43, s48
    s_add_u32 s43, s43, 8192
    s_cmp_lt_u32 s47, 12
    s_cbranch_scc1 {top}
    """)

def arm_hook(g):
    g(f"""
    s_barrier
    s_lshl_b32 s43, s24, 12
    s_add_u32 s43, s43, {D_ARM}
    v_mov_b32 v18, 1
    v_mov_b32 v19, s43
    s_mov_b64 exec, 1
    buffer_atomic_add v18, v19, s[16:19], 0 offen sc1
    s_mov_b64 exec, -1
    """)

def rec_next(g, base, cnt, t):
    g(f"""
    s_add_u32 {cnt}, {cnt}, 1
    s_cmp_eq_u32 {cnt}, 6
    s_cselect_b32 {t}, {2*MB - 6*RECB}, 0
    s_cselect_b32 {cnt}, 0, {cnt}
    s_add_u32 {base}, {base}, {t}
    s_add_u32 {base}, {base}, {RECB}
    """)

def rec_at(g, a, base, step):
    g(f"""
    s_bitcmp1_b64 s[86:87], {step}
    s_cselect_b32 {a}, 8192, 0
    s_add_u32 {a}, {a}, {base}
    """)

def sp_s(g, dst, src, shift, t):
    n = 13 - shift
    g(f"""
    s_lshr_b32 {t}, {src}, {n}
    s_lshl_b32 {t}, {t}, 14
    s_and_b32 {dst}, {src}, {(1 << n) - 1}
    s_lshl_b32 {dst}, {dst}, {shift}
    s_or_b32 {dst}, {dst}, {t}
    """)

def tmark(g, opt, k):
    if not opt.get("marks"): return
    sk = g.lab("MK")
    g(f"""
    s_cmp_lg_u32 s24, 0
    s_cbranch_scc1 {sk}
    s_memrealtime s[90:91]
    s_memtime s[94:95]
    s_lshl_b32 s92, s20, 8
    s_add_u32 s92, s92, s96
    s_lshl_b32 s92, s92, 5
    s_add_u32 s92, s92, {FLG+MB+0xD0000 + k*4}
    s_waitcnt lgkmcnt(0)
    v_mov_b32 v250, s90
    v_mov_b32 v251, 0
    s_mov_b64 exec, 1
    buffer_store_dword v250, v251, s[4:7], s92 offen
    v_mov_b32 v250, s94
    buffer_store_dword v250, v251, s[4:7], s92 offen offset:16
    s_mov_b64 exec, -1
    {sk}:
    """)

def can_regs(g, opt, hop_in, hop_out, vin, vout, sprod, wave, voob, t):
    def spv(d, lin):
        g(f"""
        v_and_b32 v{t}, 0xe000, v{lin}
        v_add3_u32 v{d}, v{lin}, v{t}, s43
        """)
    g(f"""
    v_lshrrev_b32 v{t}, 2, v1
    v_and_b32 v{vin}, 3, v1
    v_lshlrev_b32 v{vin}, 2, v{vin}
    v_lshl_add_u32 v{vin}, v{t}, 10, v{vin}
    v_add_u32 v{vin}, {16384*hop_in}, v{vin}
    s_mov_b32 s43, {CAN}
    v_cmp_gt_u32 vcc, {64 if hop_in == 0 else 32}, v1
    """)
    spv(vin, vin)
    g(f"""
    v_cndmask_b32 v{vin}, v{voob}, v{vin}, vcc
    s_lshr_b32 s48, {sprod}, 2
    s_lshl_b32 s48, s48, 10
    s_and_b32 s47, {sprod}, 3
    s_lshl_b32 s47, s47, 2
    s_add_u32 s48, s48, s47
    s_add_u32 s48, s48, {16384*hop_out}
    v_and_b32 v{vout}, 7, v1
    v_lshlrev_b32 v{vout}, 7, v{vout}
    v_add_u32 v{vout}, s48, v{vout}
    """)
    spv(vout, vout)
    g(f"""
    s_cmp_eq_u32 s24, {wave}
    s_cselect_b32 s47, 8, 0
    v_cmp_gt_u32 vcc, s47, v1
    s_nop 1
    v_cndmask_b32 v{vout}, v{voob}, v{vout}, vcc
    """)
```

```python
from common import *
TIMEOUT = 40000
VWA, VXA, VWG, VXG = 2, 10, 11, 15
SETW = [64, 128]; SETX = [96, 160]

def acc(tn, tm): return (tn * 8 + tm) * 4

def dma_stage(slot):
    L = []
    L.append(f"s_add_u32 m0, s32, {slot*16384}")
    for i in range(4):
        L.append(f"buffer_load_dwordx4 v{VWG+i}, s[8:11], s30 offen offset:{1024*i} lds")
    L.append(f"s_add_u32 m0, s33, {slot*16384}")
    for i in range(4):
        L.append(f"buffer_load_dwordx4 v{VXG}, s[4:7], s31 offen offset:{1024*i} sc1 lds")
    return L

def reads_stage(slot, p):
    L = []
    for tm in range(8):
        L.append(f"ds_read_b128 {vr(SETX[p]+4*tm,4)}, v{VXA} offset:{slot*16384+tm*1024}")
    for tn in range(8):
        for j in range(2):
            L.append(f"ds_read_b64_tr_b16 {vr(SETW[p]+4*tn+2*j,2)}, v{VWA+tn} offset:{slot*16384+j*8192}")
    return L

def step(g, k4, swap, ldw, dma=True, reads=True, vm=8):
    p = k4 & 1
    M = []
    for tn in range(8):
        for tm in range(8):
            a, b = vr(SETW[p]+4*tn, 4), vr(SETX[p]+4*tm, 4)
            if swap: a, b = b, a
            M.append(f"v_mfma_f32_16x16x32_bf16 {ar(acc(tn,tm),4)}, {a}, {b}, {ar(acc(tn,tm),4)}")
    F = {-1: ["s_waitcnt lgkmcnt(0)"]}
    def add(i, x): F.setdefault(i, []).append(x)
    if reads:
        add(1, f"s_waitcnt vmcnt({vm})"); add(1, "s_barrier")
        for i, x in enumerate(reads_stage((k4+1) & 3, p ^ 1)): add(2 + i, x)
    if dma:
        D = dma_stage((k4+3) & 3)
        pos = [27, 28, 32, 36, 40, 43, 44, 48, 52, 56]
        for x, i in zip(D, pos): add(i, x)
        add(58, f"s_add_u32 s30, s30, {32*ldw}")
        add(59, "s_add_u32 s31, s31, 16384")
    weave(g, M, F)

def act_gelu(g, regs):
    n = len(regs)
    T = [224 + i for i in range(n)]
    for i, r in enumerate(regs): g(f"v_mul_f32 v{T[i]}, v{r}, v{r}")
    for i, r in enumerate(regs): g(f"v_fma_f32 v{T[i]}, v{T[i]}, s40, v60")
    for i, r in enumerate(regs): g(f"v_mul_f32 v{T[i]}, v{T[i]}, v{r}")
    for i, r in enumerate(regs): g(f"v_exp_f32 v{T[i]}, v{T[i]}")
    for i, r in enumerate(regs): g(f"v_add_f32 v{T[i]}, 1.0, v{T[i]}")
    for i, r in enumerate(regs): g(f"v_rcp_f32 v{T[i]}, v{T[i]}")
    for i, r in enumerate(regs): g(f"v_mul_f32 v{r}, v{r}, v{T[i]}")

def act_silu(g, regs):
    n = len(regs)
    T = [224 + i for i in range(n)]
    for i, r in enumerate(regs): g(f"v_mul_f32 v{T[i]}, s40, v{r}")
    for i, r in enumerate(regs): g(f"v_exp_f32 v{T[i]}, v{T[i]}")
    for i, r in enumerate(regs): g(f"v_add_f32 v{T[i]}, 1.0, v{T[i]}")
    for i, r in enumerate(regs): g(f"v_rcp_f32 v{T[i]}, v{T[i]}")
    for i, r in enumerate(regs): g(f"v_mul_f32 v{r}, v{r}, v{T[i]}")

import struct
def f2u(x): return struct.unpack("<I", struct.pack("<f", x))[0]

def piece(g, cnt, a0, a1, act, soff, imm):
    base = 64 + (cnt % 4) * 16
    regs = [base + i for i in range(8)]
    for i in range(4): g(f"v_accvgpr_read_b32 v{base+i}, a{a0+i}")
    for i in range(4): g(f"v_accvgpr_read_b32 v{base+4+i}, a{a1+i}")
    if act: act(g, regs)
    for i in range(4): g(f"v_cvt_pk_bf16_f32 v{base+8+i}, v{base+2*i}, v{base+2*i+1}")
    g(f"buffer_store_dwordx4 {vr(base+8,4)}, v61, s[4:7], {soff} offen offset:{imm} sc1")

def poll_flags(g, nflags, soff_sreg, fail, sh=2):
    top = g.lab("PF"); ok = g.lab("PFOK")
    g(f"""
    v_lshlrev_b32 v62, {sh}, v1
    v_cmp_gt_u32 vcc, {nflags}, v1
    v_mov_b32 v63, {OOB}
    s_nop 0
    v_cndmask_b32 v62, v63, v62, vcc
    s_mov_b64 s[42:43], vcc
    s_mov_b32 s44, 0
    {top}:
    buffer_load_dword v63, v62, s[4:7], {soff_sreg} offen sc1
    s_waitcnt vmcnt(0)
    v_cmp_ne_u32 vcc, 0, v63
    s_cmp_eq_u64 vcc, s[42:43]
    s_cbranch_scc1 {ok}
    s_sleep 8
    s_add_u32 s44, s44, 1
    s_cmp_lt_u32 s44, {TIMEOUT}
    s_cbranch_scc1 {top}
    s_branch {fail}
    {ok}:
    """)

CFG = {
    "Q":  (A_WQ, 1024, 8192, XN, 32, None),
    "K":  (A_WK, 1024, 8192, XN, 32, None),
    "V":  (A_WV, 1024, 8192, XN, 32, None),
    "F1": (A_W1, 1024, 7168, XN, 32, (A_B1, 7168)),
    "F2": (A_W2, 3584, 2048, HB, 112, (A_B2, 2048)),
}

def gen_gemm(g, typ, ret, fail, opt):
    karg, K, ldw, xbase, KB, bias = CFG[typ]
    swap = typ == "V"
    nst = K // 32
    g(f"T_{typ}:")
    srd(g, 8, karg, K * ldw)
    if bias: srd(g, 12, bias[0], bias[1])
    g(f"""
    s_lshl_b32 s30, s29, 9
    s_mul_i32 s31, s28, {KB*16384}
    s_add_u32 s31, s31, {xbase}
    s_lshl_b32 s32, s24, 12
    s_add_u32 s33, s32, 65536
    s_lshr_b32 s34, s24, 1
    s_and_b32 s35, s24, 1
    v_lshrrev_b32 v16, 5, v1
    v_and_b32 v17, 31, v1
    v_lshlrev_b32 v18, 1, v16
    v_xor_b32 v17, v17, v18
    s_lshl_b32 s36, s24, 3
    v_add_u32 v16, s36, v16
    s_mov_b32 s36, {ldw}
    v_mul_lo_u32 v16, v16, s36
    """)
    for i in range(4):
        g(f"v_xor_b32 v18, {4*i}, v17")
        g(f"v_lshl_add_u32 v18, v18, 4, v16")
        g(f"v_add_u32 v{VWG+i}, {2*i*ldw - 1024*i}, v18")
    g(f"""
    v_lshlrev_b32 v61, 4, v1
    v_add_u32 v{VXG}, s32, v61
    s_lshl_b32 s36, s34, 13
    s_add_u32 s36, s36, 65536
    v_add_u32 v{VXA}, s36, v61
    v_lshrrev_b32 v16, 2, v1
    v_and_b32 v17, 7, v16
    v_lshlrev_b32 v17, 1, v17
    v_lshlrev_b32 v16, 9, v16
    v_and_b32 v18, 3, v1
    v_lshl_add_u32 v16, v18, 3, v16
    s_lshl_b32 s36, s35, 8
    v_add_u32 v16, s36, v16
    """)
    for t in range(8):
        g(f"v_xor_b32 v18, {2*t}, v17")
        g(f"v_lshl_add_u32 v{VWA+t}, v18, 4, v16")
    if typ == "F2":
        g(f"s_lshl_b32 s36, s28, 11")
        g(f"s_add_u32 s36, s36, {FLG+F_H}")
        poll_flags(g, 14, "s36", fail, 7)
    g("s_waitcnt lgkmcnt(0)")
    for i in range(16, 56): g(f"v_mov_b32 v{i}, 0")
    if bias:
        g(f"""
        v_and_b32 v56, 15, v1
        v_lshlrev_b32 v56, 1, v56
        s_lshl_b32 s36, s35, 8
        v_add_u32 v56, s36, v56
        v_mov_b32 v57, {OOB}
        v_cmp_gt_u32 vcc, 16, v1
        v_mov_b32 v48, 0x3f803f80
        s_nop 0
        v_cndmask_b32 v56, v57, v56, vcc
        """)
        for tn in range(8):
            g(f"buffer_load_ushort v{16+4*tn}, v56, s[12:15], s30 offen offset:{32*tn}")
    for s in range(3):
        D = dma_stage(s)
        for x in D:
            g(x)
            if x.startswith("s_add_u32 m0"): g("s_nop 0")
        g(f"s_add_u32 s30, s30, {32*ldw}")
        g("s_add_u32 s31, s31, 16384")
    if bias: g("s_waitcnt vmcnt(24)")
    for tn in range(8):
        for tm in range(8):
            g(f"v_mfma_f32_16x16x32_bf16 {ar(acc(tn,tm),4)}, {vr(16+4*tn,4)}, v[48:51], 0")
    g("s_waitcnt vmcnt(16)")
    g("s_barrier")
    if opt.get("marks"): tmark(g, opt, 1); g("s_waitcnt vmcnt(0)")
    for x in reads_stage(0, 0): g(x)
    loop = g.lab("GL")
    g(f"s_mov_b32 s37, {nst//4 - 1}")
    g(f"{loop}:")
    for k4 in range(4): step(g, k4, swap, ldw)
    g(f"""
    s_sub_u32 s37, s37, 1
    s_cmp_lg_u32 s37, 0
    s_cbranch_scc1 {loop}
    """)
    step(g, 0, swap, ldw)
    step(g, 1, swap, ldw, dma=False, vm=8)
    step(g, 2, swap, ldw, dma=False, vm=0)
    step(g, 3, swap, ldw, dma=False, reads=False)
    g("s_nop 7")
    tmark(g, opt, 2)
    cnt = 0
    if typ in ("Q", "K"):
        base = QX if typ == "Q" else KX
        g(f"""
        s_lshl_b32 s36, s28, 21
        s_lshl_b32 s37, s34, 20
        s_add_u32 s36, s36, s37
        s_lshl_b32 s37, s29, 14
        s_add_u32 s36, s36, s37
        s_lshl_b32 s37, s35, 13
        s_add_u32 s36, s36, s37
        s_add_u32 s36, s36, {base}
        """)
        for tm in range(8):
            g(f"s_add_u32 s38, s36, {(tm>>1)*262144 + (tm&1)*4096}")
            for nb in range(4):
                piece(g, cnt, acc(2*nb, tm), acc(2*nb+1, tm), None, "s38", nb*1024); cnt += 1
        foff = 0 if typ == "K" else 8
        g(f"s_lshl_b32 s36, s28, 11\ns_lshl_b32 s37, s29, 7\ns_add_u32 s36, s36, s37\ns_add_u32 s36, s36, {FLG+F_KVQ+foff}")
    elif typ == "V":
        g(f"""
        s_lshl_b32 s36, s28, 21
        s_lshl_b32 s37, s34, 20
        s_add_u32 s36, s36, s37
        s_lshl_b32 s37, s29, 14
        s_add_u32 s36, s36, s37
        s_lshl_b32 s37, s35, 13
        s_add_u32 s36, s36, s37
        s_add_u32 s36, s36, {VX}
        """)
        for j in range(4):
            for tn in range(8):
                if tn % 4 == 0: g(f"s_add_u32 s38, s36, {j*262144 + (tn>>2)*4096}")
                piece(g, cnt, acc(tn, 2*j), acc(tn, 2*j+1), None, "s38", (tn & 3)*1024); cnt += 1
        g(f"s_lshl_b32 s36, s28, 11\ns_lshl_b32 s37, s29, 7\ns_add_u32 s36, s36, s37\ns_add_u32 s36, s36, {FLG+F_KVQ+4}")
    elif typ == "F1":
        k1 = 2 * 0.7978845608028654 * 1.4426950408889634
        g(f"""
        s_mov_b32 s40, {hex(f2u(-k1*0.044715))}
        v_mov_b32 v60, {hex(f2u(-k1))}
        s_mul_i32 s36, s28, 112
        s_lshl_b32 s37, s29, 3
        s_add_u32 s36, s36, s37
        s_lshl_b32 s37, s35, 2
        s_add_u32 s36, s36, s37
        s_lshl_b32 s36, s36, 14
        s_lshl_b32 s37, s34, 13
        s_add_u32 s36, s36, s37
        s_add_u32 s36, s36, {HB}
        """)
        for nb in range(4):
            for tm in range(8):
                if tm % 4 == 0: g(f"s_add_u32 s38, s36, {nb*16384 + (tm>>2)*4096}")
                piece(g, cnt, acc(2*nb, tm), acc(2*nb+1, tm), act_gelu, "s38", (tm & 3)*1024); cnt += 1
        g(f"s_lshl_b32 s36, s28, 11\ns_lshl_b32 s37, s29, 7\ns_add_u32 s36, s36, s37\ns_add_u32 s36, s36, {FLG+F_H}")
    else:
        g(f"""
        s_mov_b32 s40, {hex(f2u(-1.4426950408889634))}
        s_lshl_b32 s36, s28, 19
        s_lshl_b32 s37, s34, 18
        s_add_u32 s36, s36, s37
        s_lshl_b32 s37, s29, 13
        s_add_u32 s36, s36, s37
        s_lshl_b32 s37, s35, 12
        s_add_u32 s36, s36, s37
        s_add_u32 s36, s36, {GB}
        """)
        for tm in range(8):
            g(f"s_add_u32 s38, s36, {tm*32768}")
            for nb in range(4):
                piece(g, cnt, acc(2*nb, tm), acc(2*nb+1, tm), act_silu, "s38", nb*1024); cnt += 1
        g(f"s_lshl_b32 s36, s28, 7\ns_lshl_b32 s37, s29, 2\ns_add_u32 s36, s36, s37\ns_add_u32 s36, s36, {FLG+F_G}")
    g("s_waitcnt vmcnt(0)")
    tmark(g, opt, 3)
    g(f"""
    s_barrier
    s_cmp_lg_u32 s24, 0
    s_cbranch_scc1 {ret}
    v_mov_b32 v16, 1
    v_mov_b32 v17, 0
    s_mov_b64 exec, 1
    buffer_store_dword v16, v17, s[4:7], s36 offen sc1
    s_mov_b64 exec, -1
    s_branch {ret}
    """)


def gen_gemm64(g, typ, ret, opt):
    karg = A_WK if typ == "K" else A_WV
    ldw = 8192; swap = typ == "V"; NS = 8; XB = 131072
    VWB = 40
    SW = [64, 128]; SX = [96, 160]
    def acc2(tn, tm): return (tn * 2 + tm) * 4
    def dma(slot):
        L = [f"s_add_u32 m0, s32, {slot*16384}"]
        L += [f"buffer_load_dwordx4 v{VWG+i}, s[8:11], s30 offen offset:{1024*i} lds" for i in range(4)]
        L += [f"s_add_u32 m0, s33, {slot*4096}", f"buffer_load_dwordx4 v{VXG}, s[4:7], s31 offen sc1 lds"]
        return L
    def reads(slot, p):
        L = [f"ds_read_b128 {vr(SX[p]+4*tm,4)}, v{VXA} offset:{slot*4096+tm*1024}" for tm in range(2)]
        for tn in range(8):
            for j in range(2):
                L.append(f"ds_read_b64_tr_b16 {vr(SW[p]+4*tn+2*j,2)}, v{(VWA if slot < 4 else VWB)+tn} offset:{(slot&3)*16384+j*8192}")
        return L
    def stp(k, vm, dm, rd=True):
        p = k & 1; M = []
        for tn in range(8):
            for tm in range(2):
                a, b = vr(SW[p]+4*tn, 4), vr(SX[p]+4*tm, 4)
                if swap: a, b = b, a
                M.append(f"v_mfma_f32_16x16x32_bf16 {ar(acc2(tn,tm),4)}, {a}, {b}, {ar(acc2(tn,tm),4)}")
        F = {-1: ["s_waitcnt lgkmcnt(0)"]}
        def add(i, x): F.setdefault(i, []).append(x)
        if rd:
            add(0, f"s_waitcnt vmcnt({vm})"); add(0, "s_barrier")
            for i, x in enumerate(reads((k+1) % NS, p ^ 1)): add(1 + i*2//3, x)
        if dm:
            for x, i in zip(dma((k+7) % NS), [0, 1, 3, 5, 7, 8, 9]): add(i, x)
            add(11, f"s_add_u32 s30, s30, {32*ldw}"); add(12, "s_add_u32 s31, s31, 16384")
        weave(g, M, F)
    g(f"T_{typ}64:")
    srd(g, 8, karg, 1024 * ldw)
    g(f"""
    s_lshl_b32 s30, s29, 9
    s_lshl_b32 s31, s28, 12
    s_add_u32 s31, s31, {XN}
    s_lshl_b32 s32, s24, 12
    s_lshl_b32 s38, s24, 10
    s_add_u32 s33, s38, {XB}
    s_lshr_b32 s34, s24, 1
    s_and_b32 s35, s24, 1
    v_lshrrev_b32 v16, 5, v1
    v_and_b32 v17, 31, v1
    v_lshlrev_b32 v18, 1, v16
    v_xor_b32 v17, v17, v18
    s_lshl_b32 s36, s24, 3
    v_add_u32 v16, s36, v16
    v_lshlrev_b32 v16, 13, v16
    """)
    for i in range(4):
        g(f"v_xor_b32 v18, {4*i}, v17")
        g(f"v_lshl_add_u32 v18, v18, 4, v16")
        g(f"v_add_u32 v{VWG+i}, {2*i*ldw - 1024*i}, v18")
    g(f"""
    v_lshlrev_b32 v61, 4, v1
    v_add_u32 v{VXG}, s38, v61
    s_waitcnt lgkmcnt(0)
    """)
    for s_ in range(7):
        for x in dma(s_):
            g(x)
            if x.startswith("s_add_u32 m0"): g("s_nop 0")
        g(f"s_add_u32 s30, s30, {32*ldw}")
        g("s_add_u32 s31, s31, 16384")
    g(f"""
    s_lshl_b32 s36, s34, 11
    s_add_u32 s36, s36, {XB}
    v_add_u32 v{VXA}, s36, v61
    v_lshrrev_b32 v16, 2, v1
    v_and_b32 v17, 7, v16
    v_lshlrev_b32 v17, 1, v17
    v_lshlrev_b32 v16, 9, v16
    v_and_b32 v18, 3, v1
    v_lshl_add_u32 v16, v18, 3, v16
    s_lshl_b32 s36, s35, 8
    v_add_u32 v16, s36, v16
    """)
    for t in range(8):
        g(f"v_xor_b32 v18, {2*t}, v17")
        g(f"v_lshl_add_u32 v{VWA+t}, v18, 4, v16")
        g(f"v_add_u32 v{VWB+t}, 0x10000, v{VWA+t}")
    for i in range(64): g(f"v_accvgpr_write_b32 a{i}, 0")
    g("s_waitcnt vmcnt(30)\ns_barrier")
    if opt.get("marks"): tmark(g, opt, 1); g("s_waitcnt vmcnt(0)")
    for x in reads(0, 0): g(x)
    loop = g.lab("GL")
    g(f"s_mov_b32 s37, 3\n{loop}:")
    for k in range(8): stp(k, 25, True)
    g(f"s_sub_u32 s37, s37, 1\ns_cmp_lg_u32 s37, 0\ns_cbranch_scc1 {loop}")
    for k in range(24, 32): stp(k, (min(31, k+6) - (k+1))*5, k == 24, k < 31)
    g("s_nop 7")
    tmark(g, opt, 2)
    g(f"""
    s_lshl_b32 s36, s28, 19
    s_lshl_b32 s37, s34, 18
    s_add_u32 s36, s36, s37
    s_lshl_b32 s37, s29, 14
    s_add_u32 s36, s36, s37
    s_lshl_b32 s37, s35, 13
    s_add_u32 s36, s36, s37
    s_add_u32 s36, s36, {VX if swap else KX}
    s_add_u32 s38, s36, 4096
    """)
    cnt = 0
    if not swap:
        for tm in range(2):
            for nb in range(4):
                piece(g, cnt, acc2(2*nb, tm), acc2(2*nb+1, tm), None, ("s36", "s38")[tm], nb*1024); cnt += 1
    else:
        for tn in range(8):
            piece(g, cnt, acc2(tn, 0), acc2(tn, 1), None, ("s36", "s38")[tn >> 2], (tn & 3)*1024); cnt += 1
    g(f"""
    s_lshl_b32 s36, s28, 11
    s_lshl_b32 s37, s29, 7
    s_add_u32 s36, s36, s37
    s_add_u32 s36, s36, {FLG+F_KVQ+8*2048+(4 if swap else 0)}
    s_waitcnt vmcnt(0)
    """)
    tmark(g, opt, 3)
    g(f"""
    s_barrier
    s_cmp_lg_u32 s24, 0
    s_cbranch_scc1 {ret}
    v_mov_b32 v16, 1
    v_mov_b32 v17, 0
    s_mov_b64 exec, 1
    buffer_store_dword v16, v17, s[4:7], s36 offen sc1
    s_mov_b64 exec, -1
    s_branch {ret}
    """)
```

```python
from common import *
def rne_bf16(g, d, s):
    g(f"v_cvt_pk_bf16_f32 v{d}, v{s}, v{s}")
    g(f"v_lshlrev_b32 v{d}, 16, v{d}")
def xreduce_add(g, v, t):
    for sw in ("v_permlane16_swap_b32", "v_permlane32_swap_b32"):
        g(f"v_mov_b32 v{t}, v{v}")
        g("s_nop 1")
        g(f"{sw} v{v}, v{t}")
        g("s_nop 1")
        g(f"v_add_f32 v{v}, v{v}, v{t}")
def gen_ln(g, opt):
    SC = " sc1"
    srd(g, 8, A_X, 4 * MB)
    g("""
    v_and_b32 v2, 15, v1
    v_lshrrev_b32 v3, 4, v1
    v_lshlrev_b32 v4, 11, v2
    v_lshl_add_u32 v4, v3, 3, v4
    s_lshl_b32 s25, s29, 15
    s_lshl_b32 s26, s24, 9
    s_add_u32 s25, s25, s26
    s_waitcnt lgkmcnt(0)
    """)
    for kb in range(8):
        for j in range(2):
            r = 16 + kb * 4 + j * 2
            g(f"buffer_load_dwordx2 v[{r}:{r+1}], v4, s[8:11], s25 offen offset:{kb*64+j*32}")
    g("v_mov_b32 v8, 0")
    g("v_mov_b32 v9, 0")
    for i in range(32):
        if i % 2 == 0: g(f"s_waitcnt vmcnt({15 - i//2})")
        g(f"v_lshlrev_b32 v{64+2*i}, 16, v{16+i}")
        g(f"v_and_b32 v{65+2*i}, 0xffff0000, v{16+i}")
        g(f"v_add_f32 v8, v8, v{64+2*i}")
        g(f"v_add_f32 v9, v9, v{65+2*i}")
    g("v_add_f32 v8, v8, v9")
    xreduce_add(g, 8, 9)
    g("""
    s_lshl_b32 s26, s24, 6
    v_lshl_add_u32 v5, v2, 2, s26
    v_lshlrev_b32 v6, 2, v2
    ds_write_b32 v5, v8
    s_waitcnt lgkmcnt(0)
    s_barrier
    ds_read2_b32 v[10:11], v6 offset0:0 offset1:16
    ds_read2_b32 v[12:13], v6 offset0:32 offset1:48
    s_waitcnt lgkmcnt(0)
    v_add_f32 v10, v10, v11
    v_add_f32 v12, v12, v13
    v_add_f32 v8, v10, v12
    v_mul_f32 v8, 0x3a800000, v8
    v_mov_b32 v10, 0
    v_mov_b32 v11, 0
    """)
    for i in range(32):
        g(f"v_sub_f32 v12, v{64+2*i}, v8")
        g(f"v_sub_f32 v13, v{65+2*i}, v8")
        g("v_fmac_f32 v10, v12, v12")
        g("v_fmac_f32 v11, v13, v13")
    g("v_add_f32 v10, v10, v11")
    xreduce_add(g, 10, 11)
    g("""
    ds_write_b32 v5, v10 offset:256
    s_waitcnt lgkmcnt(0)
    s_barrier
    ds_read2_b32 v[10:11], v6 offset0:64 offset1:80
    ds_read2_b32 v[12:13], v6 offset0:96 offset1:112
    s_waitcnt lgkmcnt(0)
    v_add_f32 v10, v10, v11
    v_add_f32 v12, v12, v13
    v_add_f32 v10, v10, v12
    v_mul_f32 v10, 0x3a800000, v10
    """)
    rne_bf16(g, 8, 8)
    rne_bf16(g, 10, 10)
    g("v_add_f32 v10, 0x3727c5ac, v10")
    rne_bf16(g, 10, 10)
    g("v_sqrt_f32 v10, v10")
    g("s_nop 0")
    rne_bf16(g, 10, 10)
    g("v_rcp_f32 v10, v10")
    g(f"""
    s_lshr_b32 s25, s29, 4
    s_lshl_b32 s25, s25, 19
    s_and_b32 s26, s29, 15
    s_lshl_b32 s26, s26, 10
    s_add_u32 s25, s25, s26
    s_lshl_b32 s26, s24, 17
    s_add_u32 s25, s25, s26
    s_add_u32 s25, s25, {XN}
    v_lshlrev_b32 v4, 4, v1
    """)
    for kb in range(8):
        o = 16 + kb * 4
        for q in range(4):
            a = 64 + kb * 8 + 2 * q
            g(f"v_sub_f32 v12, v{a}, v8")
            g(f"v_sub_f32 v13, v{a+1}, v8")
            g("v_cvt_pk_bf16_f32 v12, v12, v13")
            g("v_and_b32 v13, 0xffff0000, v12")
            g("v_lshlrev_b32 v12, 16, v12")
            g("v_mul_f32 v13, v13, v10")
            g("v_mul_f32 v12, v12, v10")
            g(f"v_cvt_pk_bf16_f32 v{o+q}, v12, v13")
        g(f"buffer_store_dwordx4 v[{o}:{o+3}], v4, s[4:7], s25 offen{SC}")
        g("s_add_u32 s25, s25, 16384")

def gen_zero(g):
    g(f"""
    s_lshl_b32 s25, s29, 15
    s_add_u32 s25, s25, {FLG}
    v_lshlrev_b32 v4, 4, v0
    """)
    for i in range(4): g(f"v_mov_b32 v{8+i}, 0")
    for i in range(F_END//4//4096):
        g(f"buffer_store_dwordx4 v[8:11], v4, s[4:7], s25 offen sc1\ns_add_u32 s25, s25, 4096")
    g(f"""
    s_waitcnt vmcnt(0)
    s_barrier
    s_lshl_b32 s25, s24, 12
    s_add_u32 s25, s25, {D_Z}
    v_mov_b32 v8, 1
    v_mov_b32 v9, s25
    s_mov_b64 exec, 1
    buffer_atomic_add v8, v9, s[16:19], 0 offen sc1
    s_mov_b64 exec, -1
    """)

def gen_measure(g, opt):
    g(f"""
    s_lshl_b32 s26, s29, 21
    s_add_u32 s26, s26, {REC+CALB}
    s_lshl_b32 s27, s24, 10
    s_add_u32 s27, s27, s26
    s_add_u32 s28, s27, 8192
    v_lshlrev_b32 v5, 4, v1
    v_mov_b32 v6, 0
    s_mov_b32 s36, -1
    s_mov_b32 s37, -1
    buffer_store_dwordx4 v[4:7], v5, s[4:7], s27 offen sc1
    buffer_store_dwordx4 v[4:7], v5, s[4:7], s28 offen sc1
    s_mov_b64 exec, 1
    """)
    for i in range(opt.get("nS", 3)):
        for q in range(2):
            g(f"""
            s_waitcnt vmcnt(0)
            s_barrier
            s_memtime s[38:39]
            s_waitcnt lgkmcnt(0)
            buffer_load_dword v7, v6, s[4:7], s{27+q} offen offset:{256*i} sc1
            s_waitcnt vmcnt(0)
            s_memtime s[40:41]
            s_waitcnt lgkmcnt(0)
            s_sub_u32 s40, s40, s38
            s_min_u32 s{36+q}, s{36+q}, s40
            """)
    g(f"""
    s_mov_b64 exec, -1
    s_lshl_b32 s28, s24, 3
    v_mov_b32 v7, s28
    v_mov_b32 v12, s36
    v_mov_b32 v13, s37
    ds_write_b64 v7, v[12:13]
    s_waitcnt lgkmcnt(0)
    s_barrier
    ds_read_b128 v[12:15], v6
    ds_read_b128 v[16:19], v6 offset:16
    s_waitcnt lgkmcnt(0)
    v_min_u32 v14, v14, v16
    v_min_u32 v15, v15, v17
    v_min_u32 v12, v12, v18
    v_min_u32 v13, v13, v19
    v_min_u32 v12, v12, v14
    v_min_u32 v13, v13, v15
    s_nop 0
    v_readfirstlane_b32 s36, v12
    v_readfirstlane_b32 s37, v13
    s_lshr_b32 s34, s22, 2
    s_cmp_lt_u32 s37, s36
    s_cselect_b32 s35, 1, 0
    s_xor_b32 s35, s35, s34
    s_xor_b32 s35, s35, {1 if opt.get("flip") else 0}
    s_lshl_b32 s35, s35, 16
    s_or_b32 s35, s35, 1
    s_lshl_b32 s35, s35, s29
    s_lshl_b32 s25, s24, 12
    s_add_u32 s25, s25, {D_PAR}
    v_mov_b32 v8, s35
    v_mov_b32 v9, s25
    s_mov_b64 exec, 1
    buffer_atomic_or v8, v9, s[16:19], 0 offen sc1
    """)
    if opt.get("marks"):
        g(f"s_lshl_b32 s25, s29, 3\ns_add_u32 s25, s25, {FLG+MB+0xF8000}\nbuffer_store_dwordx2 v[12:13], v6, s[4:7], s25 offen")
    g("s_mov_b64 exec, -1")

def gen_init(g, opt):
    g("""
    W_INIT:
    s_cmp_eq_u32 s20, 3
    s_cbranch_scc1 WI_3
    s_sub_u32 s29, s20, 4
    s_lshl_b32 s29, s29, 5
    s_add_u32 s29, s29, s21
    """)
    gen_ln(g, opt)
    g("""
    s_branch WI_Z
    WI_3:
    s_sub_u32 s29, s21, 8
    s_cmp_lt_u32 s29, 4
    s_cbranch_scc0 WI_M
    """)
    gen_zero(g)
    g("""
    s_branch WI_S
    WI_M:
    s_sub_u32 s29, s21, 16
    s_cmp_lt_u32 s29, 11
    s_cbranch_scc0 WI_S
    """)
    gen_measure(g, opt)
    g(f"""
    WI_S:
    s_sleep 16
    WI_Z:
    v_mov_b32 v2, 0
    s_mov_b32 s44, 0
    WI_ZT:
    buffer_load_dword v3, v2, s[16:19], 0 offen offset:{D_Z} sc1
    s_waitcnt vmcnt(0)
    v_cmp_eq_u32 vcc, 4, v3
    s_cbranch_vccnz WI_ZOK
    s_sleep 8
    s_add_u32 s44, s44, 1
    s_cmp_lt_u32 s44, 40000
    s_cbranch_scc1 WI_ZT
    s_branch M_END
    WI_ZOK:
    s_barrier
    s_cmp_lg_u32 s24, 0
    s_cbranch_scc1 WI_GO
    s_cmp_eq_u32 s20, 3
    s_cbranch_scc1 WI_P
    s_lshl_b32 s25, s29, 7
    s_add_u32 s25, s25, {FLG+F_LN}
    v_mov_b32 v3, 1
    s_mov_b64 exec, 1
    buffer_store_dword v3, v2, s[4:7], s25 offen sc1
    s_mov_b64 exec, -1
    WI_P:
    v_lshlrev_b32 v2, 7, v1
    s_mov_b32 s25, {FLG+F_LN}
    s_mov_b32 s26, {FLG+F_LN+8192}
    s_mov_b32 s44, 0
    WI_PT:
    s_sleep {opt.get("lS", 4)}
    buffer_load_dword v3, v2, s[4:7], s25 offen sc1
    buffer_load_dword v4, v2, s[4:7], s26 offen sc1
    s_waitcnt vmcnt(0)
    v_and_b32 v3, v3, v4
    v_cmp_eq_u32 vcc, 0, v3
    s_cbranch_vccz WI_GO
    s_add_u32 s44, s44, 1
    s_cmp_lt_u32 s44, 40000
    s_cbranch_scc1 WI_PT
    WI_GO:
    s_barrier
    """)
```

```python
from common import *
from gemm import f2u
from chain import (TMO, SMF, MF32, MF16, CEXP, stamp, stamp_init, stamp_dump, run_ring, idx_reg, kv_flags, wide_addrs, wide_issue, wide_read)

class Seq:
    def __init__(s, g): s.g = g; s.q = []
    def ds(s, text, tag=None):
        s.g(text); s.q.append(tag)
    def need(s, *tags):
        idx = max((i for i, t in enumerate(s.q) if t in tags), default=-1)
        if idx < 0: return
        n = len(s.q) - 1 - idx
        s.g(f"s_waitcnt lgkmcnt({min(n, 15)})")
        s.q = s.q[idx+1:] if n <= 15 else s.q[-15:]
    def drain(s):
        s.g("s_waitcnt lgkmcnt(0)"); s.q = []

def backoff(g, reg):
    top = g.lab("BK")
    g(f"s_mov_b32 s71, {reg}\n.p2alignl 4, 0xBF800000\n{top}:\ns_sub_u32 s71, s71, 1\ns_cbranch_scc0 {top}")

def probe(g, opt, key, va, reg0):
    k = opt.get("k"+key, 6); pad = opt.get("pad"+key, 0)
    go = g.lab("GO"); top = g.lab("PT"); got = g.lab("GOT")
    g(f"s_cmp_lg_u32 s24, 0\ns_cbranch_scc1 {go}")
    if key == "S": g(f"s_cmp_eq_u32 s60, 0\ns_cbranch_scc1 {go}")
    for i in range(k): g(f"v_mov_b32 v{reg0+i}, -1")
    backoff(g, "s69")
    g(f"s_memrealtime s[88:89]\ns_mov_b32 s53, 0\n{top}:")
    for i in range(k):
        g(f"""
        s_waitcnt lgkmcnt(0)
        s_lshl_b32 s54, s88, 5
        s_memrealtime s[88:89]
        s_and_b32 s54, s54, 0x380
        s_add_u32 s54, s54, s65
        buffer_load_dword v{reg0+i}, v{va}, s[4:7], s54 offen sc1
        s_add_u32 s53, s53, 1
        s_waitcnt vmcnt({k-1})
        v_cmp_eq_u32 vcc, -1, v{reg0+(i+1)%k}
        s_cbranch_vccz {got}
        """)
        if pad: g(f"s_nop {pad-1}")
    g(f"""
    s_cmp_lt_u32 s53, {opt.get("cT", 1000)}
    s_cbranch_scc1 {top}
    {got}:
    """)
    post = opt.get("post"+key, 0)
    while post > 0:
        g(f"s_nop {min(post, 16)-1}"); post -= 16
    g(f"{go}:\ns_barrier")

def adapt(g, opt, key):
    if opt.get("stamps"): g("s_min_u32 s58, s53, 255")
    if opt.get("adapt", 1):
        g(f"s_sub_u32 s53, s53, {opt.get('t'+key, 9)}\ns_min_i32 s53, s53, {opt.get('up', 1)}\ns_add_u32 s69, s69, s53\ns_max_i32 s69, s69, 0")

LKX, LSH, LIMG, LW = 0, 8192, 24576, 32768
T0, M0, VX0, VM0, MSK, ONE = 32, 64, 96, 104, 108, 112
LH = [(7,0), (1,0), (8,1), (3,1), (9,1), (5,1), (0,0), (0,1)]
RH = [(s, m) for s in range(16) for m in range(2) if (s, m) not in LH]
LBUF = {0: 80, 1: 88, 2: T0, 3: T0+8, 4: T0+16, 5: T0+24, 14: 120,
        15: T0, 22: T0+8, 23: T0+16, 28: T0+24, 29: T0, 34: T0+8, 35: T0+16, 38: T0+24, 39: T0}
def s_op(sl, c):
    h = (sl, c >> 1)
    if h in LH: return ("v", LBUF[4*sl + c])
    i = RH.index(h)*16 + 8*(c & 1)
    return ("a", i) if i < 256 else ("v", i - 128)
def l_off(p): return (LH.index((p >> 2, (p >> 1) & 1))*2 + (p & 1))*2048
JR = [(0,0), (0,1), (1,0), (2,0), (3,0), (1,1), (2,1), (3,1), (0,2), (0,3), (1,2), (1,3), (2,2), (2,3), (3,2), (3,3)]
def slot_jr(sl): return JR[sl]
MREG = [0, 1, 4, 5, 6, 7, 0, 1, 2, 3, 4, 5, 6, 7, 0, 1]
def mreg(sl): return M0 + 4*MREG[sl]

def gen_s(g, opt):
    pV = opt.get("pV", 52)
    g("R_S:")
    g("s_setprio 3")
    srd(g, 8, A_WQ, 8*MB); srd(g, 12, A_WK, 8*MB)
    g(f"""
    s_lshl_b32 s40, s24, 15
    s_add_u32 s40, s40, {LW}
    s_lshl_b32 s42, s27, 8
    s_and_b32 s43, s24, 1
    s_lshl_b32 s43, s43, 7
    s_add_u32 s42, s42, s43
    """)
    for j in range(4):
        g(f"""
        s_add_u32 s43, s24, {j}
        s_and_b32 s43, s43, 3
        s_lshl_b32 s47, s43, 21
        s_add_u32 s{52+j}, s47, s42
        """)
        if j: g(f"s_lshl_b32 s43, s43, 12\ns_add_u32 s43, s43, {LSH}\nv_lshlrev_b32 v{115+j}, 4, v1\nv_add_u32 v{115+j}, s43, v{115+j}")
    wide_addrs(g, 2, 4, 8)
    g("""
    v_lshlrev_b32 v12, 4, v1
    v_add_u32 v12, s40, v12
    s_waitcnt lgkmcnt(0)
    s_cmp_lt_u32 s24, 2
    s_cselect_b32 s8, s8, s12
    s_cselect_b32 s9, s9, s13
    """)
    g(f"""
    v_and_b32 v11, 15, v1
    v_lshrrev_b32 v16, 4, v1
    v_and_b32 v17, 1, v16
    v_and_b32 v18, 7, v1
    v_lshlrev_b32 v10, 4, v18
    v_lshl_add_u32 v10, v16, 7, v10
    s_lshl_b32 s43, s27, 11
    v_add_u32 v10, s43, v10
    v_bfe_u32 v18, v1, 2, 1
    v_lshlrev_b32 v9, 16, v18
    v_and_b32 v18, 3, v1
    v_lshl_add_u32 v9, v18, 5, v9
    v_lshl_add_u32 v9, v17, 4, v9
    v_lshrrev_b32 v18, 5, v1
    v_lshl_add_u32 v9, v18, 7, v9
    s_and_b32 s43, s27, 7
    s_lshl_b32 s43, s43, 10
    s_lshr_b32 s47, s27, 3
    s_lshl_b32 s47, s47, 14
    s_add_u32 s43, s43, s47
    s_lshl_b32 s47, s24, 8
    s_add_u32 s43, s43, s47
    s_add_u32 s43, s43, {OM}
    v_add_u32 v9, s43, v9
    v_mov_b32 v18, {OOB}
    v_cmp_gt_u32 vcc, 8, v11
    s_nop 1
    v_cndmask_b32 v9, v18, v9, vcc
    v_cndmask_b32 v10, v10, v18, vcc
    """)
    can_regs(g, opt, 0, 1, 0, 119, "s27", opt.get("cWS", 1), 18, 17)
    for i in range(4): g(f"v_mov_b32 v{20+i}, -1")
    arm_first(g, lambda so: g(f"""
    buffer_store_dwordx4 v[20:23], v9, s[4:7], {so} offen sc1
    buffer_store_dword v20, v119, s[4:7], {so} offen sc1
    """))
    g(f"s_lshl_b32 s43, s24, 9\ns_add_u32 s43, s43, {KM}")
    for i in range(6): g(f"buffer_store_dwordx4 v[20:23], v10, s[4:7], s43 offen sc1\ns_add_u32 s43, s43, 65536")
    PARK = {(1,0): 64, (3,1): 80, (5,1): 96, (7,0): 32, (8,1): 32, (9,1): 32, (0,0): 32, (0,1): 48}
    def dst(sl): return lambda c: ("v", PARK[(sl, c >> 1)] + 8*(c & 1)) if (sl, c >> 1) in LH else s_op(sl, c)
    def post(buf):
        for i in range(2):
            for q in range(4):
                g(f"ds_write_b128 v12, {vr(PARK[LH[2*buf+i]]+4*q,4)} offset:{buf*8192+(4*i+q)*1024}")
        g("s_waitcnt lgkmcnt(0)")
    order = [2, 4, 6, 10, 11, 12, 13, 14, 15, 1, 3, 5, 7, 8, 9, 0]
    run_ring(g, [(lambda buf, sl=sl: wide_issue(g, 8, f"s{52+slot_jr(sl)[0]}", slot_jr(sl)[1], buf, 2),
                  lambda buf, sl=sl: wide_read(g, dst(sl), buf, 4), post if u >= 12 else None)
                 for u, sl in enumerate(order)], dbg=opt.get("ringdbg"), hook=arm_hook)
    if opt.get("ringdbg"):
        g("s_waitcnt lgkmcnt(0)")
        for k in range(9): g(f"v_writelane_b32 v20, s{72+2*k}, {k}")
        g(f"""
        s_lshl_b32 s92, s27, 2
        s_add_u32 s92, s92, s24
        s_lshl_b32 s92, s92, 6
        s_add_u32 s92, s92, {FLG+MB+0xF0000}
        v_lshlrev_b32 v21, 2, v1
        s_mov_b64 exec, 0x1ff
        buffer_store_dword v20, v21, s[4:7], s92 offen
        s_mov_b64 exec, -1
        """)
    mark(g, opt, 3)
    idx_reg(g, 2, 11)
    g(f"""
    v_mov_b32 v4, v12
    v_lshlrev_b32 v7, 4, v1
    s_lshl_b32 s43, s24, 12
    v_add_u32 v13, s43, v7
    v_add_u32 v13, {LSH}, v13
    s_and_b32 s43, s24, 1
    s_lshl_b32 s43, s43, 12
    s_lshr_b32 s47, s24, 1
    s_lshl_b32 s47, s47, 14
    s_or_b32 s43, s43, s47
    s_add_u32 s43, s43, {MEM}
    v_add_u32 v3, s43, v7
    v_and_b32 v11, 15, v1
    v_lshrrev_b32 v16, 4, v1
    s_and_b32 s43, s24, 1
    s_lshl_b32 s43, s43, 11
    s_lshr_b32 s47, s24, 1
    s_lshl_b32 s47, s47, 4
    s_add_u32 s43, s43, s47
    s_add_u32 s43, s43, {LIMG}
    v_lshlrev_b32 v5, 5, v11
    v_lshl_add_u32 v5, v16, 2, v5
    v_add_u32 v5, s43, v5
    v_lshlrev_b32 v6, 3, v1
    v_add_u32 v6, {LIMG}, v6
    s_lshl_b32 s43, s24, 11
    v_add_u32 v12, s43, v7
    s_and_b32 s43, s27, 3
    s_lshl_b32 s43, s43, 11
    s_lshr_b32 s47, s27, 2
    s_lshl_b32 s47, s47, 14
    s_add_u32 s43, s43, s47
    s_lshl_b32 s47, s24, 9
    s_add_u32 s43, s43, s47
    v_lshlrev_b32 v8, 4, v11
    v_and_b32 v17, 1, v16
    v_lshl_add_u32 v8, v17, 3, v8
    v_add_u32 v8, s43, v8
    v_add_u32 v8, {VM}, v8
    v_mov_b32 v{MSK}, 0
    v_mov_b32 v18, {hex(f2u(-1e30))}
    v_cmp_gt_u32 vcc, 32, v1
    s_lshr_b32 s46, s27, 1
    s_lshl_b32 s46, s46, 7
    v_cndmask_b32 v{MSK}, v{MSK}, v18, vcc
    s_add_u32 s46, s46, {FLG+F_KVQ}
    s_lshl_b32 s49, s27, 13
    s_add_u32 s50, s49, {KX}
    s_add_u32 s51, s49, {VX}
    s_lshl_b32 s52, s24, 10
    s_sub_u32 s52, s52, 1024
    s_mov_b32 s60, 0
    s_mov_b32 s66, {hex(f2u(CEXP))}
    s_mov_b32 s62, s66
    s_mov_b32 s63, s66
    s_mov_b32 s67, -2
    s_mov_b32 s68, 0
    s_mov_b32 s45, 8
    s_mov_b32 s69, {opt.get("dS", 0)}
    s_mov_b32 s53, {opt.get("tS", 9)}
    """)
    g(f"""
    s_mov_b32 s61, {REC}
    s_mov_b32 s56, 0
    s_mov_b32 s59, {KM}
    """)
    for i in range(1, 4): g(f"v_mov_b32 v{MSK+i}, v{MSK}")
    for i in range(4): g(f"v_mov_b32 v{ONE+i}, 0x3f803f80")
    stamp_init(g, opt, "s27")
    par_init(g, opt, 16, "S_END")
    if not opt.get("solo"): kv_flags(g, "S_END")
    rec_at(g, "s65", "s61", "s60")
    def prefetch():
        sk = g.lab("PF")
        g(f"""
        s_cmp_eq_u32 s24, 0
        s_cbranch_scc1 {sk}
        s_mov_b32 m0, s52
        s_add_u32 s47, s50, s52
        buffer_load_dwordx4 v7, s[4:7], s47 offen sc1 lds
        buffer_load_dwordx4 v7, s[4:7], s47 offen offset:3072 sc1 lds
        s_cmp_eq_u32 s24, 3
        s_cbranch_scc1 {sk}
        s_add_u32 m0, s52, 6144
        s_add_u32 s47, s47, 6144
        buffer_load_dwordx4 v7, s[4:7], s47 offen sc1 lds
        {sk}:
        s_add_u32 s50, s50, {0 if opt.get("solo") else 262144}
        """)
    prefetch()
    def ld(r, so="s65"): return f"buffer_load_dwordx4 {vr(M0+4*r,4)}, v3, s[4:7], {so} offen offset:{r*1024} sc1"
    SEN = "0x12345" if opt.get("solo") else "-1"
    def cmp(r): return f"v_cmp_eq_u32 vcc, {SEN}, v{r}"
    Q = Seq(g)
    g("S_LOOP:")
    def tr(p, q): return lambda: Q.ds(f"ds_read_b128 {vr(LBUF[p]+4*q,4)}, v4 offset:{l_off(p)+q*1024}", ("T", p >> 2, p & 3))
    for p in (0, 1, 2, 3, 4, 5, 14): tr(p, 0)(); tr(p, 1)()
    for i in range(16): g(f"v_mov_b32 v{16+i}, 0")
    g("s_mov_b32 s44, 0")
    if opt.get("can", 1) and not opt.get("solo"): probe(g, opt, "S", 0, M0)
    else: backoff(g, "s69")
    stamp(g, opt, 0)
    for r in range(4):
        g(ld(r))
        if r < 3 and opt.get("stS", 4): g(f"s_nop {opt.get('stS', 4)-1}")
    adapt(g, opt, "S")
    R = [g.lab("SR") for r in range(4)]; C = [g.lab("SC") for r in range(4)]
    Q.drain()
    g("s_waitcnt vmcnt(3)")
    g(cmp(M0))
    g(f"s_cbranch_vccnz {R[0]}")
    g(f"{C[0]}:")
    stamp(g, opt, 1)
    SMS = [(s, c) for s in range(10) for c in range(4)]
    SMS += [(s, c) for s in range(10, 16) for c in (0, 1)]
    SMS += [(s, 2) for s in range(10, 16)] + [(s, 3) for s in range(10, 16)]
    F = {p: [] for p in range(64)}
    def wr(r): return lambda: Q.ds(f"ds_write_b128 v13, {vr(M0+4*r,4)} offset:{r*1024}", ("W", r))
    def rd(sl):
        j, r = slot_jr(sl)
        return lambda: Q.ds(f"ds_read_b128 {vr(mreg(sl),4)}, v{115+j} offset:{r*1024}", ("M", sl))
    def x(t): return lambda: g(t)
    def bar(*tags): return [lambda: Q.need(*tags), x("s_barrier")]
    def chk(r): return [x(f"s_waitcnt vmcnt({3-r})"), x(cmp(M0+4*r))]
    def br(r): return x(f"s_cbranch_vccnz {R[r]}\n{C[r]}:")
    F[3] += bar(("W", 0)) + [rd(2), rd(3)] + chk(1) + [br(1)]
    pX = opt.get("pX", 8)
    F[pX] += [x(f"buffer_load_dwordx4 {vr(VX0,4)}, v12, s[4:7], s51 offen sc1")]
    F[pX+1] += [x(f"buffer_load_dwordx4 {vr(VX0+4,4)}, v12, s[4:7], s51 offen offset:1024 sc1"), x(f"s_add_u32 s51, s51, {0 if opt.get('solo') else 262144}")]
    F[21] += [x("s_waitcnt vmcnt(2)"), x(f"v_max_u32 v11, v{M0+8}, v{M0+12}")]; F[22] += [x(cmp(11))]; F[23] += [br(2)]
    F[11] += bar(("W", 1)); F[31] += bar(("W", 3))
    for gp, r in ((0, 0), (6, 1), (25, 2), (27, 3)): F[gp] += [wr(r)]
    for ga, p in ((4, 15), (9, 22), (13, 23), (16, 28), (18, 29), (23, 34), (29, 35), (31, 38), (33, 39)):
        F[ga] += [tr(p, 0)]; F[ga+1] += [tr(p, 1)]
    for gp, sl in ((8, 4), (12, 5), (15, 6), (20, 7), (35, 10), (36, 11), (37, 12), (38, 13), (39, 14), (40, 15)):
        F[gp] += [rd(sl)]
    for gp, q in ((41, 2), (42, 3), (43, 4), (44, 5), (45, 6), (46, 7), (47, 0), (48, 1)):
        F[gp] += [lambda q=q: Q.ds(f"ds_read_b128 {vr(T0+4*q,4)}, v7 offset:{LKX+q*1024}", ("K",))]
    def epi(c):
        a = 16 + 4*c
        return [x(f"v_add_f32 v{a}, v{a}, v{a+1}"), x(f"v_add_f32 v{a+2}, v{a+2}, v{a+3}"), x(f"v_cvt_pk_bf16_f32 v{a}, v{a}, v{a+2}")]
    e0, e1, e2, e3 = epi(0), epi(1), epi(2), epi(3)
    XN = [72, 80, 76, 84]
    def trx(b, j): return lambda: Q.ds(f"ds_read_b64_tr_b16 {vr(XN[b]+2*j,2)}, v6 offset:{b*1024+j*512}", ("XN", b))
    F[54] = e0[:2]
    F[55] = [e0[2], e1[0]]
    F[56] = e1[1:]
    F[57] = [lambda: Q.ds("ds_write2_b32 v5, v16, v20 offset0:0 offset1:128", ("I", 0))]
    F[60] = bar(("I", 0))
    F[61] = [trx(0,0), trx(0,1), e2[0]]
    F[62] = [trx(2,0), trx(2,1), e2[1]]
    F[63] = [e2[2], lambda: Q.ds("ds_write_b32 v5, v24 offset:1024", ("I", 1)), x("s_nop 5")] + e3 + \
            [lambda: Q.ds("ds_write_b32 v5, v28 offset:1536", ("I", 2))]
    def vml(so): return [f"buffer_load_dwordx2 {vr(VM0+2*t,2)}, v8, s[4:7], {so} offen offset:{256*t} sc1" for t in range(2)]
    vm = vml("s65")
    vm[0] = "s_waitcnt vmcnt(0)\n" + vm[0]
    if pV < 64: F[pV] = [x(vm[0])] + F[pV]; F[pV+opt.get("pVd", 1)] = [x(vm[1])] + F[pV+opt.get("pVd", 1)]
    pC = opt.get("pC", 63)
    if opt.get("can", 1):
        cst = x("buffer_store_dword v1, v119, s[4:7], s65 offen sc1")
        if pC == 63: F[63][2] = lambda: (cst(), g("s_nop 4"))
        elif pC < 63: F[pC] = F[pC] + [cst]
    def can_at(k):
        if opt.get("can", 1) and pC == k: cst()
    for p, (s, c) in enumerate(SMS):
        Q.need(("M", s), ("T", s, c))
        k, b = s_op(s, c)
        g(f"{SMF} {vr(16+4*c,4)}, {vr(mreg(s),4)}, {vr(b,8,k)}, v2")
        if p == 63: stamp(g, opt, 2)
        if p in opt.get("sp", []): g(f"s_memtime s[{72+2*(2+opt['sp'].index(p))}:{73+2*(2+opt['sp'].index(p))}]")
        for f in F[p]: f()
    S0, S1, S2 = 16, 20, 120
    def xs(b):
        Q.need(("XN", b))
        X = vr(XN[b], 4)
        g(f"{MF32} {vr(S2,4)}, {X}, {X}, {vr(MSK,4) if b == 0 else vr(S2,4)}")
        for t, S in ((0, S0), (1, S1)):
            g(f"{MF32} {vr(S,4)}, {vr(T0+16*t+4*b,4)}, {X}, {'0' if b == 0 else vr(S,4)}")
    xs(0)
    if opt.get("e2"): xs(2)
    if pV >= 64:
        for v in vm: g(v)
    can_at(64)
    Q.drain()
    g("s_barrier")
    can_at(645)
    for b in (1, 3): trx(b, 0)(); trx(b, 1)()
    if not opt.get("e2"): xs(2)
    can_at(65)
    stamp(g, opt, 3)
    g("s_cmp_eq_u32 s60, 63")
    g("s_cbranch_scc1 S_LAST")
    xs(1); xs(3)
    can_at(66)
    g(f"""
    s_nop 3
    v_max3_f32 v26, v{S2}, v{S2+1}, v{S2+2}
    s_nop 2
    v_max3_f32 v26, v26, v{S2+3}, v{S0}
    v_max3_f32 v27, v{S0+1}, v{S0+2}, v{S0+3}
    v_max3_f32 v26, v26, v{S1}, v{S1+1}
    v_max3_f32 v27, v27, v{S1+2}, v{S1+3}
    v_max_f32 v26, v26, v27
    v_max_f32 v27, v26, v27
    s_nop 1
    v_permlane32_swap_b32 v26, v27
    v_max_f32 v24, v26, v27
    v_max_f32 v25, v26, v27
    s_nop 1
    v_permlane16_swap_b32 v24, v25
    v_max_f32 v26, v24, v25
    v_mul_f32 v26, s66, v26
    """)
    can_at(67)
    PX, PM, O0, O1, L = 68, 24, 32, 36, 40
    xr = [S0+i for i in range(4)] + [S1+i for i in range(4)]
    pk = opt.get("pk", 1)
    def pkf(r): return f"v_pk_fma_f32 {vr(r,2)}, {vr(r,2)}, s[62:63], v[26:27] op_sel_hi:[1,1,0] neg_lo:[0,0,1] neg_hi:[0,0,1]"
    if pk:
        for r in xr[::2]: g(pkf(r))
    else:
        for r in xr: g(f"v_fma_f32 v{r}, v{r}, s66, -v26")
    for r in xr: g(f"v_exp_f32 v{r}, v{r}")
    can_at(68)
    g(f"v_fma_f32 v{S2}, v{S2}, s66, -v26")
    for i in range(4): g(f"v_cvt_pk_bf16_f32 v{PX+i}, v{xr[2*i]}, v{xr[2*i+1]}")
    for i in range(1, 3): g(f"v_fma_f32 v{S2+i}, v{S2+i}, s66, -v26")
    RV, CV = g.lab("SRV"), g.lab("SCV")
    g(f"""
    {MF32} {vr(L,4)}, {vr(ONE,4)}, {vr(PX,4)}, 0
    v_fma_f32 v{S2+3}, v{S2+3}, s66, -v26
    v_exp_f32 v{S2}, v{S2}
    {MF32} {vr(O0,4)}, {vr(VX0,4)}, {vr(PX,4)}, 0
    v_exp_f32 v{S2+1}, v{S2+1}
    {MF32} {vr(O1,4)}, {vr(VX0+4,4)}, {vr(PX,4)}, 0
    v_exp_f32 v{S2+2}, v{S2+2}
    v_exp_f32 v{S2+3}, v{S2+3}
    """)
    stamp(g, opt, 4)
    g(f"""
    v_cvt_pk_bf16_f32 v{PM}, v{S2}, v{S2+1}
    v_cvt_pk_bf16_f32 v{PM+1}, v{S2+2}, v{S2+3}
    s_waitcnt vmcnt({1 if opt.get("can", 1) else 0})
    v_max_u32 v11, v{VM0}, v{VM0+2}
    {MF16} {vr(L,4)}, {vr(ONE,2)}, {vr(PM,2)}, {vr(L,4)}
    v_cmp_eq_u32 vcc, {SEN}, v11
    s_cbranch_vccnz {RV}
    {CV}:
    """)
    stamp(g, opt, 5)
    g(f"""
    {MF16} {vr(O0,4)}, {vr(VM0,2)}, {vr(PM,2)}, {vr(O0,4)}
    {MF16} {vr(O1,4)}, {vr(VM0+2,2)}, {vr(PM,2)}, {vr(O1,4)}
    s_nop {opt.get("n1", 3)}
    v_rcp_f32 v{L}, v{L}
    s_nop {opt.get("n2", 1)}
    """)
    def mul4(o):
        if pk:
            for i in (0, 2): g(f"v_pk_mul_f32 {vr(o+i,2)}, {vr(o+i,2)}, {vr(L,2)} op_sel_hi:[1,0]")
        else:
            for i in range(4): g(f"v_mul_f32 v{o+i}, v{o+i}, v{L}")
    mul4(O0)
    for i in range(2): g(f"v_cvt_pk_bf16_f32 v{28+i}, v{O0+2*i}, v{O0+2*i+1}")
    mul4(O1)
    g("v_min_u32 v28, s67, v28")
    for i in range(2): g(f"v_cvt_pk_bf16_f32 v{30+i}, v{O1+2*i}, v{O1+2*i+1}")
    g("buffer_store_dwordx4 v[28:31], v9, s[4:7], s65 offen sc1")
    stamp(g, opt, 6)
    g("S_KM:")
    Q.drain()
    done = g.lab("KMD"); arm = g.lab("ARM")
    g(f"s_cmp_eq_u32 s24, 0\ns_cbranch_scc1 {done}")
    for b in (3, 2, 1, 0):
        nx = g.lab("KM")
        if b > 1: g(f"s_cmp_lg_u32 s24, {b}\ns_cbranch_scc1 {nx}")
        R_ = VM0 if b else VX0
        for i in range(4): g(f"v_min_u32 v{R_+i}, s67, v{XN[b]+i}")
        g(f"buffer_store_dwordx4 {vr(R_,4)}, v10, s[4:7], s59 offen offset:{512*b} sc1")
        if b > 1: g(f"s_branch {arm}\n{nx}:")
    g(f"""
    {arm}:
    s_cmp_ge_u32 s60, 58
    s_cbranch_scc1 {done}
    s_add_u32 s47, s60, 6
    s_bitcmp1_b64 s[86:87], s47
    s_cselect_b32 s47, 8192, 0
    s_add_u32 s47, s47, s61
    s_add_u32 s47, s47, {2*MB}
    s_lshl_b32 s48, s24, 9
    s_add_u32 s48, s48, s59
    s_add_u32 s48, s48, {6*65536 - 512}
    v_mov_b32 v16, -1
    v_mov_b32 v17, -1
    v_mov_b32 v18, -1
    v_mov_b32 v19, -1
    buffer_store_dwordx4 v[16:19], v9, s[4:7], s47 offen sc1
    buffer_store_dword v16, v119, s[4:7], s47 offen sc1
    buffer_store_dwordx4 v[16:19], v10, s[4:7], s48 offen offset:512 sc1
    s_cmp_lg_u32 s24, 1
    s_cbranch_scc1 {done}
    s_sub_u32 s47, s47, 256
    buffer_store_dwordx4 v[16:19], v10, s[4:7], s48 offen sc1
    buffer_store_dwordx4 v[16:19], v9, s[4:7], s47 offen sc1
    {done}:
    """)
    stamp_dump(g, opt)
    nofl = g.lab("NF")
    g(f"""
    s_cmp_eq_u32 s60, 63
    s_cbranch_scc1 S_END
    s_add_u32 s60, s60, 1
    s_add_u32 s59, s59, 65536
    """)
    if not opt.get("solo"):
        rec_next(g, "s61", "s56", "s47")
        rec_at(g, "s65", "s61", "s60")
    g(f"""
    s_cmp_eq_u32 s60, 63
    s_cbranch_scc1 S_LOOP
    s_lshr_b32 s45, s60, 3
    s_lshr_b32 s48, s60, 1
    s_add_u32 s48, s48, 8
    s_cmp_lt_u32 s60, 8
    s_cselect_b32 s45, s48, s45
    s_cselect_b32 s47, 1, 7
    s_and_b32 s47, s60, s47
    s_cmp_lg_u32 s47, 0
    s_cbranch_scc1 {nofl}
    s_cmp_eq_u32 s24, 0
    s_cbranch_scc1 {nofl}
    """)
    if not opt.get("solo"): kv_flags(g, "S_END")
    g(f"{nofl}:")
    prefetch()
    g("s_branch S_LOOP")
    g("S_LAST:\ns_waitcnt vmcnt(0)\ns_branch S_KM")
    for r in range(3):
        g(f"{R[r]}:")
        g(f"s_add_u32 s68, s68, 1\ns_add_u32 s44, s44, 1\ns_cmp_gt_u32 s44, {TMO}\ns_cbranch_scc1 S_END")
        for k in range(r, 4): g(ld(k))
        g("s_waitcnt vmcnt(0)")
        if r == 2: g(f"v_max_u32 v11, v{M0+8}, v{M0+12}")
        g(cmp(M0+4*r if r < 2 else 11))
        g(f"s_cbranch_vccz {C[r]}\ns_branch {R[r]}")
    g(f"{RV}:")
    g(f"s_add_u32 s68, s68, 0x10000\ns_add_u32 s44, s44, 1\ns_cmp_gt_u32 s44, {TMO}\ns_cbranch_scc1 S_END")
    for v in vml("s65"): g(v)
    g(f"s_waitcnt vmcnt(0)\nv_max_u32 v11, v{VM0}, v{VM0+2}\nv_cmp_eq_u32 vcc, -1, v11")
    g(f"s_cbranch_vccz {CV}\ns_branch {RV}")
    g("S_END:")
    g("s_endpgm")
```

```python
from common import *
from gemm import f2u
from chain import (TMO, SMF, MF32, MF16, CEXP, stamp, stamp_init, stamp_dump, run_ring, idx_reg, wide_addrs, wide_issue, wide_read)
from s4 import backoff, probe, adapt
def cmp1(r): return f"v_cmp_eq_u32 vcc, -1, v{r}"
RVB, ROB = 0, 16384
def gen_vo(g, opt):
    g("R_VO:")
    g("s_setprio 3")
    srd(g, 8, A_WO, 8*MB); srd(g, 12, A_WV, 8*MB)
    g(f"""
    s_sub_u32 s26, s25, 1
    s_lshl_b32 s40, s24, 15
    s_lshl_b32 s42, s24, 21
    s_lshl_b32 s43, s27, 6
    s_add_u32 s42, s42, s43
    s_lshl_b32 s49, s27, 8
    s_lshl_b32 s43, s26, 7
    s_add_u32 s49, s49, s43
    s_lshl_b32 s43, s24, 21
    s_add_u32 s49, s49, s43
    """)
    wide_addrs(g, 2, 4, 8)
    g("""
    v_bfe_u32 v8, v1, 4, 1
    v_lshlrev_b32 v8, 3, v8
    v_xor_b32 v8, v8, v1
    v_lshrrev_b32 v9, 2, v8
    v_lshlrev_b32 v9, 11, v9
    v_and_b32 v8, 3, v8
    v_lshl_add_u32 v12, v8, 4, v9
    v_xor_b32 v8, 2, v8
    v_lshl_add_u32 v13, v8, 4, v9
    v_lshrrev_b32 v8, 4, v1
    v_lshlrev_b32 v8, 10, v8
    v_bfe_u32 v9, v1, 3, 1
    v_lshl_add_u32 v8, v9, 8, v8
    v_bfe_u32 v10, v1, 2, 1
    v_lshl_add_u32 v8, v10, 6, v8
    v_and_b32 v10, 3, v1
    v_lshl_add_u32 v8, v10, 3, v8
    v_add_u32 v8, s40, v8
    v_bfe_u32 v10, v1, 4, 1
    v_lshlrev_b32 v10, 5, v10
    v_lshl_add_u32 v9, v9, 7, v10
    """)
    for u in range(2):
        for t in range(2):
            g(f"v_xor_b32 v10, {128*u+32*t}, v9")
            g(f"v_add_u32 v{14+2*u+t}, v8, v10")
    srd(g, 72, A_MEM0, 16384)
    g(f"""
    s_and_b32 s43, s27, 3
    s_lshl_b32 s43, s43, 11
    s_lshr_b32 s47, s27, 2
    s_lshl_b32 s47, s47, 14
    s_add_u32 s43, s43, s47
    s_lshl_b32 s47, s26, 10
    s_add_u32 s43, s43, s47
    s_lshl_b32 s47, s24, 8
    s_add_u32 s43, s43, s47
    s_add_u32 s43, s43, {VM}
    v_lshrrev_b32 v21, 2, v1
    v_lshlrev_b32 v8, 4, v21
    v_add_u32 v8, s43, v8
    v_lshrrev_b32 v21, 4, v1
    v_bfe_u32 v22, v1, 2, 1
    v_bfe_u32 v23, v1, 3, 1
    v_lshlrev_b32 v20, 5, v21
    v_lshl_add_u32 v20, v22, 4, v20
    v_lshl_add_u32 v20, v23, 8, v20
    v_lshlrev_b32 v21, 11, v21
    v_lshl_add_u32 v21, v22, 4, v21
    v_lshl_add_u32 v21, v23, 5, v21
    s_and_b32 s43, s27, 15
    s_lshl_b32 s43, s43, 9
    s_lshr_b32 s47, s27, 4
    s_lshl_b32 s47, s47, 14
    s_add_u32 s43, s43, s47
    s_lshl_b32 s47, s26, 7
    s_add_u32 s43, s43, s47
    s_add_u32 s43, s43, {MEM}
    v_add_u32 v20, s43, v20
    v_and_b32 v22, 3, v1
    v_mov_b32 v23, {OOB}
    v_cmp_eq_u32 vcc, 0, v22
    s_lshl_b32 s43, s26, 13
    s_lshl_b32 s47, s27, 6
    s_add_u32 s43, s43, s47
    v_cndmask_b32 v8, v23, v8, vcc
    v_cndmask_b32 v20, v23, v20, vcc
    s_lshl_b32 s53, s26, 5
    s_add_u32 s53, s53, s27
    s_waitcnt lgkmcnt(0)
    buffer_load_dwordx4 v[24:27], v21, s[72:75], s43 offen
    """)
    can_regs(g, opt, 1, 0, 0, 119, "s53", opt.get("cW", 1), 23, 22)
    for i in range(4): g(f"v_mov_b32 v{120+i}, -1")
    def st(so):
        sk = g.lab("AM")
        g(f"""
        buffer_store_dwordx4 v[120:123], v8, s[4:7], {so} offen sc1
        buffer_store_dword v120, v119, s[4:7], {so} offen sc1
        s_cmp_lt_u32 s47, 2
        s_cbranch_scc1 {sk}
        s_cmp_lg_u32 s24, 2
        s_cbranch_scc1 {sk}
        buffer_store_dwordx4 v[120:123], v20, s[4:7], {so} offen sc1
        {sk}:
        """)
    arm_first(g, st)
    sk = g.lab("AM")
    g(f"""
    s_cmp_lg_u32 s24, 0
    s_cbranch_scc1 {sk}
    s_waitcnt vmcnt(24)
    v_min_u32 v24, -2, v24
    s_mov_b32 s43, {REC}
    s_mov_b32 s47, {REC + 8192}
    buffer_store_dwordx4 v[24:27], v20, s[4:7], s43 offen sc1
    buffer_store_dwordx4 v[24:27], v20, s[4:7], s47 offen sc1
    {sk}:
    """)
    units = []
    def o_issue(hh, buf):
        for i in range(8):
            if i % 4 == 0: g(f"s_add_u32 m0, s40, {buf*8192 + i*1024}")
            g(f"s_add_u32 s41, s42, {hh*262144 + i*32768 - (i&3)*1024}")
            g(f"buffer_load_dwordx4 v{12+(i&1)}, s[8:11], s41 offen offset:{(i&3)*1024} lds")
    def o_read(hh, buf):
        for odd in range(2):
            for t in range(2):
                b = ((hh*2+odd)*2+t)*8
                for hf in range(2):
                    for u in range(2):
                        g(f"ds_read_b64_tr_b16 {ar(b+4*hf+2*u,2)}, v{14+2*u+t} offset:{buf*8192+hf*4096+odd*512}")
    for ff in range(4):
        units.append((lambda buf, ff=ff: wide_issue(g, 12, "s49", ff, buf, 2),
                      lambda buf, ff=ff: wide_read(g, lambda c: ("v", 128+(ff*4+c)*8), buf, 4), None))
    for hh in range(8):
        units.append((lambda buf, hh=hh: o_issue(hh, buf), lambda buf, hh=hh: o_read(hh, buf), None))
    run_ring(g, units, hook=arm_hook)
    g("s_barrier\nv_mov_b32 v13, v20")
    mark(g, opt, 3)
    idx_reg(g, 2, 11)
    g(f"""
    v_lshlrev_b32 v3, 4, v1
    s_and_b32 s43, s24, 1
    s_lshl_b32 s43, s43, 12
    s_lshr_b32 s47, s24, 1
    s_lshl_b32 s47, s47, 14
    s_or_b32 s43, s43, s47
    v_add_u32 v4, s43, v3
    v_add_u32 v4, {MEM}, v4
    s_lshl_b32 s43, s24, 14
    s_lshl_b32 s47, s26, 16
    s_add_u32 s43, s43, s47
    s_add_u32 s43, s43, {OM}
    v_add_u32 v5, s43, v3
    v_add_u32 v12, 4096, v5
    v_lshrrev_b32 v16, 5, v1
    v_lshlrev_b32 v6, 3, v1
    v_lshl_add_u32 v6, v16, 6, v6
    s_mul_i32 s43, s24, 2560
    v_add_u32 v6, s43, v6
    v_lshrrev_b32 v17, 2, v1
    v_and_b32 v18, 3, v1
    v_lshlrev_b32 v7, 3, v17
    v_lshl_add_u32 v7, v18, 7, v7
    v_lshrrev_b32 v19, 1, v18
    v_lshl_add_u32 v7, v19, 6, v7
    s_mul_i32 s43, s24, 640
    v_add_u32 v7, s43, v7
    v_and_b32 v19, 15, v1
    v_lshlrev_b32 v9, 2, v19
    v_bfe_u32 v20, v1, 4, 1
    v_lshl_add_u32 v9, v20, 8, v9
    v_lshl_add_u32 v9, v16, 7, v9
    s_lshl_b32 s43, s24, 9
    s_add_u32 s43, s43, {ROB}
    v_add_u32 v9, s43, v9
    v_lshlrev_b32 v10, 3, v1
    v_add_u32 v10, {ROB}, v10
    s_mov_b32 s60, 0
    s_mov_b32 s67, -2
    s_mov_b32 s68, 0
    s_mov_b32 s69, 0
    """)
    g(f"""
    s_mov_b32 s61, {REC}
    s_mov_b32 s56, 0
    """)
    g("s_lshl_b32 s43, s25, 5\ns_add_u32 s43, s43, s27")
    stamp_init(g, opt, "s43")
    par_init(g, opt, 16, "V_END")
    rec_at(g, "s50", "s61", "0")
    g(f"s_mov_b32 s62, {REC}\ns_mov_b32 s60, -1\ns_mov_b32 s69, {opt.get('dO', 0)}\ns_mov_b32 s53, {opt.get('tO', 9)}")
    def ldm(f, so="s50"): return f"buffer_load_dwordx4 {vr(16+4*f,4)}, v4, s[4:7], {so} offen offset:{f*1024} sc1"
    def ldo(f, so="s65"): return f"buffer_load_dwordx4 {vr(32+4*f,4)}, v{5 if f < 4 else 12}, s[4:7], {so} offen offset:{(f%4)*1024} sc1"
    def gather4(dst):
        g("s_nop 1")
        for q in (1, 2, 3):
            g(f"v_mov_b32_dpp v{dst+q}, v{dst} quad_perm:[{q},{q},{q},{q}] row_mask:0xf bank_mask:0xf")
    for i in range(16): g(f"v_mov_b32 v{64+i}, 0")
    g("V_LOOP:")
    stamp(g, opt, 0)
    for f in range(4):
        g(ldm(f))
        if f < 3 and opt.get("stV", 4): g(f"s_nop {opt.get('stV', 4)-1}")
    g("""
    s_add_u32 s60, s60, 1
    s_mov_b32 s65, s50
    s_mov_b32 s44, 0
    s_add_u32 s61, s62, 0x200000
    """)
    rec_next(g, "s62", "s56", "s47")
    g("s_add_u32 s47, s60, 1")
    rec_at(g, "s50", "s62", "s47")
    for i in range(16): g(f"v_mov_b32 v{80+i}, 0")
    R = [g.lab("VR") for f in range(4)]; C = [g.lab("VC") for f in range(4)]
    g("s_waitcnt vmcnt(3)")
    g(cmp1(16))
    g(f"s_cbranch_vccnz {R[0]}\n{C[0]}:")
    for f in range(4):
        for c in range(4):
            g(f"{SMF} {vr(64+4*c,4)}, {vr(16+4*f,4)}, {vr(128+(f*4+c)*8,8)}, v2")
            if c == 2 and f < 3:
                g(f"s_waitcnt vmcnt({2-f})")
                g(cmp1(16+4*(f+1)))
            if c == 3 and f < 3:
                g(f"s_cbranch_vccnz {R[f+1]}\n{C[f+1]}:")
    stamp(g, opt, 1)
    for c in range(4):
        a = 64 + 4*c
        if c in (1, 2): g("s_nop 0")
        g(f"v_add_f32 v{96+2*c}, v{a}, v{a+1}")
        g(f"v_add_f32 v{97+2*c}, v{a+2}, v{a+3}")
        g(f"ds_write_b64 v6, {vr(96+2*c,2)} offset:{RVB+640*c}")
    g("s_waitcnt lgkmcnt(0)\ns_barrier")
    for w in range(4): g(f"ds_read_b64 {vr(96+2*w,2)}, v7 offset:{RVB+2560*w}")
    for i in range(16): g(f"v_mov_b32 v{64+i}, 0")
    g("""
    s_waitcnt lgkmcnt(2)
    v_pk_add_f32 v[96:97], v[96:97], v[98:99]
    s_waitcnt lgkmcnt(0)
    v_pk_add_f32 v[100:101], v[100:101], v[102:103]
    v_pk_add_f32 v[96:97], v[96:97], v[100:101]
    v_cvt_pk_bf16_f32 v104, v96, v97
    v_min_u32 v104, s67, v104
    """)
    gather4(104)
    g("buffer_store_dwordx4 v[104:107], v8, s[4:7], s65 offen sc1")
    stamp(g, opt, 2)
    stamp_dump(g, opt)
    g("s_cmp_eq_u32 s60, 63\ns_cbranch_scc1 V_END")
    done = g.lab("ARD"); n1 = g.lab("ARN")
    g(f"""
    s_cmp_eq_u32 s24, 0
    s_cbranch_scc1 {done}
    s_cmp_ge_u32 s60, 58
    s_cbranch_scc1 {done}
    s_add_u32 s47, s60, 6
    s_bitcmp1_b64 s[86:87], s47
    s_cselect_b32 s47, 8192, 0
    s_add_u32 s47, s47, s61
    buffer_store_dwordx4 v[120:123], v8, s[4:7], s47 offen sc1
    buffer_store_dword v120, v119, s[4:7], s47 offen sc1
    s_cmp_lg_u32 s24, 2
    s_cbranch_scc1 {n1}
    buffer_store_dwordx4 v[120:123], v13, s[4:7], s47 offen sc1
    {n1}:
    s_cmp_lg_u32 s24, 3
    s_cbranch_scc1 {done}
    s_sub_u32 s47, s47, 768
    buffer_store_dwordx4 v[120:123], v8, s[4:7], s47 offen sc1
    {done}:
    """)
    g("s_mov_b32 s44, 0")
    if opt.get("can", 1): probe(g, opt, "O", 0, 32)
    else: backoff(g, opt.get("dO", 0))
    stamp(g, opt, 3)
    for f in range(8):
        g(ldo(f))
        if f < 7 and opt.get("stO", 8): g(f"s_nop {opt.get('stO', 8)-1}")
    adapt(g, opt, "O")
    RO = [g.lab("OR") for f in range(8)]; CO = [g.lab("OC") for f in range(8)]
    g("s_waitcnt vmcnt(7)")
    g(cmp1(32))
    g(f"s_cbranch_vccnz {RO[0]}\n{CO[0]}:")
    stamp(g, opt, 4)
    fC = opt.get("fC", 0) if opt.get("can", 1) else 99
    for f in range(8):
        for c in range(4):
            g(f"{SMF} {vr(80+4*c,4)}, {vr(32+4*f,4)}, {ar((f*4+c)*8,8)}, v2")
            if c == 0 and f == fC: g("buffer_store_dword v1, v119, s[4:7], s50 offen sc1")
            if c == 2 and f < 7:
                g(f"s_waitcnt vmcnt({6-f+(1 if f >= fC else 0)})")
                g(cmp1(32+4*(f+1)))
            if c == 3 and f < 7:
                g(f"s_cbranch_vccnz {RO[f+1]}\n{CO[f+1]}:")
    stamp(g, opt, 5)
    g("""
    s_mov_b32 exec_hi, 0
    v_add_f32 v96, v80, v81
    v_add_f32 v98, v82, v83
    s_nop 0
    v_add_f32 v97, v84, v85
    v_add_f32 v99, v86, v87
    s_not_b64 exec, exec
    s_nop 0
    v_add_f32 v96, v88, v89
    v_add_f32 v98, v90, v91
    v_add_f32 v97, v92, v93
    v_add_f32 v99, v94, v95
    s_mov_b64 exec, -1
    """)
    if fC == 8: g("buffer_store_dword v1, v119, s[4:7], s50 offen sc1")
    else: g("s_nop 0")
    g("""
    v_permlane32_swap_b32 v96, v98
    v_permlane32_swap_b32 v97, v99
    s_nop 0
    v_add_f32 v96, v96, v98
    v_add_f32 v97, v97, v99
    ds_write2_b32 v9, v96, v97 offset0:0 offset1:16
    s_waitcnt lgkmcnt(0)
    s_barrier
    s_cmp_lg_u32 s24, 0
    s_cbranch_scc1 V_NEXT
    """)
    for k in range(4): g(f"ds_read_b64 {vr(96+2*k,2)}, v10 offset:{512*k}")
    g("""
    s_waitcnt lgkmcnt(2)
    v_pk_add_f32 v[96:97], v[96:97], v[98:99]
    s_waitcnt lgkmcnt(0)
    v_pk_add_f32 v[100:101], v[100:101], v[102:103]
    v_pk_add_f32 v[96:97], v[96:97], v[100:101]
    v_cvt_pk_bf16_f32 v112, v96, v97
    v_min_u32 v112, s67, v112
    """)
    gather4(112)
    g("buffer_store_dwordx4 v[112:115], v13, s[4:7], s50 offen sc1")
    stamp(g, opt, 6)
    g("V_NEXT:")
    g("s_barrier")
    d = opt.get("dV", 0)
    while d > 0:
        g(f"s_nop {min(d, 16)-1}"); d -= 16
    g("s_branch V_LOOP")
    for (RR, CC, n, ldf, base, inc) in ((R, C, 4, ldm, 16, 1), (RO, CO, 8, ldo, 32, 0x10000)):
        for f in range(n):
            g(f"{RR[f]}:")
            g(f"s_add_u32 s68, s68, {inc}\ns_add_u32 s44, s44, 1\ns_cmp_gt_u32 s44, {TMO}\ns_cbranch_scc1 V_END")
            for k in range(f, n): g(ldf(k, "s65"))
            g("s_waitcnt vmcnt(0)")
            g(cmp1(base+4*f))
            g(f"s_cbranch_vccz {CC[f]}\ns_branch {RR[f]}")
    g("V_END:")
    g("s_endpgm")
```

```python
import sys, os
sys.path.insert(0, os.path.dirname(os.path.abspath(__file__)))
from common import *
from k0 import gen_init
from gemm import gen_gemm, gen_gemm64
LDS_BYTES = 163840
BC = LDS_BYTES - 16

def task_lists():
    L = {}
    L[3] = [("K64",0,8,0,4), ("K",0,16,1,1), ("V",0,16,1,1), ("Q",0,8,0,4), ("Q",8,8,0,4)]
    first = {4: [("K64",8,6,0,4)], 5: [("K64",14,2,0,4), ("V64",0,4,0,4)], 6: [("V64",4,6,0,4)], 7: [("V64",10,6,0,4)]}
    for i, c in enumerate((4, 5, 6, 7)):
        t = "KV"[i >> 1]; t0 = 8*(i & 1)
        L[c] = first[c] + [("F1",7*(i&1),7,4*(i>>1),4), (t,t0,8,2,2), ("F2",0,4,2*i,2), (t,t0,8,4,4), ("Q",4*i,4,4,4)]
    return L

def bcast_atomic(g, soff, dst, R="s[4:7]"):
    sk = g.lab("BA")
    g(f"""
    s_cmp_lg_u32 s24, 0
    s_cbranch_scc1 {sk}
    v_mov_b32 v2, 1
    v_mov_b32 v3, 0
    v_mov_b32 v4, {BC}
    s_mov_b64 exec, 1
    buffer_atomic_add v2, v3, {R}, {soff} offen sc0 sc1
    s_waitcnt vmcnt(0)
    ds_write_b32 v4, v2
    s_mov_b64 exec, -1
    s_waitcnt lgkmcnt(0)
    {sk}:
    s_barrier
    v_mov_b32 v4, {BC}
    ds_read_b32 v2, v4
    s_waitcnt lgkmcnt(0)
    v_readfirstlane_b32 {dst}, v2
    s_barrier
    """)

def gen_main(g, opt):
    g("""
    s_cmp_ge_u32 s2, 256
    s_cbranch_scc1 M_END
    """)
    srd(g, 4, A_WS, WS_BYTES); srd(g, 16, A_DBG, 256)
    g("""
    v_and_b32 v1, 63, v0
    v_lshrrev_b32 v2, 6, v0
    s_getreg_b32 s22, hwreg(HW_REG_XCC_ID, 0, 4)
    v_readfirstlane_b32 s24, v2
    s_mov_b32 s23, 0
    s_waitcnt lgkmcnt(0)
    M_TRY:
    s_add_u32 s25, s22, s23
    s_and_b32 s25, s25, 7
    s_lshr_b32 s26, s25, 2
    s_lshl_b32 s26, s26, 7
    s_and_b32 s27, s25, 3
    s_lshl_b32 s27, s27, 2
    s_add_u32 s26, s26, s27
    """)
    bcast_atomic(g, "s26", "s27", "s[16:19]")
    g("""
    s_cmp_lt_u32 s27, 32
    s_cbranch_scc1 M_GOT
    s_add_u32 s23, s23, 1
    s_cmp_lt_u32 s23, 8
    s_cbranch_scc1 M_TRY
    s_branch M_END
    M_GOT:
    s_mov_b32 s20, s25
    s_mov_b32 s21, s27
    """)
    mark(g, opt, 0)
    if opt.get("chain", True):
        if opt.get("mix", 1):
            g("""
            s_cmp_ge_u32 s25, 3
            s_cbranch_scc1 W_INIT
            s_lshl_b32 s26, s25, 5
            s_add_u32 s26, s26, s27
            s_mul_i32 s27, s26, 21846
            s_lshr_b32 s27, s27, 16
            s_mul_i32 s25, s27, 3
            s_sub_u32 s25, s26, s25
            """)
            if opt.get("marks"): g("s_mov_b32 s20, s25\ns_mov_b32 s21, s27")
        g("""
        s_cmp_eq_u32 s25, 0
        s_cbranch_scc1 R_S
        """)
        if opt.get("solo"): g("s_branch M_END")
        g("""
        s_cmp_lt_u32 s25, 3
        s_cbranch_scc1 R_VO
        """)
    elif not opt.get("allwork"):
        g("s_cmp_lt_u32 s25, 3\ns_cbranch_scc1 M_END")
    gen_init(g, opt)
    mark(g, opt, 4)
    g("s_mov_b32 s27, s21\ns_branch W_TASK\nW_LOOP:")
    g(f"s_lshl_b32 s26, s20, 8\ns_add_u32 s26, s26, {FLG+F_Q}")
    bcast_atomic(g, "s26", "s27")
    g("s_add_u32 s27, s27, 32\nW_TASK:")
    if opt.get("marks"): g("s_mov_b32 s96, s27")
    tmark(g, opt, 0)
    TL = task_lists()
    for c in range(3, 8):
        nc = g.lab("TC")
        if c < 7: g(f"s_cmp_lg_u32 s20, {c}\ns_cbranch_scc1 {nc}")
        start = 0
        for typ, t0, nt, b0, nb in TL[c]:
            nx = g.lab("TK"); n = nt*nb
            mul = (65536 + nt - 1)//nt
            assert all((i*mul) >> 16 == i//nt for i in range(n))
            g(f"""
            s_cmp_lt_u32 s27, {start+n}
            s_cbranch_scc0 {nx}
            s_sub_u32 s29, s27, {start}
            s_mul_i32 s28, s29, {mul}
            s_lshr_b32 s28, s28, 16
            s_mul_i32 s26, s28, {nt}
            s_sub_u32 s29, s29, s26
            s_add_u32 s29, s29, {t0}
            s_add_u32 s28, s28, {b0}
            s_branch T_{typ}
            {nx}:
            """)
            start += n
        if c < 7: g(f"s_branch W_END\n{nc}:")
    g("W_END:")
    mark(g, opt, 1)
    if opt.get("ap", True):
        g(f"""
        s_mov_b32 s27, s21
        s_cmp_eq_u32 s20, 3
        s_cbranch_scc1 R_A
        s_sub_u32 s26, s20, 4
        s_branch R_P
        """)
    g("s_branch M_END")
    for typ in ("K", "V", "Q", "F1", "F2"):
        gen_gemm(g, typ, "W_LOOP", "M_END", opt)
    for typ in "KV": gen_gemm64(g, typ, "W_LOOP", opt)
    if opt.get("chain", True):
        from s4 import gen_s
        from vo2 import gen_vo
        gen_s(g, opt); gen_vo(g, opt)
    if opt.get("ap", True):
        from ap import gen_a, gen_p
        gen_a(g, opt); gen_p(g, opt)
    g("M_END2:")
    mark(g, opt, 2)
    g("M_END:")
    g("s_endpgm")

def build(opt=None):
    opt = opt or {}
    ref = open("cdna_kernels/" + NAME + ".s.ref").read().split("\n")
    hdr = [l for l in ref if l.startswith(";") and "@launch" not in l and "Override" not in l and "grid=ceil" not in l]
    out = "\n".join(hdr) + "\n"
    out += f"; @launch grid=(256,1,1) block=(256,1,1) lds={LDS_BYTES}\n"
    out += '.amdgcn_target "amdgcn-amd-amdhsa--gfx950"\n.text\n'
    g = G(); gen_main(g, opt)
    out += f".globl {NAME}_kernel\n.p2align 8\n.type {NAME}_kernel,@function\n{NAME}_kernel:\n" + g.text()
    out += '.section .rodata,"a"\n.p2align 6\n' + kdesc(NAME + "_kernel", 512, 256)
    return out

if __name__ == "__main__":
    import json
    opt = json.loads(sys.argv[2]) if len(sys.argv) > 2 else {}
    open(sys.argv[1], "w").write(build(opt))
```

```python
from common import *
from gemm import f2u
import math
TMO = 30000
SMF = "v_smfmac_f32_16x16x64_bf16"
MF32 = "v_mfma_f32_16x16x32_bf16"
MF16 = "v_mfma_f32_16x16x16_bf16"
CEXP = 128 ** -0.5 * math.log2(math.e)

def delay(g, clks):
    clks = int(clks)
    if clks >= 128:
        g(f"s_sleep {min(127, clks//64)}"); clks %= 64
    while clks >= 64:
        g("s_nop 15"); clks -= 64
    if clks >= 4: g(f"s_nop {clks//4-1}")

def stamp(g, opt, k):
    if not opt.get("stamps"): return
    if opt.get("only") is not None and k not in opt["only"]: return
    g(f"{'s_memtime' if opt.get('clk') or k == opt.get('fq') else 's_memrealtime'} s[{72+2*k}:{73+2*k}]")

def stamp_init(g, opt, idreg):
    if not opt.get("stamps"): return
    g(f"""
    s_lshl_b32 s70, {idreg}, 2
    s_add_u32 s70, s70, s24
    s_lshl_b32 s70, s70, 11
    s_add_u32 s70, s70, {FLG+MB}
    v_lshlrev_b32 v14, 2, v1
    s_mov_b32 s58, 0
    """)

def stamp_dump(g, opt, n=7):
    if not opt.get("stamps"): return
    g("s_waitcnt lgkmcnt(0)")
    for k in range(n): g(f"v_writelane_b32 v15, s{72+2*k}, {k}")
    g("""
    s_lshl_b32 s58, s58, 8
    s_or_b32 s68, s68, s58
    v_writelane_b32 v15, s68, 7
    s_mov_b64 exec, 0xff
    buffer_store_dword v15, v14, s[4:7], s70 offen
    s_mov_b64 exec, -1
    s_add_u32 s70, s70, 32
    s_mov_b32 s68, 0
    s_mov_b32 s58, 0
    """)

def wide_addrs(g, vpar, vtr, t0):
    g(f"""
    v_lshrrev_b32 v{t0}, 3, v1
    v_lshlrev_b32 v{t0}, 13, v{t0}
    v_lshrrev_b32 v{t0+1}, 5, v1
    v_lshlrev_b32 v{t0+1}, 1, v{t0+1}
    v_and_b32 v{t0+2}, 7, v1
    v_xor_b32 v{t0+1}, v{t0+1}, v{t0+2}
    v_lshl_add_u32 v{vpar}, v{t0+1}, 4, v{t0}
    v_xor_b32 v{t0+1}, 4, v{t0+1}
    v_lshl_add_u32 v{vpar+1}, v{t0+1}, 4, v{t0}
    """)
    g(f"""
    v_bfe_u32 v{t0}, v1, 2, 1
    v_bfe_u32 v{t0+1}, v1, 4, 1
    v_bfe_u32 v{t0+2}, v1, 3, 1
    v_lshl_add_u32 v{t0+1}, v{t0+2}, 1, v{t0+1}
    v_lshl_add_u32 v{t0}, v{t0+1}, 2, v{t0}
    v_bfe_u32 v{t0+2}, v1, 5, 1
    v_lshl_add_u32 v{t0}, v{t0+2}, 4, v{t0}
    v_lshlrev_b32 v{t0}, 7, v{t0}
    v_and_b32 v{t0+2}, 3, v1
    v_lshl_add_u32 v{t0}, v{t0+2}, 3, v{t0}
    v_add_u32 v{t0}, s40, v{t0}
    """)
    for c in range(4):
        g(f"v_xor_b32 v{t0+2}, {c}, v{t0+1}")
        g(f"v_lshl_add_u32 v{vtr+c}, v{t0+2}, 5, v{t0}")

def wide_issue(g, srdreg, sbase, f, buf, vpar):
    for i in range(8):
        if i % 4 == 0: g(f"s_add_u32 m0, s40, {buf*8192 + i*1024}")
        g(f"s_add_u32 s41, {sbase}, {(64*f+8*i)*8192 - (i&3)*1024}")
        g(f"buffer_load_dwordx4 v{vpar+(i&1)}, s[{srdreg}:{srdreg+3}], s41 offen offset:{(i&3)*1024} lds")

def wide_read(g, dst, buf, vtr):
    for c in range(4):
        k, b = dst(c)
        for hf in range(2):
            for u in range(2):
                g(f"ds_read_b64_tr_b16 {vr(b+4*hf+2*u,2,k)}, v{vtr+c} offset:{buf*8192+hf*4096+u*256}")

def run_ring(g, units, dbg=False, hook=None, U=6, D=4):
    n = len(units)
    if dbg: g("s_memrealtime s[72:73]")
    for u in range(min(D, n)): units[u][0](u % 4)
    for u in range(n):
        g(f"s_waitcnt vmcnt({8*min(D-1, n-1-u) + (1 if hook and U < u <= U+4 else 0)})")
        if dbg and u % 2 == 0: g(f"s_memrealtime s[{74+u}:{75+u}]")
        units[u][1](u % 4)
        g("s_waitcnt lgkmcnt(0)")
        if units[u][2]: units[u][2](u % 4)
        if u + D < n: units[u+D][0]((u + D) % 4)
        if hook and u == U: hook(g)

def chk(g, r, n=4, t=11):
    L = []
    if n == 4:
        L.append(f"v_max3_u32 v{t}, v{r}, v{r+1}, v{r+2}")
        L.append(f"v_max_u32 v{t}, v{t}, v{r+3}")
    L.append(f"v_cmp_eq_u32 vcc, -1, v{t}")
    return L

def idx_reg(g, v, t):
    g(f"""
    v_and_b32 v{t}, 1, v1
    v_mov_b32 v{v}, 0x4444
    v_cmp_eq_u32 vcc, 1, v{t}
    v_mov_b32 v{t}, 0xeeee
    s_nop 0
    v_cndmask_b32 v{v}, v{v}, v{t}, vcc
    """)

def kv_flags(g, fail):
    top = g.lab("KF"); ok = g.lab("KFOK")
    g(f"""
    s_lshl_b32 s47, s45, 11
    s_add_u32 s47, s47, s46
    s_mov_b32 s44, 0
    v_mov_b32 v11, 0
    {top}:
    buffer_load_dwordx2 v[16:17], v11, s[4:7], s47 offen sc1
    s_waitcnt vmcnt(0)
    v_and_b32 v16, v16, v17
    s_nop 0
    v_readfirstlane_b32 s48, v16
    s_cmp_lg_u32 s48, 0
    s_cbranch_scc1 {ok}
    s_sleep 8
    s_add_u32 s44, s44, 1
    s_cmp_lt_u32 s44, {TMO}
    s_cbranch_scc1 {top}
    s_branch {fail}
    {ok}:
    """)

LKX, LVX, LIMG, LW = 0, 16384, 24576, 32768
AF = [0, 1, 2, 4, 5, 6, 8, 9]; VF = [10, 12, 13, 14]; LF = [3, 7, 11, 15]
def s_op(f, c):
    if f in AF: return ("a", AF.index(f)*32 + 8*c)
    if f in VF: return ("v", 128 + VF.index(f)*32 + 8*c)
    return ("v", 32 + 8*c)
M0R = 64
def gen_s(g, opt):
    F0 = opt.get("F0", 11)
    g("R_S:")
    g("s_setprio 3")
    srd(g, 8, A_WQ, 8*MB); srd(g, 12, A_WK, 8*MB)
    g(f"""
    s_lshl_b32 s40, s24, 15
    s_add_u32 s40, s40, {LW}
    s_lshl_b32 s42, s27, 8
    s_and_b32 s43, s24, 1
    s_lshl_b32 s43, s43, 7
    s_add_u32 s42, s42, s43
    s_waitcnt lgkmcnt(0)
    s_cmp_ge_u32 s24, 2
    s_cselect_b32 s8, s12, s8
    s_cselect_b32 s9, s13, s9
    """)
    wide_addrs(g, 2, 4, 8)
    g("v_lshlrev_b32 v12, 4, v1\nv_add_u32 v12, s40, v12")
    units = []
    for f in AF + VF + LF:
        def post(buf):
            for c in range(4):
                for q in range(2):
                    g(f"ds_write_b128 v12, {vr(32+8*c+4*q,4)} offset:{buf*8192+(2*c+q)*1024}")
            g("s_waitcnt lgkmcnt(0)")
        units.append((lambda buf, f=f: wide_issue(g, 8, "s42", f, buf, 2),
                      lambda buf, f=f: wide_read(g, lambda c: s_op(f, c), buf, 4),
                      post if f in LF else None))
    run_ring(g, units)
    idx_reg(g, 2, 11)
    g(f"""
    v_lshlrev_b32 v3, 4, v1
    v_mov_b32 v4, v12
    v_and_b32 v11, 15, v1
    v_lshrrev_b32 v16, 4, v1
    s_and_b32 s43, s24, 1
    s_lshl_b32 s43, s43, 11
    s_lshr_b32 s47, s24, 1
    s_lshl_b32 s47, s47, 4
    s_add_u32 s43, s43, s47
    s_add_u32 s43, s43, {LIMG}
    v_lshlrev_b32 v5, 5, v11
    v_lshl_add_u32 v5, v16, 2, v5
    v_add_u32 v5, s43, v5
    v_lshlrev_b32 v6, 3, v1
    v_add_u32 v6, {LIMG}, v6
    v_mov_b32 v7, v3
    s_lshl_b32 s43, s24, 11
    v_add_u32 v12, s43, v3
    s_lshl_b32 s43, s27, 11
    s_lshl_b32 s47, s24, 9
    s_add_u32 s43, s43, s47
    v_lshlrev_b32 v8, 4, v11
    v_and_b32 v17, 1, v16
    v_lshl_add_u32 v8, v17, 3, v8
    v_add_u32 v8, s43, v8
    v_add_u32 v8, {VM}, v8
    v_and_b32 v18, 7, v1
    v_lshlrev_b32 v10, 4, v18
    v_lshl_add_u32 v10, v16, 7, v10
    v_add_u32 v10, s43, v10
    v_add_u32 v10, {KM}, v10
    v_bfe_u32 v18, v1, 2, 1
    v_lshlrev_b32 v9, 15, v18
    v_and_b32 v18, 3, v1
    v_lshl_add_u32 v9, v18, 5, v9
    v_lshl_add_u32 v9, v17, 4, v9
    v_lshrrev_b32 v18, 5, v1
    v_lshl_add_u32 v9, v18, 7, v9
    s_lshl_b32 s43, s27, 10
    s_lshl_b32 s47, s24, 8
    s_add_u32 s43, s43, s47
    s_add_u32 s43, s43, {OM}
    v_add_u32 v9, s43, v9
    v_mov_b32 v18, {OOB}
    v_cmp_gt_u32 vcc, 8, v11
    v_mov_b32 v13, 0
    s_nop 0
    v_cndmask_b32 v9, v18, v9, vcc
    v_cndmask_b32 v10, v10, v18, vcc
    v_mov_b32 v18, {hex(f2u(-1e30))}
    v_cmp_gt_u32 vcc, 32, v1
    s_lshr_b32 s46, s27, 1
    s_lshl_b32 s46, s46, 4
    v_cndmask_b32 v13, v13, v18, vcc
    s_add_u32 s46, s46, {FLG+F_KVQ}
    s_lshl_b32 s49, s27, 13
    s_add_u32 s50, s49, {KX}
    s_add_u32 s51, s49, {VX}
    s_lshl_b32 s52, s24, 11
    s_add_u32 s53, s52, {LVX}
    s_mov_b32 s60, 0
    s_mov_b32 s61, {MEM}
    s_mov_b32 s65, 0
    s_mov_b32 s66, {hex(f2u(CEXP))}
    s_mov_b32 s67, -2
    s_mov_b32 s68, 0
    s_mov_b32 s45, 0
    """)
    stamp_init(g, opt, "s27")
    kv_flags(g, "S_END")
    def dma_k():
        g(f"""
        s_mov_b32 m0, s52
        s_xor_b32 s52, s52, 8192
        buffer_load_dwordx4 v12, s[4:7], s50 offen sc1 lds
        buffer_load_dwordx4 v12, s[4:7], s50 offen offset:1024 sc1 lds
        s_add_u32 s50, s50, 262144
        """)
    def dma_v():
        g(f"""
        s_mov_b32 m0, s53
        s_nop 0
        buffer_load_dwordx4 v12, s[4:7], s51 offen sc1 lds
        buffer_load_dwordx4 v12, s[4:7], s51 offen offset:1024 sc1 lds
        s_add_u32 s51, s51, 262144
        """)
    dma_k(); dma_k(); dma_v()
    g("s_waitcnt vmcnt(0)\ns_barrier")
    def tread(j):
        return [f"ds_read_b128 {vr(32+4*q,4)}, v4 offset:{j*8192+q*1024}" for q in range(8)]
    def ld(f): return f"buffer_load_dwordx4 {vr(M0R+4*f,4)}, v3, s[4:7], s{61+f//4} offen offset:{(f%4)*1024} sc1"
    g("S_LOOP:")
    g("""
    s_add_u32 s62, s61, 4096
    s_add_u32 s63, s61, 8192
    s_add_u32 s64, s61, 12288
    """)
    for x in tread(0): g(x)
    for i in range(16): g(f"v_mov_b32 v{16+i}, 0")
    delay(g, opt.get("dS", 0))
    stamp(g, opt, 0)
    for f in range(16): g(ld(f))
    R = [g.lab("SR") for f in range(16)]; C = [g.lab("SC") for f in range(16)]
    g("s_mov_b32 s44, 0")
    g("s_waitcnt vmcnt(15)")
    for x in chk(g, M0R): g(x)
    g(f"s_cbranch_vccnz {R[0]}")
    g(f"{C[0]}:")
    stamp(g, opt, 1)
    extra = {f: [] for f in range(16)}
    t1, t2, t3 = tread(1), tread(2), tread(3)
    extra[4] += t1[:4]; extra[5] += t1[4:]
    kx = [f"ds_read_b128 {vr(68+4*q,4)}, v7 offset:{LKX+q*1024}" for q in range(8)]
    extra[6] += kx[:4]; extra[7] += kx[4:6]
    extra[8] += t2[:4]; extra[9] += t2[4:]; extra[10] += kx[6:]
    extra[12] += t3[:4]; extra[13] += t3[4:]
    extra[11] += [f"ds_read_b128 {vr(100+4*t,4)}, v12 offset:{LVX+t*1024}" for t in range(2)]
    extra[14] += [f"v_mov_b32 v{108+i}, v13" for i in range(4)]
    vm = [f"buffer_load_dwordx2 {vr(64+2*t,2)}, v8, s[4:7], s65 offen offset:{256*t} sc1" for t in range(2)]
    extra[F0] = vm + extra[F0]
    for f in range(16):
        if f in LF: g("s_waitcnt lgkmcnt(0)")
        ex = list(extra[f])
        for c in range(4):
            k, b = s_op(f, c)
            g(f"{SMF} {vr(16+4*c,4)}, {vr(M0R+4*f,4)}, {vr(b,8,k)}, v2")
            if c < 2:
                for x in ex[2*c:2*c+2]: g(x)
            if c == 2 and f < 15:
                for x in ex[4:]: g(x)
                g(f"s_waitcnt vmcnt({14-f + (2 if f >= F0 else 0)})")
                for x in chk(g, M0R+4*(f+1))[:2]: g(x)
            if c == 3 and f < 15:
                g(chk(g, M0R+4*(f+1))[2])
                g(f"s_cbranch_vccnz {R[f+1]}")
                g(f"{C[f+1]}:")
    stamp(g, opt, 2)
    g("s_nop 4")
    for c in range(4):
        a = 16 + 4*c
        g(f"v_add_f32 v{a}, v{a}, v{a+1}")
        g(f"v_add_f32 v{a+2}, v{a+2}, v{a+3}")
        g(f"v_cvt_pk_bf16_f32 v{a}, v{a}, v{a+2}")
        if c % 2 == 1: g(f"ds_write2_b32 v5, v{a-4}, v{a} offset0:{(c-1)*128 % 256} offset1:{(c*128) % 256}" if c == 1 else
                         f"ds_write2st64_b32 v5, v{a-4}, v{a} offset0:4 offset1:6")
    g("s_waitcnt lgkmcnt(0)")
    g("s_barrier")
    for b in range(4):
        for j in range(2):
            g(f"ds_read_b64_tr_b16 {vr(32+4*b+2*j,2)}, v6 offset:{b*1024+j*512}")
    for i in range(4): g(f"v_mov_b32 v{112+i}, 0x3f803f80")
    stamp(g, opt, 3)
    g("s_cmp_eq_u32 s60, 63")
    g("s_cbranch_scc1 S_KM")
    for b in range(4):
        g(f"s_waitcnt lgkmcnt({6-2*b})")
        X = vr(32+4*b, 4)
        g(f"{MF32} v[48:51], {vr(68+4*b,4)}, {X}, {'0' if b == 0 else 'v[48:51]'}")
        g(f"{MF32} v[52:55], {vr(68+16+4*b,4)}, {X}, {'0' if b == 0 else 'v[52:55]'}")
        g(f"{MF32} v[56:59], {X}, {X}, {'v[108:111]' if b == 0 else 'v[56:59]'}")
    g(f"""
    s_nop 5
    v_max3_f32 v60, v48, v49, v50
    v_max3_f32 v60, v60, v51, v52
    v_max3_f32 v60, v60, v53, v54
    v_max3_f32 v61, v55, v56, v57
    v_max3_f32 v61, v61, v58, v59
    v_max_f32 v60, v60, v61
    v_max_f32 v61, v60, v61
    s_nop 1
    v_permlane32_swap_b32 v60, v61
    v_max_f32 v60, v60, v61
    v_max_f32 v61, v60, v61
    s_nop 1
    v_permlane16_swap_b32 v60, v61
    v_max_f32 v60, v60, v61
    v_mul_f32 v60, s66, v60
    """)
    for i in range(12): g(f"v_fma_f32 v{48+i}, v{48+i}, s66, -v60")
    for i in range(12): g(f"v_exp_f32 v{48+i}, v{48+i}")
    for i in range(4): g(f"v_cvt_pk_bf16_f32 v{60+i}, v{48+2*i}, v{49+2*i}")
    for i in range(2): g(f"v_cvt_pk_bf16_f32 v{116+i}, v{56+2*i}, v{57+2*i}")
    stamp(g, opt, 4)
    RV, CV = g.lab("SRV"), g.lab("SCV")
    g("s_nop 0")
    g(f"{MF32} v[24:27], v[112:115], v[60:63], 0")
    g(f"{MF32} v[16:19], v[100:103], v[60:63], 0")
    g("s_waitcnt vmcnt(0)")
    for x in chk(g, 64)[:2]: g(x)
    g(f"{MF32} v[20:23], v[104:107], v[60:63], 0")
    g(chk(g, 64)[2])
    g(f"{MF16} v[24:27], v[112:113], v[116:117], v[24:27]")
    g(f"s_cbranch_vccnz {RV}")
    g(f"{CV}:")
    stamp(g, opt, 5)
    g(f"{MF16} v[16:19], v[64:65], v[116:117], v[16:19]")
    g(f"{MF16} v[20:23], v[66:67], v[116:117], v[20:23]")
    g("s_nop 5")
    g("v_rcp_f32 v24, v24")
    g("s_nop 0")
    for i in range(8): g(f"v_mul_f32 v{16+i}, v{16+i}, v24")
    for i in range(4): g(f"v_cvt_pk_bf16_f32 v{28+i}, v{16+2*i}, v{17+2*i}")
    for i in range(4): g(f"v_min_u32 v{28+i}, s67, v{28+i}")
    g("buffer_store_dwordx4 v[28:31], v9, s[4:7], s65 offen sc1")
    stamp(g, opt, 6)
    g("S_KM:")
    g("s_waitcnt lgkmcnt(0)")
    done = g.lab("KMD")
    for b in range(4):
        nx = g.lab("KM")
        if b < 3: g(f"s_cmp_lg_u32 s24, {b}\ns_cbranch_scc1 {nx}")
        for i in range(4): g(f"v_min_u32 v{120+i}, s67, v{32+4*b+i}")
        if b < 3: g(f"s_branch {done}\n{nx}:")
    g(f"{done}:")
    g("buffer_store_dwordx4 v[120:123], v10, s[4:7], s65 offen sc1")
    stamp_dump(g, opt)
    nopf = g.lab("NP"); nofl = g.lab("NF")
    g(f"""
    s_cmp_eq_u32 s60, 63
    s_cbranch_scc1 S_END
    s_add_u32 s60, s60, 1
    s_add_u32 s61, s61, 16384
    s_add_u32 s65, s65, 65536
    v_xor_b32 v7, 8192, v7
    s_cmp_ge_u32 s60, 63
    s_cbranch_scc1 S_LOOP
    """)
    dma_v()
    g(f"""
    s_cmp_ge_u32 s60, 62
    s_cbranch_scc1 S_LOOP
    s_add_u32 s45, s60, 1
    s_and_b32 s47, s45, 7
    s_cmp_lg_u32 s47, 0
    s_cbranch_scc1 {nofl}
    s_lshr_b32 s45, s45, 3
    """)
    kv_flags(g, "S_END")
    g(f"{nofl}:")
    dma_k()
    g("s_branch S_LOOP")
    for f in range(16):
        g(f"{R[f]}:")
        g(f"s_add_u32 s68, s68, 1\ns_add_u32 s44, s44, 1\ns_cmp_gt_u32 s44, {TMO}\ns_cbranch_scc1 S_END")
        for k in range(f, 16): g(ld(k))
        g("s_waitcnt vmcnt(0)")
        for x in chk(g, M0R+4*f): g(x)
        g(f"s_cbranch_vccz {C[f]}\ns_branch {R[f]}")
    g(f"{RV}:")
    g(f"s_add_u32 s68, s68, 0x10000\ns_add_u32 s44, s44, 1\ns_cmp_gt_u32 s44, {TMO}\ns_cbranch_scc1 S_END")
    for x in vm: g(x)
    g("s_waitcnt vmcnt(0)")
    for x in chk(g, 64): g(x)
    g(f"s_cbranch_vccz {CV}\ns_branch {RV}")
    g("S_END:")
    g("s_endpgm")

RVB, ROB = 0, 16384
def gen_vo(g, opt):
    g("R_VO:")
    g("s_setprio 3")
    srd(g, 8, A_WO, 8*MB); srd(g, 12, A_WV, 8*MB)
    g(f"""
    s_sub_u32 s26, s25, 1
    s_lshl_b32 s40, s24, 15
    s_lshl_b32 s42, s24, 21
    s_lshl_b32 s43, s27, 6
    s_add_u32 s42, s42, s43
    s_lshl_b32 s49, s27, 8
    s_lshl_b32 s43, s26, 7
    s_add_u32 s49, s49, s43
    s_lshl_b32 s43, s24, 21
    s_add_u32 s49, s49, s43
    """)
    wide_addrs(g, 2, 4, 8)
    g("""
    v_bfe_u32 v8, v1, 4, 1
    v_lshlrev_b32 v8, 3, v8
    v_xor_b32 v8, v8, v1
    v_lshrrev_b32 v9, 2, v8
    v_lshlrev_b32 v9, 11, v9
    v_and_b32 v8, 3, v8
    v_lshl_add_u32 v12, v8, 4, v9
    v_xor_b32 v8, 2, v8
    v_lshl_add_u32 v13, v8, 4, v9
    v_lshrrev_b32 v8, 4, v1
    v_lshlrev_b32 v8, 10, v8
    v_bfe_u32 v9, v1, 3, 1
    v_lshl_add_u32 v8, v9, 8, v8
    v_bfe_u32 v10, v1, 2, 1
    v_lshl_add_u32 v8, v10, 6, v8
    v_and_b32 v10, 3, v1
    v_lshl_add_u32 v8, v10, 3, v8
    v_add_u32 v8, s40, v8
    v_bfe_u32 v10, v1, 4, 1
    v_lshlrev_b32 v10, 5, v10
    v_lshl_add_u32 v9, v9, 7, v10
    """)
    for u in range(2):
        for t in range(2):
            g(f"v_xor_b32 v10, {128*u+32*t}, v9")
            g(f"v_add_u32 v{14+2*u+t}, v8, v10")
    g("s_waitcnt lgkmcnt(0)")
    units = []
    def o_issue(hh, buf):
        for i in range(8):
            if i % 4 == 0: g(f"s_add_u32 m0, s40, {buf*8192 + i*1024}")
            g(f"s_add_u32 s41, s42, {hh*262144 + i*32768 - (i&3)*1024}")
            g(f"buffer_load_dwordx4 v{12+(i&1)}, s[8:11], s41 offen offset:{(i&3)*1024} lds")
    def o_read(hh, buf):
        for odd in range(2):
            for t in range(2):
                b = ((hh*2+odd)*2+t)*8
                for hf in range(2):
                    for u in range(2):
                        g(f"ds_read_b64_tr_b16 {ar(b+4*hf+2*u,2)}, v{14+2*u+t} offset:{buf*8192+hf*4096+odd*512}")
    for ff in range(4):
        units.append((lambda buf, ff=ff: wide_issue(g, 12, "s49", ff, buf, 2),
                      lambda buf, ff=ff: wide_read(g, lambda c: ("v", 128+(ff*4+c)*8), buf, 4), None))
    for hh in range(8):
        units.append((lambda buf, hh=hh: o_issue(hh, buf), lambda buf, hh=hh: o_read(hh, buf), None))
    run_ring(g, units)
    g("s_barrier")
    idx_reg(g, 2, 11)
    g(f"""
    v_lshlrev_b32 v3, 4, v1
    s_lshl_b32 s43, s24, 12
    v_add_u32 v4, s43, v3
    v_add_u32 v4, {MEM}, v4
    s_lshl_b32 s43, s24, 13
    s_lshl_b32 s47, s26, 15
    s_add_u32 s43, s43, s47
    s_add_u32 s43, s43, {OM}
    v_add_u32 v5, s43, v3
    v_add_u32 v12, 4096, v5
    v_lshrrev_b32 v16, 5, v1
    v_lshlrev_b32 v6, 3, v1
    v_lshl_add_u32 v6, v16, 6, v6
    s_mul_i32 s43, s24, 2560
    v_add_u32 v6, s43, v6
    v_lshrrev_b32 v17, 2, v1
    v_and_b32 v18, 3, v1
    v_lshlrev_b32 v7, 3, v17
    v_lshl_add_u32 v7, v18, 7, v7
    v_lshrrev_b32 v19, 1, v18
    v_lshl_add_u32 v7, v19, 6, v7
    s_mul_i32 s43, s24, 640
    v_add_u32 v7, s43, v7
    s_lshl_b32 s43, s27, 11
    s_lshl_b32 s47, s26, 10
    s_add_u32 s43, s43, s47
    s_lshl_b32 s47, s24, 8
    s_add_u32 s43, s43, s47
    s_add_u32 s43, s43, {VM}
    v_lshlrev_b32 v8, 4, v17
    v_add_u32 v8, s43, v8
    v_and_b32 v19, 15, v1
    v_lshlrev_b32 v9, 2, v19
    v_bfe_u32 v20, v1, 4, 1
    v_lshl_add_u32 v9, v20, 8, v9
    v_lshl_add_u32 v9, v16, 9, v9
    s_lshl_b32 s43, s24, 10
    s_add_u32 s43, s43, {ROB}
    v_add_u32 v9, s43, v9
    v_lshlrev_b32 v10, 3, v1
    v_add_u32 v10, {ROB}, v10
    v_lshrrev_b32 v20, 4, v1
    v_lshlrev_b32 v13, 5, v20
    v_bfe_u32 v20, v1, 2, 1
    v_lshl_add_u32 v13, v20, 4, v13
    v_bfe_u32 v20, v1, 3, 1
    v_lshl_add_u32 v13, v20, 8, v13
    s_lshl_b32 s43, s27, 9
    s_lshl_b32 s47, s26, 7
    s_add_u32 s43, s43, s47
    s_add_u32 s43, s43, {MEM+16384}
    v_add_u32 v13, s43, v13
    v_mov_b32 v20, {OOB}
    v_cmp_eq_u32 vcc, 0, v18
    s_mov_b32 s60, 0
    s_mov_b32 s61, 0
    v_cndmask_b32 v8, v20, v8, vcc
    v_cndmask_b32 v13, v20, v13, vcc
    s_mov_b32 s65, 0
    s_mov_b32 s67, -2
    s_mov_b32 s68, 0
    """)
    g("s_lshl_b32 s43, s25, 5\ns_add_u32 s43, s43, s27")
    stamp_init(g, opt, "s43")
    def ldm(f): return f"buffer_load_dwordx4 {vr(16+4*f,4)}, v4, s[4:7], s61 offen offset:{f*1024} sc1"
    def ldo(f): return f"buffer_load_dwordx4 {vr(32+4*f,4)}, v{5 if f < 4 else 12}, s[4:7], s65 offen offset:{(f%4)*1024} sc1"
    def gather4(dst):
        g("s_nop 1")
        for q in range(1, 4):
            g(f"v_mov_b32_dpp v{dst+q}, v{dst} quad_perm:[{q},{q},{q},{q}] row_mask:0xf bank_mask:0xf")
    g("V_LOOP:")
    for i in range(32): g(f"v_mov_b32 v{64+i}, 0")
    delay(g, opt.get("dV", 0))
    stamp(g, opt, 0)
    for f in range(4): g(ldm(f))
    R = [g.lab("VR") for f in range(4)]; C = [g.lab("VC") for f in range(4)]
    g("s_mov_b32 s44, 0")
    g("s_waitcnt vmcnt(3)")
    for x in chk(g, 16): g(x)
    g(f"s_cbranch_vccnz {R[0]}\n{C[0]}:")
    for f in range(4):
        for c in range(4):
            g(f"{SMF} {vr(64+4*c,4)}, {vr(16+4*f,4)}, {vr(128+(f*4+c)*8,8)}, v2")
            if c == 2 and f < 3:
                g(f"s_waitcnt vmcnt({2-f})")
                for x in chk(g, 16+4*(f+1))[:2]: g(x)
            if c == 3 and f < 3:
                g(chk(g, 16+4*(f+1))[2])
                g(f"s_cbranch_vccnz {R[f+1]}\n{C[f+1]}:")
    stamp(g, opt, 1)
    g("s_nop 4")
    for c in range(4):
        a = 64 + 4*c
        g(f"v_add_f32 v{a}, v{a}, v{a+1}")
        g(f"v_add_f32 v{a+1}, v{a+2}, v{a+3}")
        g(f"ds_write_b64 v6, {vr(a,2)} offset:{RVB+640*c}")
    g("s_waitcnt lgkmcnt(0)\ns_barrier")
    for w in range(4): g(f"ds_read_b64 {vr(96+2*w,2)}, v7 offset:{RVB+2560*w}")
    g("""
    s_waitcnt lgkmcnt(2)
    v_pk_add_f32 v[96:97], v[96:97], v[98:99]
    s_waitcnt lgkmcnt(0)
    v_pk_add_f32 v[100:101], v[100:101], v[102:103]
    v_pk_add_f32 v[96:97], v[96:97], v[100:101]
    v_cvt_pk_bf16_f32 v104, v96, v97
    v_min_u32 v104, s67, v104
    """)
    gather4(104)
    g("buffer_store_dwordx4 v[104:107], v8, s[4:7], s65 offen sc1")
    stamp(g, opt, 2)
    g("s_cmp_eq_u32 s60, 63\ns_cbranch_scc1 V_END")
    delay(g, opt.get("dO", 0))
    stamp(g, opt, 3)
    for f in range(8): g(ldo(f))
    RO = [g.lab("OR") for f in range(8)]; CO = [g.lab("OC") for f in range(8)]
    g("s_mov_b32 s44, 0")
    g("s_waitcnt vmcnt(7)")
    for x in chk(g, 32): g(x)
    g(f"s_cbranch_vccnz {RO[0]}\n{CO[0]}:")
    stamp(g, opt, 4)
    for f in range(8):
        for c in range(4):
            g(f"{SMF} {vr(80+4*c,4)}, {vr(32+4*f,4)}, {ar((f*4+c)*8,8)}, v2")
            if c == 2 and f < 7:
                g(f"s_waitcnt vmcnt({6-f})")
                for x in chk(g, 32+4*(f+1))[:2]: g(x)
            if c == 3 and f < 7:
                g(chk(g, 32+4*(f+1))[2])
                g(f"s_cbranch_vccnz {RO[f+1]}\n{CO[f+1]}:")
    stamp(g, opt, 5)
    g("""
    s_mov_b32 exec_hi, 0
    s_nop 4
    v_add_f32 v96, v80, v81
    v_add_f32 v98, v82, v83
    v_add_f32 v97, v84, v85
    v_add_f32 v99, v86, v87
    s_not_b64 exec, exec
    v_add_f32 v96, v88, v89
    v_add_f32 v98, v90, v91
    v_add_f32 v97, v92, v93
    v_add_f32 v99, v94, v95
    s_mov_b64 exec, -1
    ds_write2_b32 v9, v96, v97 offset0:0 offset1:16
    ds_write2_b32 v9, v98, v99 offset0:32 offset1:48
    s_waitcnt lgkmcnt(0)
    s_barrier
    s_cmp_lg_u32 s24, 0
    s_cbranch_scc1 V_NEXT
    """)
    for k in range(8): g(f"ds_read_b64 {vr(96+2*k,2)}, v10 offset:{512*k}")
    g("""
    s_waitcnt lgkmcnt(6)
    v_pk_add_f32 v[96:97], v[96:97], v[98:99]
    s_waitcnt lgkmcnt(4)
    v_pk_add_f32 v[100:101], v[100:101], v[102:103]
    s_waitcnt lgkmcnt(2)
    v_pk_add_f32 v[104:105], v[104:105], v[106:107]
    v_pk_add_f32 v[96:97], v[96:97], v[100:101]
    s_waitcnt lgkmcnt(0)
    v_pk_add_f32 v[108:109], v[108:109], v[110:111]
    v_pk_add_f32 v[96:97], v[96:97], v[104:105]
    v_pk_add_f32 v[96:97], v[96:97], v[108:109]
    v_cvt_pk_bf16_f32 v112, v96, v97
    v_min_u32 v112, s67, v112
    """)
    gather4(112)
    g("buffer_store_dwordx4 v[112:115], v13, s[4:7], s61 offen sc1")
    g("V_NEXT:")
    stamp(g, opt, 6)
    stamp_dump(g, opt)
    g("""
    s_add_u32 s60, s60, 1
    s_add_u32 s61, s61, 16384
    s_add_u32 s65, s65, 65536
    s_branch V_LOOP
    """)
    for (RR, CC, n, ldf, base, inc) in ((R, C, 4, ldm, 16, 1), (RO, CO, 8, ldo, 32, 0x10000)):
        for f in range(n):
            g(f"{RR[f]}:")
            g(f"s_add_u32 s68, s68, {inc}\ns_add_u32 s44, s44, 1\ns_cmp_gt_u32 s44, {TMO}\ns_cbranch_scc1 V_END")
            for k in range(f, n): g(ldf(k))
            g("s_waitcnt vmcnt(0)")
            for x in chk(g, base+4*f): g(x)
            g(f"s_cbranch_vccz {CC[f]}\ns_branch {RR[f]}")
    g("V_END:")
    g("s_endpgm")
```

```python
NAME = "recurrent_scan__memory_aug_recurrent_mem_tr__dense_activation_gelu__prompt"
MB = 1 << 20
XN   = 0
HB   = 4 * MB
GB   = 18 * MB
QX   = 24 * MB
KX   = 40 * MB
VX   = 56 * MB
OX   = 72 * MB
REC  = 88 * MB
RECB = 344064
OM, VM, MEM, CAN = 0, 131072, 262144, 294912
CALB = 6 * RECB
KM   = 110 * MB
FLG  = 114 * MB
def sp(o): return (o & 8191) | ((o >> 13) << 14)
def rec(s): return REC + (s//6)*2*MB + (s%6)*RECB
WS_BYTES = 256 * MB
F_Q    = 0
F_G    = 4096
F_LN   = 8192
F_H    = 24576
F_KVQ  = 40960
F_O    = 65536
F_END  = 131072
D_Z, D_PAR, D_ARM = 192, 196, 200
A_X, A_MEM0, A_WQ, A_WK, A_WV, A_WO, A_W1, A_B1, A_W2, A_B2, A_OUT, A_DBG, A_WS = 0, 8, 16, 24, 32, 40, 64, 72, 80, 88, 96, 104, 112
OOB = 0x80000000

class G:
    def __init__(s):
        s.l = []; s.n = 0
    def __call__(s, x):
        for line in x.strip("\n").split("\n"):
            line = line.strip()
            if line: s.l.append(line)
    def lab(s, p="L"):
        s.n += 1; return f"{p}_{s.n}"
    def text(s): return "\n".join(s.l) + "\n"

def vr(a, n=1, k="v"):
    return f"{k}{a}" if n == 1 else f"{k}[{a}:{a+n-1}]"
def ar(a, n=1): return vr(a, n, "a")
def sr(a, n=1): return vr(a, n, "s")

def srd(g, s, karg, nbytes):
    g(f"s_load_dwordx2 s[{s}:{s+1}], s[0:1], {karg}")
    g(f"s_mov_b32 s{s+2}, {nbytes}")
    g(f"s_mov_b32 s{s+3}, 0x20000")

def weave(g, main, fill):
    for x in fill.get(-1, []): g(x)
    for i, m in enumerate(main):
        g(m)
        for x in fill.get(i, []): g(x)

def kdesc(name, vgpr, accum, sgpr=102):
    return f""".amdhsa_kernel {name}
  .amdhsa_next_free_vgpr {vgpr}
  .amdhsa_next_free_sgpr {sgpr}
  .amdhsa_accum_offset {accum}
  .amdhsa_group_segment_fixed_size 0
  .amdhsa_kernarg_size 120
  .amdhsa_user_sgpr_count 2
  .amdhsa_user_sgpr_kernarg_segment_ptr 1
  .amdhsa_system_sgpr_workgroup_id_x 1
.end_amdhsa_kernel
"""

def mark(g, opt, k):
    if not opt.get("marks"): return
    sk = g.lab("MK"); ta = 20 if k == 3 else 250
    g(f"""
    s_cmp_lg_u32 s24, 0
    s_cbranch_scc1 {sk}
    s_memrealtime s[90:91]
    s_lshl_b32 s92, s20, 5
    s_add_u32 s92, s92, s21
    s_lshl_b32 s92, s92, 2
    s_add_u32 s92, s92, {FLG+MB+0xC0000 + k*1024}
    s_waitcnt lgkmcnt(0)
    v_mov_b32 v{ta}, s90
    v_mov_b32 v{ta+1}, 0
    s_mov_b64 exec, 1
    buffer_store_dword v{ta}, v{ta+1}, s[4:7], s92 offen
    s_mov_b64 exec, -1
    {sk}:
    """)

def par_init(g, opt, t, fail):
    top, ok = g.lab("CW"), g.lab("CWOK")
    g(f"""
    v_mov_b32 v{t}, 0
    s_mov_b32 s44, 0
    {top}:
    buffer_load_dwordx4 v[{t+4}:{t+7}], v{t}, s[16:19], 0 offen offset:{D_Z} sc1
    s_waitcnt vmcnt(0)
    v_readfirstlane_b32 s43, v{t+4}
    v_readfirstlane_b32 s47, v{t+5}
    v_readfirstlane_b32 s48, v{t+6}
    s_lshl_b32 s43, s43, 20
    s_lshl_b32 s48, s48, 11
    s_or_b32 s43, s43, s48
    s_and_b32 s48, s47, 0x7ff
    s_or_b32 s43, s43, s48
    s_cmp_eq_u32 s43, {(4 << 20) | (96 << 11) | 0x7ff}
    s_cbranch_scc1 {ok}
    s_sleep 8
    s_add_u32 s44, s44, 1
    s_cmp_lt_u32 s44, 40000
    s_cbranch_scc1 {top}
    s_branch {fail}
    {ok}:
    v_mul_u32_u24 v{t}, 43, v1
    v_lshrrev_b32 v{t}, 8, v{t}
    v_add_u32 v{t}, 16, v{t}
    v_lshrrev_b32 v{t}, v{t}, v{t+5}
    v_and_b32 v{t}, 1, v{t}
    v_cmp_ne_u32 s[86:87], 0, v{t}
    s_nop 3
    """)

def arm_first(g, stores, km=None, mem0=None):
    top = g.lab("AF")
    g(f"s_mov_b32 s43, {REC}\ns_mov_b32 s47, 0\n{top}:")
    stores("s43")
    g(f"""
    s_add_u32 s47, s47, 1
    s_bitcmp1_b32 s47, 0
    s_cselect_b32 s48, 0, {RECB - 16384}
    s_add_u32 s43, s43, s48
    s_add_u32 s43, s43, 8192
    s_cmp_lt_u32 s47, 12
    s_cbranch_scc1 {top}
    """)

def arm_hook(g):
    g(f"""
    s_barrier
    s_lshl_b32 s43, s24, 12
    s_add_u32 s43, s43, {D_ARM}
    v_mov_b32 v18, 1
    v_mov_b32 v19, s43
    s_mov_b64 exec, 1
    buffer_atomic_add v18, v19, s[16:19], 0 offen sc1
    s_mov_b64 exec, -1
    """)

def rec_next(g, base, cnt, t):
    g(f"""
    s_add_u32 {cnt}, {cnt}, 1
    s_cmp_eq_u32 {cnt}, 6
    s_cselect_b32 {t}, {2*MB - 6*RECB}, 0
    s_cselect_b32 {cnt}, 0, {cnt}
    s_add_u32 {base}, {base}, {t}
    s_add_u32 {base}, {base}, {RECB}
    """)

def rec_at(g, a, base, step):
    g(f"""
    s_bitcmp1_b64 s[86:87], {step}
    s_cselect_b32 {a}, 8192, 0
    s_add_u32 {a}, {a}, {base}
    """)

def sp_s(g, dst, src, shift, t):
    n = 13 - shift
    g(f"""
    s_lshr_b32 {t}, {src}, {n}
    s_lshl_b32 {t}, {t}, 14
    s_and_b32 {dst}, {src}, {(1 << n) - 1}
    s_lshl_b32 {dst}, {dst}, {shift}
    s_or_b32 {dst}, {dst}, {t}
    """)

def tmark(g, opt, k):
    if not opt.get("marks"): return
    sk = g.lab("MK")
    g(f"""
    s_cmp_lg_u32 s24, 0
    s_cbranch_scc1 {sk}
    s_memrealtime s[90:91]
    s_memtime s[94:95]
    s_lshl_b32 s92, s20, 8
    s_add_u32 s92, s92, s96
    s_lshl_b32 s92, s92, 5
    s_add_u32 s92, s92, {FLG+MB+0xD0000 + k*4}
    s_waitcnt lgkmcnt(0)
    v_mov_b32 v250, s90
    v_mov_b32 v251, 0
    s_mov_b64 exec, 1
    buffer_store_dword v250, v251, s[4:7], s92 offen
    v_mov_b32 v250, s94
    buffer_store_dword v250, v251, s[4:7], s92 offen offset:16
    s_mov_b64 exec, -1
    {sk}:
    """)

def can_regs(g, opt, hop_in, hop_out, vin, vout, sprod, wave, voob, t):
    def spv(d, lin):
        g(f"""
        v_and_b32 v{t}, 0xe000, v{lin}
        v_add3_u32 v{d}, v{lin}, v{t}, s43
        """)
    g(f"""
    v_lshrrev_b32 v{t}, 2, v1
    v_and_b32 v{vin}, 3, v1
    v_lshlrev_b32 v{vin}, 2, v{vin}
    v_lshl_add_u32 v{vin}, v{t}, 10, v{vin}
    v_add_u32 v{vin}, {16384*hop_in}, v{vin}
    s_mov_b32 s43, {CAN}
    v_cmp_gt_u32 vcc, {64 if hop_in == 0 else 32}, v1
    """)
    spv(vin, vin)
    g(f"""
    v_cndmask_b32 v{vin}, v{voob}, v{vin}, vcc
    s_lshr_b32 s48, {sprod}, 2
    s_lshl_b32 s48, s48, 10
    s_and_b32 s47, {sprod}, 3
    s_lshl_b32 s47, s47, 2
    s_add_u32 s48, s48, s47
    s_add_u32 s48, s48, {16384*hop_out}
    v_and_b32 v{vout}, 7, v1
    v_lshlrev_b32 v{vout}, 7, v{vout}
    v_add_u32 v{vout}, s48, v{vout}
    """)
    spv(vout, vout)
    g(f"""
    s_cmp_eq_u32 s24, {wave}
    s_cselect_b32 s47, 8, 0
    v_cmp_gt_u32 vcc, s47, v1
    s_nop 1
    v_cndmask_b32 v{vout}, v{voob}, v{vout}, vcc
    """)
    sk = g.lab("CR")
    g(f"""
    s_cmp_eq_u32 s24, 0
    s_cbranch_scc1 {sk}
    s_and_b32 s47, s48, 0xfc00
    v_lshlrev_b32 v{vin}, 4, v1
    v_add_u32 v{vin}, s47, v{vin}
    """)
    spv(vin, vin)
    g(f"""
    s_and_b32 s47, {sprod}, 3
    s_lshl_b32 s47, s47, 2
    s_or_b32 s47, s47, s24
    s_cmp_eq_u32 s47, 2
    s_cselect_b64 vcc, -1, 0
    s_nop 1
    v_cndmask_b32 v{vin}, v{voob}, v{vin}, vcc
    {sk}:
    """)

def ddmark(g, opt, slot, ta, neg=False):
    if not opt.get("dd"): return
    sk = g.lab("DD")
    g(f"""
    s_cmp_lg_u32 s24, 0
    s_cbranch_scc1 {sk}
    s_load_dwordx2 s[92:93], s[0:1], {A_DBG}
    s_memrealtime s[90:91]
    s_mov_b32 s94, 256
    s_mov_b32 s95, 0x20000
    s_waitcnt lgkmcnt(0)
    {"s_not_b32 s90, s90" if neg else ""}
    v_mov_b32 v{ta}, s90
    v_mov_b32 v{ta+1}, {4*slot}
    s_mov_b64 exec, 1
    buffer_atomic_umax v{ta}, v{ta+1}, s[92:95], 0 offen sc1
    s_mov_b64 exec, -1
    {sk}:
    """)

def touch(g, karg, nbytes, sidx, n, R=72, v=240):
    srd(g, R, karg, nbytes)
    g(f"s_mul_i32 {sidx}, {sidx}, {n*8192}\nv_lshlrev_b32 v{v}, 7, v1\nv_add_u32 v{v}, {sidx}, v{v}")
    for i in range(1, n): g(f"v_add_u32 v{v+i}, {8192*i}, v{v}")
    g("s_waitcnt lgkmcnt(0)")
    for i in range(n): g(f"buffer_load_dword v255, v{v+i}, s[{R}:{R+3}], 0 offen")
```

```python
from common import *
TIMEOUT = 40000
VWA, VXA, VWG, VXG = 2, 10, 11, 15
SETW = [64, 128]; SETX = [96, 160]

def acc(tn, tm): return (tn * 8 + tm) * 4

def dma_stage(slot):
    L = []
    L.append(f"s_add_u32 m0, s32, {slot*16384}")
    for i in range(4):
        L.append(f"buffer_load_dwordx4 v{VWG+i}, s[8:11], s30 offen offset:{1024*i} lds")
    L.append(f"s_add_u32 m0, s33, {slot*16384}")
    for i in range(4):
        L.append(f"buffer_load_dwordx4 v{VXG}, s[4:7], s31 offen offset:{1024*i} sc1 lds")
    return L

def reads_stage(slot, p):
    L = []
    for tm in range(8):
        L.append(f"ds_read_b128 {vr(SETX[p]+4*tm,4)}, v{VXA} offset:{slot*16384+tm*1024}")
    for tn in range(8):
        for j in range(2):
            L.append(f"ds_read_b64_tr_b16 {vr(SETW[p]+4*tn+2*j,2)}, v{VWA+tn} offset:{slot*16384+j*8192}")
    return L

def step(g, k4, swap, ldw, dma=True, reads=True, vm=8):
    p = k4 & 1
    M = []
    for tn in range(8):
        for tm in range(8):
            a, b = vr(SETW[p]+4*tn, 4), vr(SETX[p]+4*tm, 4)
            if swap: a, b = b, a
            M.append(f"v_mfma_f32_16x16x32_bf16 {ar(acc(tn,tm),4)}, {a}, {b}, {ar(acc(tn,tm),4)}")
    F = {-1: ["s_waitcnt lgkmcnt(0)"]}
    def add(i, x): F.setdefault(i, []).append(x)
    if reads:
        add(1, f"s_waitcnt vmcnt({vm})"); add(1, "s_barrier")
        for i, x in enumerate(reads_stage((k4+1) & 3, p ^ 1)): add(2 + i, x)
    if dma:
        D = dma_stage((k4+3) & 3)
        pos = [27, 28, 32, 36, 40, 43, 44, 48, 52, 56]
        for x, i in zip(D, pos): add(i, x)
        add(58, f"s_add_u32 s30, s30, {32*ldw}")
        add(59, "s_add_u32 s31, s31, 16384")
    weave(g, M, F)

def act_gelu(g, regs):
    n = len(regs)
    T = [224 + i for i in range(n)]
    for i, r in enumerate(regs): g(f"v_mul_f32 v{T[i]}, v{r}, v{r}")
    for i, r in enumerate(regs): g(f"v_fma_f32 v{T[i]}, v{T[i]}, s40, v60")
    for i, r in enumerate(regs): g(f"v_mul_f32 v{T[i]}, v{T[i]}, v{r}")
    for i, r in enumerate(regs): g(f"v_exp_f32 v{T[i]}, v{T[i]}")
    for i, r in enumerate(regs): g(f"v_add_f32 v{T[i]}, 1.0, v{T[i]}")
    for i, r in enumerate(regs): g(f"v_rcp_f32 v{T[i]}, v{T[i]}")
    for i, r in enumerate(regs): g(f"v_mul_f32 v{r}, v{r}, v{T[i]}")

def act_silu(g, regs):
    n = len(regs)
    T = [224 + i for i in range(n)]
    for i, r in enumerate(regs): g(f"v_mul_f32 v{T[i]}, s40, v{r}")
    for i, r in enumerate(regs): g(f"v_exp_f32 v{T[i]}, v{T[i]}")
    for i, r in enumerate(regs): g(f"v_add_f32 v{T[i]}, 1.0, v{T[i]}")
    for i, r in enumerate(regs): g(f"v_rcp_f32 v{T[i]}, v{T[i]}")
    for i, r in enumerate(regs): g(f"v_mul_f32 v{r}, v{r}, v{T[i]}")

import struct
def f2u(x): return struct.unpack("<I", struct.pack("<f", x))[0]

def piece(g, cnt, a0, a1, act, soff, imm):
    base = 64 + (cnt % 4) * 16
    regs = [base + i for i in range(8)]
    for i in range(4): g(f"v_accvgpr_read_b32 v{base+i}, a{a0+i}")
    for i in range(4): g(f"v_accvgpr_read_b32 v{base+4+i}, a{a1+i}")
    if act: act(g, regs)
    for i in range(4): g(f"v_cvt_pk_bf16_f32 v{base+8+i}, v{base+2*i}, v{base+2*i+1}")
    g(f"buffer_store_dwordx4 {vr(base+8,4)}, v61, s[4:7], {soff} offen offset:{imm} sc1")

def poll_flags(g, nflags, soff_sreg, fail, sh=2):
    top = g.lab("PF"); ok = g.lab("PFOK")
    g(f"""
    v_lshlrev_b32 v62, {sh}, v1
    v_cmp_gt_u32 vcc, {nflags}, v1
    v_mov_b32 v63, {OOB}
    s_nop 0
    v_cndmask_b32 v62, v63, v62, vcc
    s_mov_b64 s[42:43], vcc
    s_mov_b32 s44, 0
    {top}:
    buffer_load_dword v63, v62, s[4:7], {soff_sreg} offen sc1
    s_waitcnt vmcnt(0)
    v_cmp_ne_u32 vcc, 0, v63
    s_cmp_eq_u64 vcc, s[42:43]
    s_cbranch_scc1 {ok}
    s_sleep 8
    s_add_u32 s44, s44, 1
    s_cmp_lt_u32 s44, {TIMEOUT}
    s_cbranch_scc1 {top}
    s_branch {fail}
    {ok}:
    """)

CFG = {
    "Q":  (A_WQ, 1024, 8192, XN, 32, None),
    "K":  (A_WK, 1024, 8192, XN, 32, None),
    "V":  (A_WV, 1024, 8192, XN, 32, None),
    "F1": (A_W1, 1024, 7168, XN, 32, (A_B1, 7168)),
    "F2": (A_W2, 3584, 2048, HB, 112, (A_B2, 2048)),
}

def gen_gemm(g, typ, ret, fail, opt):
    karg, K, ldw, xbase, KB, bias = CFG[typ]
    swap = typ == "V"
    nst = K // 32
    g(f"T_{typ}:")
    srd(g, 8, karg, K * ldw)
    if bias: srd(g, 12, bias[0], bias[1])
    g(f"""
    s_lshl_b32 s30, s29, 9
    s_mul_i32 s31, s28, {KB*16384}
    s_add_u32 s31, s31, {xbase}
    s_lshl_b32 s32, s24, 12
    s_add_u32 s33, s32, 65536
    s_lshr_b32 s34, s24, 1
    s_and_b32 s35, s24, 1
    v_lshrrev_b32 v16, 5, v1
    v_and_b32 v17, 31, v1
    v_lshlrev_b32 v18, 1, v16
    v_xor_b32 v17, v17, v18
    s_lshl_b32 s36, s24, 3
    v_add_u32 v16, s36, v16
    s_mov_b32 s36, {ldw}
    v_mul_lo_u32 v16, v16, s36
    """)
    for i in range(4):
        g(f"v_xor_b32 v18, {4*i}, v17")
        g(f"v_lshl_add_u32 v18, v18, 4, v16")
        g(f"v_add_u32 v{VWG+i}, {2*i*ldw - 1024*i}, v18")
    g(f"""
    v_lshlrev_b32 v61, 4, v1
    v_add_u32 v{VXG}, s32, v61
    s_lshl_b32 s36, s34, 13
    s_add_u32 s36, s36, 65536
    v_add_u32 v{VXA}, s36, v61
    v_lshrrev_b32 v16, 2, v1
    v_and_b32 v17, 7, v16
    v_lshlrev_b32 v17, 1, v17
    v_lshlrev_b32 v16, 9, v16
    v_and_b32 v18, 3, v1
    v_lshl_add_u32 v16, v18, 3, v16
    s_lshl_b32 s36, s35, 8
    v_add_u32 v16, s36, v16
    """)
    for t in range(8):
        g(f"v_xor_b32 v18, {2*t}, v17")
        g(f"v_lshl_add_u32 v{VWA+t}, v18, 4, v16")
    if typ == "F2":
        g(f"s_lshl_b32 s36, s28, 11")
        g(f"s_add_u32 s36, s36, {FLG+F_H}")
        poll_flags(g, 14, "s36", fail, 7)
    g("s_waitcnt lgkmcnt(0)")
    for i in range(16, 56): g(f"v_mov_b32 v{i}, 0")
    if bias:
        g(f"""
        v_and_b32 v56, 15, v1
        v_lshlrev_b32 v56, 1, v56
        s_lshl_b32 s36, s35, 8
        v_add_u32 v56, s36, v56
        v_mov_b32 v57, {OOB}
        v_cmp_gt_u32 vcc, 16, v1
        v_mov_b32 v48, 0x3f803f80
        s_nop 0
        v_cndmask_b32 v56, v57, v56, vcc
        """)
        for tn in range(8):
            g(f"buffer_load_ushort v{16+4*tn}, v56, s[12:15], s30 offen offset:{32*tn}")
    for s in range(3):
        D = dma_stage(s)
        for x in D:
            g(x)
            if x.startswith("s_add_u32 m0"): g("s_nop 0")
        g(f"s_add_u32 s30, s30, {32*ldw}")
        g("s_add_u32 s31, s31, 16384")
    if bias: g("s_waitcnt vmcnt(24)")
    for tn in range(8):
        for tm in range(8):
            g(f"v_mfma_f32_16x16x32_bf16 {ar(acc(tn,tm),4)}, {vr(16+4*tn,4)}, v[48:51], 0")
    g("s_waitcnt vmcnt(16)")
    g("s_barrier")
    if opt.get("marks"): tmark(g, opt, 1); g("s_waitcnt vmcnt(0)")
    for x in reads_stage(0, 0): g(x)
    loop = g.lab("GL")
    g(f"s_mov_b32 s37, {nst//4 - 1}")
    g(f"{loop}:")
    for k4 in range(4): step(g, k4, swap, ldw)
    g(f"""
    s_sub_u32 s37, s37, 1
    s_cmp_lg_u32 s37, 0
    s_cbranch_scc1 {loop}
    """)
    step(g, 0, swap, ldw)
    step(g, 1, swap, ldw, dma=False, vm=8)
    step(g, 2, swap, ldw, dma=False, vm=0)
    step(g, 3, swap, ldw, dma=False, reads=False)
    g("s_nop 7")
    tmark(g, opt, 2)
    cnt = 0
    if typ in ("Q", "K"):
        base = QX if typ == "Q" else KX
        g(f"""
        s_lshl_b32 s36, s28, 21
        s_lshl_b32 s37, s34, 20
        s_add_u32 s36, s36, s37
        s_lshl_b32 s37, s29, 14
        s_add_u32 s36, s36, s37
        s_lshl_b32 s37, s35, 13
        s_add_u32 s36, s36, s37
        s_add_u32 s36, s36, {base}
        """)
        for tm in range(8):
            g(f"s_add_u32 s38, s36, {(tm>>1)*262144 + (tm&1)*4096}")
            for nb in range(4):
                piece(g, cnt, acc(2*nb, tm), acc(2*nb+1, tm), None, "s38", nb*1024); cnt += 1
        foff = 0 if typ == "K" else 8
        g(f"s_lshl_b32 s36, s28, 11\ns_lshl_b32 s37, s29, 7\ns_add_u32 s36, s36, s37\ns_add_u32 s36, s36, {FLG+F_KVQ+foff}")
    elif typ == "V":
        g(f"""
        s_lshl_b32 s36, s28, 21
        s_lshl_b32 s37, s34, 20
        s_add_u32 s36, s36, s37
        s_lshl_b32 s37, s29, 14
        s_add_u32 s36, s36, s37
        s_lshl_b32 s37, s35, 13
        s_add_u32 s36, s36, s37
        s_add_u32 s36, s36, {VX}
        """)
        for j in range(4):
            for tn in range(8):
                if tn % 4 == 0: g(f"s_add_u32 s38, s36, {j*262144 + (tn>>2)*4096}")
                piece(g, cnt, acc(tn, 2*j), acc(tn, 2*j+1), None, "s38", (tn & 3)*1024); cnt += 1
        g(f"s_lshl_b32 s36, s28, 11\ns_lshl_b32 s37, s29, 7\ns_add_u32 s36, s36, s37\ns_add_u32 s36, s36, {FLG+F_KVQ+4}")
    elif typ == "F1":
        k1 = 2 * 0.7978845608028654 * 1.4426950408889634
        g(f"""
        s_mov_b32 s40, {hex(f2u(-k1*0.044715))}
        v_mov_b32 v60, {hex(f2u(-k1))}
        s_mul_i32 s36, s28, 112
        s_lshl_b32 s37, s29, 3
        s_add_u32 s36, s36, s37
        s_lshl_b32 s37, s35, 2
        s_add_u32 s36, s36, s37
        s_lshl_b32 s36, s36, 14
        s_lshl_b32 s37, s34, 13
        s_add_u32 s36, s36, s37
        s_add_u32 s36, s36, {HB}
        """)
        for nb in range(4):
            for tm in range(8):
                if tm % 4 == 0: g(f"s_add_u32 s38, s36, {nb*16384 + (tm>>2)*4096}")
                piece(g, cnt, acc(2*nb, tm), acc(2*nb+1, tm), act_gelu, "s38", (tm & 3)*1024); cnt += 1
        g(f"s_lshl_b32 s36, s28, 11\ns_lshl_b32 s37, s29, 7\ns_add_u32 s36, s36, s37\ns_add_u32 s36, s36, {FLG+F_H}")
    else:
        g(f"""
        s_mov_b32 s40, {hex(f2u(-1.4426950408889634))}
        s_lshl_b32 s36, s28, 19
        s_lshl_b32 s37, s34, 18
        s_add_u32 s36, s36, s37
        s_lshl_b32 s37, s29, 13
        s_add_u32 s36, s36, s37
        s_lshl_b32 s37, s35, 12
        s_add_u32 s36, s36, s37
        s_add_u32 s36, s36, {GB}
        """)
        for tm in range(8):
            g(f"s_add_u32 s38, s36, {tm*32768}")
            for nb in range(4):
                piece(g, cnt, acc(2*nb, tm), acc(2*nb+1, tm), act_silu, "s38", nb*1024); cnt += 1
        g(f"s_lshl_b32 s36, s28, 7\ns_lshl_b32 s37, s29, 2\ns_add_u32 s36, s36, s37\ns_add_u32 s36, s36, {FLG+F_G}")
    g("s_waitcnt vmcnt(0)")
    tmark(g, opt, 3)
    g(f"""
    s_barrier
    s_cmp_lg_u32 s24, 0
    s_cbranch_scc1 {ret}
    v_mov_b32 v16, 1
    v_mov_b32 v17, 0
    s_mov_b64 exec, 1
    buffer_store_dword v16, v17, s[4:7], s36 offen sc1
    s_mov_b64 exec, -1
    s_branch {ret}
    """)


def gen_gemm64(g, typ, ret, opt):
    karg = A_WK if typ == "K" else A_WV
    ldw = 8192; swap = typ == "V"; NS = 8; XB = 131072
    VWB = 40
    SW = [64, 128]; SX = [96, 160]
    def acc2(tn, tm): return (tn * 2 + tm) * 4
    def dma(slot):
        L = [f"s_add_u32 m0, s32, {slot*16384}"]
        L += [f"buffer_load_dwordx4 v{VWG+i}, s[8:11], s30 offen offset:{1024*i} lds" for i in range(4)]
        L += [f"s_add_u32 m0, s33, {slot*4096}", f"buffer_load_dwordx4 v{VXG}, s[4:7], s31 offen sc1 lds"]
        return L
    def reads(slot, p):
        L = [f"ds_read_b128 {vr(SX[p]+4*tm,4)}, v{VXA} offset:{slot*4096+tm*1024}" for tm in range(2)]
        for tn in range(8):
            for j in range(2):
                L.append(f"ds_read_b64_tr_b16 {vr(SW[p]+4*tn+2*j,2)}, v{(VWA if slot < 4 else VWB)+tn} offset:{(slot&3)*16384+j*8192}")
        return L
    def stp(k, vm, dm, rd=True):
        p = k & 1; M = []
        for tn in range(8):
            for tm in range(2):
                a, b = vr(SW[p]+4*tn, 4), vr(SX[p]+4*tm, 4)
                if swap: a, b = b, a
                M.append(f"v_mfma_f32_16x16x32_bf16 {ar(acc2(tn,tm),4)}, {a}, {b}, {ar(acc2(tn,tm),4)}")
        F = {-1: ["s_waitcnt lgkmcnt(0)"]}
        def add(i, x): F.setdefault(i, []).append(x)
        if rd:
            add(0, f"s_waitcnt vmcnt({vm})"); add(0, "s_barrier")
            for i, x in enumerate(reads((k+1) % NS, p ^ 1)): add(1 + i*2//3, x)
        if dm:
            for x, i in zip(dma((k+7) % NS), [0, 1, 3, 5, 7, 8, 9]): add(i, x)
            add(11, f"s_add_u32 s30, s30, {32*ldw}"); add(12, "s_add_u32 s31, s31, 16384")
        weave(g, M, F)
    g(f"T_{typ}64:")
    srd(g, 8, karg, 1024 * ldw)
    g(f"""
    s_lshl_b32 s30, s29, 9
    s_lshl_b32 s31, s28, 12
    s_add_u32 s31, s31, {XN}
    s_lshl_b32 s32, s24, 12
    s_lshl_b32 s38, s24, 10
    s_add_u32 s33, s38, {XB}
    s_lshr_b32 s34, s24, 1
    s_and_b32 s35, s24, 1
    v_lshrrev_b32 v16, 5, v1
    v_and_b32 v17, 31, v1
    v_lshlrev_b32 v18, 1, v16
    v_xor_b32 v17, v17, v18
    s_lshl_b32 s36, s24, 3
    v_add_u32 v16, s36, v16
    v_lshlrev_b32 v16, 13, v16
    """)
    for i in range(4):
        g(f"v_xor_b32 v18, {4*i}, v17")
        g(f"v_lshl_add_u32 v18, v18, 4, v16")
        g(f"v_add_u32 v{VWG+i}, {2*i*ldw - 1024*i}, v18")
    g(f"""
    v_lshlrev_b32 v61, 4, v1
    v_add_u32 v{VXG}, s38, v61
    s_waitcnt lgkmcnt(0)
    """)
    for s_ in range(7):
        for x in dma(s_):
            g(x)
            if x.startswith("s_add_u32 m0"): g("s_nop 0")
        g(f"s_add_u32 s30, s30, {32*ldw}")
        g("s_add_u32 s31, s31, 16384")
    g(f"""
    s_lshl_b32 s36, s34, 11
    s_add_u32 s36, s36, {XB}
    v_add_u32 v{VXA}, s36, v61
    v_lshrrev_b32 v16, 2, v1
    v_and_b32 v17, 7, v16
    v_lshlrev_b32 v17, 1, v17
    v_lshlrev_b32 v16, 9, v16
    v_and_b32 v18, 3, v1
    v_lshl_add_u32 v16, v18, 3, v16
    s_lshl_b32 s36, s35, 8
    v_add_u32 v16, s36, v16
    """)
    for t in range(8):
        g(f"v_xor_b32 v18, {2*t}, v17")
        g(f"v_lshl_add_u32 v{VWA+t}, v18, 4, v16")
        g(f"v_add_u32 v{VWB+t}, 0x10000, v{VWA+t}")
    for i in range(64): g(f"v_accvgpr_write_b32 a{i}, 0")
    g("s_waitcnt vmcnt(30)\ns_barrier")
    if opt.get("marks"): tmark(g, opt, 1); g("s_waitcnt vmcnt(0)")
    for x in reads(0, 0): g(x)
    loop = g.lab("GL")
    g(f"s_mov_b32 s37, 3\n{loop}:")
    for k in range(8): stp(k, 25, True)
    g(f"s_sub_u32 s37, s37, 1\ns_cmp_lg_u32 s37, 0\ns_cbranch_scc1 {loop}")
    for k in range(24, 32): stp(k, (min(31, k+6) - (k+1))*5, k == 24, k < 31)
    g("s_nop 7")
    tmark(g, opt, 2)
    g(f"""
    s_lshl_b32 s36, s28, 19
    s_lshl_b32 s37, s34, 18
    s_add_u32 s36, s36, s37
    s_lshl_b32 s37, s29, 14
    s_add_u32 s36, s36, s37
    s_lshl_b32 s37, s35, 13
    s_add_u32 s36, s36, s37
    s_add_u32 s36, s36, {VX if swap else KX}
    s_add_u32 s38, s36, 4096
    """)
    cnt = 0
    if not swap:
        for tm in range(2):
            for nb in range(4):
                piece(g, cnt, acc2(2*nb, tm), acc2(2*nb+1, tm), None, ("s36", "s38")[tm], nb*1024); cnt += 1
    else:
        for tn in range(8):
            piece(g, cnt, acc2(tn, 0), acc2(tn, 1), None, ("s36", "s38")[tn >> 2], (tn & 3)*1024); cnt += 1
    g(f"""
    s_lshl_b32 s36, s28, 11
    s_lshl_b32 s37, s29, 7
    s_add_u32 s36, s36, s37
    s_add_u32 s36, s36, {FLG+F_KVQ+8*2048+(4 if swap else 0)}
    s_waitcnt vmcnt(0)
    """)
    tmark(g, opt, 3)
    g("s_barrier")
    ret2 = g.lab("R2")
    if opt.get("pf2", 1):
        g(f"""
        s_lshl_b32 s38, s29, 2
        s_add_u32 s38, s38, s28
        s_add_u32 s38, s38, {64 if swap else 0}
        s_mul_i32 s38, s38, 3
        s_add_u32 s38, s38, s24
        s_sub_u32 s38, s38, 1
        """)
    g(f"""
    s_cmp_lg_u32 s24, 0
    s_cbranch_scc1 {ret2}
    v_mov_b32 v16, 1
    v_mov_b32 v17, 0
    s_mov_b64 exec, 1
    buffer_store_dword v16, v17, s[4:7], s36 offen sc1
    s_mov_b64 exec, -1
    s_branch {ret}
    {ret2}:
    """)
    if opt.get("pf2", 1): touch(g, A_W2, 3584*2048, "s38", 3)
    g(f"s_branch {ret}")


def gen_f2h(g, ret, fail, opt):
    ldw = 2048; NS = 6; XB = 98304; NST = 112; VWB = 192
    SW = [64, 128]; SX = [96, 160]
    def acc4(tn, tm): return (tn * 4 + tm) * 4
    def dma(slot):
        L = [f"s_add_u32 m0, s32, {slot*16384}"]
        L += [f"buffer_load_dwordx4 v{VWG+i}, s[8:11], s30 offen offset:{1024*i} lds" for i in range(4)]
        L += [f"s_add_u32 m0, s33, {slot*8192}"]
        L += [f"buffer_load_dwordx4 v{VXG}, s[4:7], s31 offen offset:{1024*i} sc1 lds" for i in range(2)]
        return L
    def reads(slot, p):
        L = [f"ds_read_b128 {vr(SX[p]+4*tm,4)}, v{VXA} offset:{slot*8192+tm*1024}" for tm in range(4)]
        for tn in range(8):
            for j in range(2):
                L.append(f"ds_read_b64_tr_b16 {vr(SW[p]+4*tn+2*j,2)}, v{(VWA if slot < 4 else VWB)+tn} offset:{(slot&3)*16384+j*8192}")
        return L
    def stp(k):
        p = k & 1; M = []
        for tn in range(8):
            for tm in range(4):
                M.append(f"v_mfma_f32_16x16x32_bf16 {ar(acc4(tn,tm),4)}, {vr(SW[p]+4*tn,4)}, {vr(SX[p]+4*tm,4)}, {ar(acc4(tn,tm),4)}")
        F = {-1: ["s_waitcnt lgkmcnt(0)"]}
        def add(i, x): F.setdefault(i, []).append(x)
        if k < NST - 1:
            add(1, f"s_waitcnt vmcnt({(min(NST-1, k+4) - (k+1))*6})"); add(1, "s_barrier")
            for i, x in enumerate(reads((k+1) % NS, p ^ 1)): add(2 + i, x)
        if k + 5 < NST:
            for x, i in zip(dma((k+5) % NS), [3, 4, 8, 12, 16, 19, 20, 24]): add(i, x)
            add(27, f"s_add_u32 s30, s30, {32*ldw}"); add(28, "s_add_u32 s31, s31, 16384")
        weave(g, M, F)
    g("T_F2:")
    srd(g, 8, A_W2, 3584 * ldw); srd(g, 12, A_B2, 2048)
    g(f"""
    s_lshl_b32 s30, s29, 9
    s_lshr_b32 s36, s28, 1
    s_mul_i32 s31, s36, {NST*16384}
    s_and_b32 s37, s28, 1
    s_lshl_b32 s37, s37, 13
    s_add_u32 s31, s31, s37
    s_add_u32 s31, s31, {HB}
    s_lshl_b32 s32, s24, 12
    s_lshl_b32 s38, s24, 11
    s_add_u32 s33, s38, {XB}
    s_lshr_b32 s34, s24, 1
    s_and_b32 s35, s24, 1
    v_lshrrev_b32 v16, 5, v1
    v_and_b32 v17, 31, v1
    v_lshlrev_b32 v18, 1, v16
    v_xor_b32 v17, v17, v18
    s_lshl_b32 s37, s24, 3
    v_add_u32 v16, s37, v16
    v_lshlrev_b32 v16, 11, v16
    """)
    for i in range(4):
        g(f"v_xor_b32 v18, {4*i}, v17")
        g(f"v_lshl_add_u32 v18, v18, 4, v16")
        g(f"v_add_u32 v{VWG+i}, {2*i*ldw - 1024*i}, v18")
    g(f"""
    v_lshlrev_b32 v61, 4, v1
    v_add_u32 v{VXG}, s38, v61
    s_lshl_b32 s37, s34, 12
    s_add_u32 s37, s37, {XB}
    v_add_u32 v{VXA}, s37, v61
    v_lshrrev_b32 v16, 2, v1
    v_and_b32 v17, 7, v16
    v_lshlrev_b32 v17, 1, v17
    v_lshlrev_b32 v16, 9, v16
    v_and_b32 v18, 3, v1
    v_lshl_add_u32 v16, v18, 3, v16
    s_lshl_b32 s37, s35, 8
    v_add_u32 v16, s37, v16
    """)
    for t in range(8):
        g(f"v_xor_b32 v18, {2*t}, v17")
        g(f"v_lshl_add_u32 v{VWA+t}, v18, 4, v16")
        g(f"v_add_u32 v{VWB+t}, 0x10000, v{VWA+t}")
    g(f"s_lshl_b32 s36, s36, 11\ns_add_u32 s36, s36, {FLG+F_H}")
    poll_flags(g, 14, "s36", fail, 7)
    g("s_waitcnt lgkmcnt(0)")
    for i in range(16, 56): g(f"v_mov_b32 v{i}, 0")
    g(f"""
    v_and_b32 v56, 15, v1
    v_lshlrev_b32 v56, 1, v56
    s_lshl_b32 s36, s35, 8
    v_add_u32 v56, s36, v56
    v_mov_b32 v57, {OOB}
    v_cmp_gt_u32 vcc, 16, v1
    v_mov_b32 v48, 0x3f803f80
    s_nop 0
    v_cndmask_b32 v56, v57, v56, vcc
    """)
    for tn in range(8):
        g(f"buffer_load_ushort v{16+4*tn}, v56, s[12:15], s30 offen offset:{32*tn}")
    for s_ in range(5):
        for x in dma(s_):
            g(x)
            if x.startswith("s_add_u32 m0"): g("s_nop 0")
        g(f"s_add_u32 s30, s30, {32*ldw}")
        g("s_add_u32 s31, s31, 16384")
    g("s_waitcnt vmcnt(30)")
    for tn in range(8):
        for tm in range(4):
            g(f"v_mfma_f32_16x16x32_bf16 {ar(acc4(tn,tm),4)}, {vr(16+4*tn,4)}, v[48:51], 0")
    g("s_waitcnt vmcnt(24)\ns_barrier")
    if opt.get("marks"): tmark(g, opt, 1); g("s_waitcnt vmcnt(0)")
    for x in reads(0, 0): g(x)
    loop = g.lab("GL")
    g(f"s_mov_b32 s37, 17\n{loop}:")
    for k in range(6): stp(k)
    g(f"s_sub_u32 s37, s37, 1\ns_cmp_lg_u32 s37, 0\ns_cbranch_scc1 {loop}")
    for k in range(102, NST): stp(k)
    g("s_nop 7")
    tmark(g, opt, 2)
    g(f"""
    s_mov_b32 s40, {hex(f2u(-1.4426950408889634))}
    s_lshl_b32 s36, s28, 18
    s_lshl_b32 s37, s34, 17
    s_add_u32 s36, s36, s37
    s_lshl_b32 s37, s29, 13
    s_add_u32 s36, s36, s37
    s_lshl_b32 s37, s35, 12
    s_add_u32 s36, s36, s37
    s_add_u32 s36, s36, {GB}
    """)
    cnt = 0
    for tm in range(4):
        g(f"s_add_u32 s38, s36, {tm*32768}")
        for nb in range(4):
            piece(g, cnt, acc4(2*nb, tm), acc4(2*nb+1, tm), act_silu, "s38", nb*1024); cnt += 1
    g(f"s_lshl_b32 s36, s28, 7\ns_lshl_b32 s37, s29, 2\ns_add_u32 s36, s36, s37\ns_add_u32 s36, s36, {FLG+F_G}")
    g("s_waitcnt vmcnt(0)")
    tmark(g, opt, 3)
    g(f"""
    s_barrier
    s_cmp_lg_u32 s24, 0
    s_cbranch_scc1 {ret}
    v_mov_b32 v16, 1
    v_mov_b32 v17, 0
    s_mov_b64 exec, 1
    buffer_store_dword v16, v17, s[4:7], s36 offen sc1
    s_mov_b64 exec, -1
    s_branch {ret}
    """)
```

```python
from common import *
def rne_bf16(g, d, s):
    g(f"v_cvt_pk_bf16_f32 v{d}, v{s}, v{s}")
    g(f"v_lshlrev_b32 v{d}, 16, v{d}")
def xreduce_add(g, v, t):
    for sw in ("v_permlane16_swap_b32", "v_permlane32_swap_b32"):
        g(f"v_mov_b32 v{t}, v{v}")
        g("s_nop 1")
        g(f"{sw} v{v}, v{t}")
        g("s_nop 1")
        g(f"v_add_f32 v{v}, v{v}, v{t}")
def gen_ln(g, opt):
    SC = " sc1"
    srd(g, 8, A_X, 4 * MB)
    g("""
    v_and_b32 v2, 15, v1
    v_lshrrev_b32 v3, 4, v1
    v_lshlrev_b32 v4, 11, v2
    v_lshl_add_u32 v4, v3, 3, v4
    s_lshl_b32 s25, s29, 15
    s_lshl_b32 s26, s24, 9
    s_add_u32 s25, s25, s26
    s_waitcnt lgkmcnt(0)
    """)
    for kb in range(8):
        for j in range(2):
            r = 16 + kb * 4 + j * 2
            g(f"buffer_load_dwordx2 v[{r}:{r+1}], v4, s[8:11], s25 offen offset:{kb*64+j*32}")
    g("v_mov_b32 v8, 0")
    g("v_mov_b32 v9, 0")
    for i in range(32):
        if i % 2 == 0: g(f"s_waitcnt vmcnt({15 - i//2})")
        g(f"v_lshlrev_b32 v{64+2*i}, 16, v{16+i}")
        g(f"v_and_b32 v{65+2*i}, 0xffff0000, v{16+i}")
        g(f"v_add_f32 v8, v8, v{64+2*i}")
        g(f"v_add_f32 v9, v9, v{65+2*i}")
    g("v_add_f32 v8, v8, v9")
    mark(g, opt, 5)
    xreduce_add(g, 8, 9)
    g("""
    s_lshl_b32 s26, s24, 6
    v_lshl_add_u32 v5, v2, 2, s26
    v_lshlrev_b32 v6, 2, v2
    ds_write_b32 v5, v8
    s_waitcnt lgkmcnt(0)
    s_barrier
    ds_read2_b32 v[10:11], v6 offset0:0 offset1:16
    ds_read2_b32 v[12:13], v6 offset0:32 offset1:48
    s_waitcnt lgkmcnt(0)
    v_add_f32 v10, v10, v11
    v_add_f32 v12, v12, v13
    v_add_f32 v8, v10, v12
    v_mul_f32 v8, 0x3a800000, v8
    v_mov_b32 v10, 0
    v_mov_b32 v11, 0
    """)
    for i in range(32):
        g(f"v_sub_f32 v12, v{64+2*i}, v8")
        g(f"v_sub_f32 v13, v{65+2*i}, v8")
        g("v_fmac_f32 v10, v12, v12")
        g("v_fmac_f32 v11, v13, v13")
    g("v_add_f32 v10, v10, v11")
    xreduce_add(g, 10, 11)
    g("""
    ds_write_b32 v5, v10 offset:256
    s_waitcnt lgkmcnt(0)
    s_barrier
    ds_read2_b32 v[10:11], v6 offset0:64 offset1:80
    ds_read2_b32 v[12:13], v6 offset0:96 offset1:112
    s_waitcnt lgkmcnt(0)
    v_add_f32 v10, v10, v11
    v_add_f32 v12, v12, v13
    v_add_f32 v10, v10, v12
    v_mul_f32 v10, 0x3a800000, v10
    """)
    rne_bf16(g, 8, 8)
    rne_bf16(g, 10, 10)
    g("v_add_f32 v10, 0x3727c5ac, v10")
    rne_bf16(g, 10, 10)
    g("v_sqrt_f32 v10, v10")
    g("s_nop 0")
    rne_bf16(g, 10, 10)
    g("v_rcp_f32 v10, v10")
    g(f"""
    s_lshr_b32 s25, s29, 4
    s_lshl_b32 s25, s25, 19
    s_and_b32 s26, s29, 15
    s_lshl_b32 s26, s26, 10
    s_add_u32 s25, s25, s26
    s_lshl_b32 s26, s24, 17
    s_add_u32 s25, s25, s26
    s_add_u32 s25, s25, {XN}
    v_lshlrev_b32 v4, 4, v1
    """)
    for kb in range(8):
        o = 16 + kb * 4
        for q in range(4):
            a = 64 + kb * 8 + 2 * q
            g(f"v_sub_f32 v12, v{a}, v8")
            g(f"v_sub_f32 v13, v{a+1}, v8")
            g("v_cvt_pk_bf16_f32 v12, v12, v13")
            g("v_and_b32 v13, 0xffff0000, v12")
            g("v_lshlrev_b32 v12, 16, v12")
            g("v_mul_f32 v13, v13, v10")
            g("v_mul_f32 v12, v12, v10")
            g(f"v_cvt_pk_bf16_f32 v{o+q}, v12, v13")
        g(f"buffer_store_dwordx4 v[{o}:{o+3}], v4, s[4:7], s25 offen{SC}")
        g("s_add_u32 s25, s25, 16384")

def gen_zero(g):
    g(f"""
    s_lshl_b32 s25, s29, 15
    s_add_u32 s25, s25, {FLG}
    v_lshlrev_b32 v4, 4, v0
    """)
    for i in range(4): g(f"v_mov_b32 v{8+i}, 0")
    for i in range(F_END//4//4096):
        g(f"buffer_store_dwordx4 v[8:11], v4, s[4:7], s25 offen sc1\ns_add_u32 s25, s25, 4096")
    g(f"""
    s_waitcnt vmcnt(0)
    s_barrier
    s_lshl_b32 s25, s24, 12
    s_add_u32 s25, s25, {D_Z}
    v_mov_b32 v8, 1
    v_mov_b32 v9, s25
    s_mov_b64 exec, 1
    buffer_atomic_add v8, v9, s[16:19], 0 offen sc1
    s_mov_b64 exec, -1
    """)

def gen_measure(g, opt):
    g(f"""
    s_lshl_b32 s26, s29, 21
    s_add_u32 s26, s26, {REC+CALB}
    s_lshl_b32 s27, s24, 10
    s_add_u32 s27, s27, s26
    s_add_u32 s28, s27, 8192
    v_lshlrev_b32 v5, 4, v1
    v_mov_b32 v6, 0
    s_mov_b32 s36, -1
    s_mov_b32 s37, -1
    buffer_store_dwordx4 v[4:7], v5, s[4:7], s27 offen sc1
    buffer_store_dwordx4 v[4:7], v5, s[4:7], s28 offen sc1
    s_mov_b64 exec, 1
    """)
    for i in range(opt.get("nS", 3)):
        for q in range(2):
            g(f"""
            s_waitcnt vmcnt(0)
            s_barrier
            s_memtime s[38:39]
            s_waitcnt lgkmcnt(0)
            buffer_load_dword v7, v6, s[4:7], s{27+q} offen offset:{256*i} sc1
            s_waitcnt vmcnt(0)
            s_memtime s[40:41]
            s_waitcnt lgkmcnt(0)
            s_sub_u32 s40, s40, s38
            s_min_u32 s{36+q}, s{36+q}, s40
            """)
    g(f"""
    s_mov_b64 exec, -1
    s_lshl_b32 s28, s24, 3
    v_mov_b32 v7, s28
    v_mov_b32 v12, s36
    v_mov_b32 v13, s37
    ds_write_b64 v7, v[12:13]
    s_waitcnt lgkmcnt(0)
    s_barrier
    ds_read_b128 v[12:15], v6
    ds_read_b128 v[16:19], v6 offset:16
    s_waitcnt lgkmcnt(0)
    v_min_u32 v14, v14, v16
    v_min_u32 v15, v15, v17
    v_min_u32 v12, v12, v18
    v_min_u32 v13, v13, v19
    v_min_u32 v12, v12, v14
    v_min_u32 v13, v13, v15
    s_nop 0
    v_readfirstlane_b32 s36, v12
    v_readfirstlane_b32 s37, v13
    s_lshr_b32 s34, s22, 2
    s_cmp_lt_u32 s37, s36
    s_cselect_b32 s35, 1, 0
    s_xor_b32 s35, s35, s34
    s_xor_b32 s35, s35, {1 if opt.get("flip") else 0}
    s_lshl_b32 s35, s35, 16
    s_or_b32 s35, s35, 1
    s_lshl_b32 s35, s35, s29
    s_lshl_b32 s25, s24, 12
    s_add_u32 s25, s25, {D_PAR}
    v_mov_b32 v8, s35
    v_mov_b32 v9, s25
    s_mov_b64 exec, 1
    buffer_atomic_or v8, v9, s[16:19], 0 offen sc1
    """)
    if opt.get("marks"):
        g(f"s_lshl_b32 s25, s29, 3\ns_add_u32 s25, s25, {FLG+MB+0xF8000}\nbuffer_store_dwordx2 v[12:13], v6, s[4:7], s25 offen")
    g("s_mov_b64 exec, -1")

def gen_init(g, opt):
    g("""
    W_INIT:
    s_cmp_eq_u32 s20, 3
    s_cbranch_scc1 WI_3
    s_sub_u32 s29, s20, 4
    s_lshl_b32 s29, s29, 5
    s_add_u32 s29, s29, s21
    """)
    gen_ln(g, opt)
    g("""
    s_branch WI_Z
    WI_3:
    s_sub_u32 s29, s21, 8
    s_cmp_lt_u32 s29, 4
    s_cbranch_scc0 WI_M
    """)
    gen_zero(g)
    g("""
    s_branch WI_S
    WI_M:
    s_sub_u32 s29, s21, 16
    s_cmp_lt_u32 s29, 11
    s_cbranch_scc0 WI_S
    """)
    gen_measure(g, opt)
    g(f"""
    WI_S:
    s_sleep 16
    WI_Z:
    """)
    mark(g, opt, 7)
    g(f"""
    v_mov_b32 v2, 0
    s_mov_b32 s44, 0
    WI_ZT:
    buffer_load_dword v3, v2, s[16:19], 0 offen offset:{D_Z} sc1
    s_waitcnt vmcnt(0)
    v_cmp_eq_u32 vcc, 4, v3
    s_cbranch_vccnz WI_ZOK
    s_sleep 8
    s_add_u32 s44, s44, 1
    s_cmp_lt_u32 s44, 40000
    s_cbranch_scc1 WI_ZT
    s_branch M_END
    WI_ZOK:
    """)
    mark(g, opt, 6)
    g(f"""
    s_barrier
    s_cmp_lg_u32 s24, 0
    s_cbranch_scc1 WI_T
    s_cmp_eq_u32 s20, 3
    s_cbranch_scc1 WI_P
    s_lshl_b32 s25, s29, 7
    s_add_u32 s25, s25, {FLG+F_LN}
    v_mov_b32 v3, 1
    s_mov_b64 exec, 1
    buffer_store_dword v3, v2, s[4:7], s25 offen sc1
    s_mov_b64 exec, -1
    WI_P:
    v_lshlrev_b32 v2, 7, v1
    s_mov_b32 s25, {FLG+F_LN}
    s_mov_b32 s26, {FLG+F_LN+8192}
    s_mov_b32 s44, 0
    WI_PT:
    s_sleep {opt.get("lS", 4)}
    buffer_load_dword v3, v2, s[4:7], s25 offen sc1
    buffer_load_dword v4, v2, s[4:7], s26 offen sc1
    s_waitcnt vmcnt(0)
    v_and_b32 v3, v3, v4
    v_cmp_eq_u32 vcc, 0, v3
    s_cbranch_vccz WI_GO
    s_add_u32 s44, s44, 1
    s_cmp_lt_u32 s44, 40000
    s_cbranch_scc1 WI_PT
    s_branch WI_GO
    WI_T:
    """)
    if opt.get("pf1", 1):
        g("""
        s_sub_u32 s38, s20, 3
        s_lshl_b32 s38, s38, 5
        s_add_u32 s38, s38, s21
        s_mul_i32 s38, s38, 3
        s_add_u32 s38, s38, s24
        s_sub_u32 s38, s38, 1
        """)
        touch(g, A_W1, 1024*7168, "s38", 2)
    g("""
    WI_GO:
    s_barrier
    """)
```

```python
from common import *
from gemm import f2u
from chain import (TMO, SMF, MF32, MF16, CEXP, stamp, stamp_init, stamp_dump, run_ring, idx_reg, kv_flags, wide_addrs, wide_issue, wide_read)

class Seq:
    def __init__(s, g): s.g = g; s.q = []
    def ds(s, text, tag=None):
        s.g(text); s.q.append(tag)
    def need(s, *tags):
        idx = max((i for i, t in enumerate(s.q) if t in tags), default=-1)
        if idx < 0: return
        n = len(s.q) - 1 - idx
        s.g(f"s_waitcnt lgkmcnt({min(n, 15)})")
        s.q = s.q[idx+1:] if n <= 15 else s.q[-15:]
    def drain(s):
        s.g("s_waitcnt lgkmcnt(0)"); s.q = []

def backoff(g, reg):
    top = g.lab("BK")
    g(f"s_mov_b32 s71, {reg}\n.p2alignl 4, 0xBF800000\n{top}:\ns_sub_u32 s71, s71, 1\ns_cbranch_scc0 {top}")

def probe(g, opt, key, va, reg0):
    k = opt.get("k"+key, 6); pad = opt.get("pad"+key, 0)
    go = g.lab("GO"); top = g.lab("PT"); got = g.lab("GOT")
    g(f"s_cmp_lg_u32 s24, 0\ns_cbranch_scc1 {go}")
    if key == "S": g(f"s_cmp_eq_u32 s60, 0\ns_cbranch_scc1 {go}")
    for i in range(k): g(f"v_mov_b32 v{reg0+i}, -1")
    backoff(g, "s69")
    g(f"s_memrealtime s[88:89]\ns_mov_b32 s53, 0\n{top}:")
    for i in range(k):
        g(f"""
        s_waitcnt lgkmcnt(0)
        s_lshl_b32 s54, s88, 5
        s_memrealtime s[88:89]
        s_and_b32 s54, s54, 0x380
        s_add_u32 s54, s54, s65
        buffer_load_dword v{reg0+i}, v{va}, s[4:7], s54 offen sc1
        s_add_u32 s53, s53, 1
        s_waitcnt vmcnt({k-1})
        v_cmp_eq_u32 vcc, -1, v{reg0+(i+1)%k}
        s_cbranch_vccz {got}
        """)
        if pad: g(f"s_nop {pad-1}")
    g(f"""
    s_cmp_lt_u32 s53, {opt.get("cT", 1000)}
    s_cbranch_scc1 {top}
    {got}:
    """)
    post = opt.get("post"+key, 0)
    while post > 0:
        g(f"s_nop {min(post, 16)-1}"); post -= 16
    g(f"{go}:\ns_barrier")

def adapt(g, opt, key):
    if opt.get("stamps"): g("s_min_u32 s58, s53, 255")
    if opt.get("adapt", 1):
        g(f"s_sub_u32 s53, s53, {opt.get('t'+key, 9)}\ns_min_i32 s53, s53, {opt.get('up', 1)}\ns_add_u32 s69, s69, s53\ns_max_i32 s69, s69, 0")

LKX, LSH, LIMG, LW = 0, 8192, 24576, 32768
T0, M0, VX0, VM0, MSK, ONE = 32, 64, 96, 104, 108, 112
LH = [(7,0), (1,0), (8,1), (3,1), (9,1), (5,1), (0,0), (0,1)]
RH = [(s, m) for s in range(16) for m in range(2) if (s, m) not in LH]
LBUF = {0: 80, 1: 88, 2: T0, 3: T0+8, 4: T0+16, 5: T0+24, 14: 120,
        15: T0, 22: T0+8, 23: T0+16, 28: T0+24, 29: T0, 34: T0+8, 35: T0+16, 38: T0+24, 39: T0}
def s_op(sl, c):
    h = (sl, c >> 1)
    if h in LH: return ("v", LBUF[4*sl + c])
    i = RH.index(h)*16 + 8*(c & 1)
    return ("a", i) if i < 256 else ("v", i - 128)
def l_off(p): return (LH.index((p >> 2, (p >> 1) & 1))*2 + (p & 1))*2048
JR = [(0,0), (0,1), (1,0), (2,0), (3,0), (1,1), (2,1), (3,1), (0,2), (0,3), (1,2), (1,3), (2,2), (2,3), (3,2), (3,3)]
def slot_jr(sl): return JR[sl]
MREG = [0, 1, 4, 5, 6, 7, 0, 1, 2, 3, 4, 5, 6, 7, 0, 1]
def mreg(sl): return M0 + 4*MREG[sl]

def gen_s(g, opt):
    pV = opt.get("pV", 52)
    g("R_S:")
    g("s_setprio 3")
    srd(g, 8, A_WQ, 8*MB); srd(g, 12, A_WK, 8*MB)
    g(f"""
    s_lshl_b32 s40, s24, 15
    s_add_u32 s40, s40, {LW}
    s_lshl_b32 s42, s27, 8
    s_and_b32 s43, s24, 1
    s_lshl_b32 s43, s43, 7
    s_add_u32 s42, s42, s43
    """)
    for j in range(4):
        g(f"""
        s_add_u32 s43, s24, {j}
        s_and_b32 s43, s43, 3
        s_lshl_b32 s47, s43, 21
        s_add_u32 s{52+j}, s47, s42
        """)
        if j: g(f"s_lshl_b32 s43, s43, 12\ns_add_u32 s43, s43, {LSH}\nv_lshlrev_b32 v{115+j}, 4, v1\nv_add_u32 v{115+j}, s43, v{115+j}")
    wide_addrs(g, 2, 4, 8)
    g("""
    v_lshlrev_b32 v12, 4, v1
    v_add_u32 v12, s40, v12
    s_waitcnt lgkmcnt(0)
    s_cmp_lt_u32 s24, 2
    s_cselect_b32 s8, s8, s12
    s_cselect_b32 s9, s9, s13
    """)
    g(f"""
    v_and_b32 v11, 15, v1
    v_lshrrev_b32 v16, 4, v1
    v_and_b32 v17, 1, v16
    v_and_b32 v18, 7, v1
    v_lshlrev_b32 v10, 4, v18
    v_lshl_add_u32 v10, v16, 7, v10
    s_lshl_b32 s43, s27, 11
    v_add_u32 v10, s43, v10
    v_bfe_u32 v18, v1, 2, 1
    v_lshlrev_b32 v9, 16, v18
    v_and_b32 v18, 3, v1
    v_lshl_add_u32 v9, v18, 5, v9
    v_lshl_add_u32 v9, v17, 4, v9
    v_lshrrev_b32 v18, 5, v1
    v_lshl_add_u32 v9, v18, 7, v9
    s_and_b32 s43, s27, 7
    s_lshl_b32 s43, s43, 10
    s_lshr_b32 s47, s27, 3
    s_lshl_b32 s47, s47, 14
    s_add_u32 s43, s43, s47
    s_lshl_b32 s47, s24, 8
    s_add_u32 s43, s43, s47
    s_add_u32 s43, s43, {OM}
    v_add_u32 v9, s43, v9
    v_mov_b32 v18, {OOB}
    v_cmp_gt_u32 vcc, 8, v11
    s_nop 1
    v_cndmask_b32 v9, v18, v9, vcc
    v_cndmask_b32 v10, v10, v18, vcc
    """)
    can_regs(g, opt, 0, 1, 0, 119, "s27", opt.get("cWS", 1), 18, 17)
    for i in range(4): g(f"v_mov_b32 v{20+i}, -1")
    def st(so):
        g(f"buffer_store_dwordx4 v[20:23], v9, s[4:7], {so} offen sc1")
        if opt.get("fl", 1):
            sk = g.lab("AM")
            g(f"s_cmp_lg_u32 s24, 2\ns_cbranch_scc1 {sk}\nbuffer_store_dwordx4 v[20:23], v0, s[4:7], {so} offen sc1\n{sk}:")
        else: g(f"buffer_store_dword v20, v119, s[4:7], {so} offen sc1")
    arm_first(g, st)
    g(f"s_lshl_b32 s43, s24, 9\ns_add_u32 s43, s43, {KM}")
    for i in range(6): g(f"buffer_store_dwordx4 v[20:23], v10, s[4:7], s43 offen sc1\ns_add_u32 s43, s43, 65536")
    PARK = {(1,0): 64, (3,1): 80, (5,1): 96, (7,0): 32, (8,1): 32, (9,1): 32, (0,0): 32, (0,1): 48}
    def dst(sl): return lambda c: ("v", PARK[(sl, c >> 1)] + 8*(c & 1)) if (sl, c >> 1) in LH else s_op(sl, c)
    def post(buf):
        for i in range(2):
            for q in range(4):
                g(f"ds_write_b128 v12, {vr(PARK[LH[2*buf+i]]+4*q,4)} offset:{buf*8192+(4*i+q)*1024}")
        g("s_waitcnt lgkmcnt(0)")
    order = [2, 4, 6, 10, 11, 12, 13, 14, 15, 1, 3, 5, 7, 8, 9, 0]
    run_ring(g, [(lambda buf, sl=sl: wide_issue(g, 8, f"s{52+slot_jr(sl)[0]}", slot_jr(sl)[1], buf, 2),
                  lambda buf, sl=sl: wide_read(g, dst(sl), buf, 4), post if u >= 12 else None)
                 for u, sl in enumerate(order)], dbg=opt.get("ringdbg"), hook=arm_hook)
    if opt.get("ringdbg"):
        g("s_waitcnt lgkmcnt(0)")
        for k in range(9): g(f"v_writelane_b32 v20, s{72+2*k}, {k}")
        g(f"""
        s_lshl_b32 s92, s27, 2
        s_add_u32 s92, s92, s24
        s_lshl_b32 s92, s92, 6
        s_add_u32 s92, s92, {FLG+MB+0xF0000}
        v_lshlrev_b32 v21, 2, v1
        s_mov_b64 exec, 0x1ff
        buffer_store_dword v20, v21, s[4:7], s92 offen
        s_mov_b64 exec, -1
        """)
    mark(g, opt, 3)
    ddmark(g, opt, 7, 20)
    idx_reg(g, 2, 11)
    g(f"""
    v_mov_b32 v4, v12
    v_lshlrev_b32 v7, 4, v1
    s_lshl_b32 s43, s24, 12
    v_add_u32 v13, s43, v7
    v_add_u32 v13, {LSH}, v13
    s_and_b32 s43, s24, 1
    s_lshl_b32 s43, s43, 12
    s_lshr_b32 s47, s24, 1
    s_lshl_b32 s47, s47, 14
    s_or_b32 s43, s43, s47
    s_add_u32 s43, s43, {MEM}
    v_add_u32 v3, s43, v7
    v_and_b32 v11, 15, v1
    v_lshrrev_b32 v16, 4, v1
    s_and_b32 s43, s24, 1
    s_lshl_b32 s43, s43, 11
    s_lshr_b32 s47, s24, 1
    s_lshl_b32 s47, s47, 4
    s_add_u32 s43, s43, s47
    s_add_u32 s43, s43, {LIMG}
    v_lshlrev_b32 v5, 5, v11
    v_lshl_add_u32 v5, v16, 2, v5
    v_add_u32 v5, s43, v5
    v_lshlrev_b32 v6, 3, v1
    v_add_u32 v6, {LIMG}, v6
    s_lshl_b32 s43, s24, 11
    v_add_u32 v12, s43, v7
    s_and_b32 s43, s27, 3
    s_lshl_b32 s43, s43, 11
    s_lshr_b32 s47, s27, 2
    s_lshl_b32 s47, s47, 14
    s_add_u32 s43, s43, s47
    s_lshl_b32 s47, s24, 9
    s_add_u32 s43, s43, s47
    v_lshlrev_b32 v8, 4, v11
    v_and_b32 v17, 1, v16
    v_lshl_add_u32 v8, v17, 3, v8
    v_add_u32 v8, s43, v8
    v_add_u32 v8, {VM}, v8
    v_mov_b32 v{MSK}, 0
    v_mov_b32 v18, {hex(f2u(-1e30))}
    v_cmp_gt_u32 vcc, 32, v1
    s_lshr_b32 s46, s27, 1
    s_lshl_b32 s46, s46, 7
    v_cndmask_b32 v{MSK}, v{MSK}, v18, vcc
    s_add_u32 s46, s46, {FLG+F_KVQ}
    s_lshl_b32 s49, s27, 13
    s_add_u32 s50, s49, {KX}
    s_add_u32 s51, s49, {VX}
    s_lshl_b32 s52, s24, 10
    s_sub_u32 s52, s52, 1024
    s_mov_b32 s60, 0
    s_mov_b32 s66, {hex(f2u(CEXP))}
    s_mov_b32 s62, s66
    s_mov_b32 s63, s66
    s_mov_b32 s67, -2
    s_mov_b32 s68, 0
    s_mov_b32 s45, 8
    s_mov_b32 s69, {opt.get("dS", 0)}
    s_mov_b32 s53, {opt.get("tS", 9)}
    """)
    g(f"""
    s_mov_b32 s61, {REC}
    s_mov_b32 s56, 0
    s_mov_b32 s59, {KM}
    """)
    for i in range(1, 4): g(f"v_mov_b32 v{MSK+i}, v{MSK}")
    for i in range(4): g(f"v_mov_b32 v{ONE+i}, 0x3f803f80")
    stamp_init(g, opt, "s27")
    par_init(g, opt, 16, "S_END")
    if not opt.get("solo"): kv_flags(g, "S_END")
    rec_at(g, "s65", "s61", "s60")
    def prefetch():
        sk = g.lab("PF"); w3 = g.lab("PF3")
        g(f"""
        s_cmp_eq_u32 s24, 0
        s_cbranch_scc1 {sk}
        s_mov_b32 m0, s52
        s_add_u32 s47, s50, s52
        buffer_load_dwordx4 v7, s[4:7], s47 offen sc1 lds
        buffer_load_dwordx4 v7, s[4:7], s47 offen offset:3072 sc1 lds
        s_cmp_eq_u32 s24, 3
        s_cbranch_scc1 {w3 if opt.get("pfV", 1) else sk}
        s_add_u32 m0, s52, 6144
        s_add_u32 s47, s47, 6144
        buffer_load_dwordx4 v7, s[4:7], s47 offen sc1 lds
        s_branch {sk}
        {w3}:
        v_lshlrev_b32 v11, 7, v1
        buffer_load_dword v11, v11, s[4:7], s51 offen sc1
        {sk}:
        s_add_u32 s50, s50, {0 if opt.get("solo") else 262144}
        """)
    ddmark(g, opt, 8, 20)
    prefetch()
    def ld(r, so="s65"): return f"buffer_load_dwordx4 {vr(M0+4*r,4)}, v3, s[4:7], {so} offen offset:{r*1024} sc1"
    SEN = "0x12345" if opt.get("solo") else "-1"
    def cmp(r): return f"v_cmp_eq_u32 vcc, {SEN}, v{r}"
    Q = Seq(g)
    g("S_LOOP:")
    def tr(p, q): return lambda: Q.ds(f"ds_read_b128 {vr(LBUF[p]+4*q,4)}, v4 offset:{l_off(p)+q*1024}", ("T", p >> 2, p & 3))
    for p in (0, 1, 2, 3, 4, 5, 14): tr(p, 0)(); tr(p, 1)()
    for i in range(16): g(f"v_mov_b32 v{16+i}, 0")
    g("s_mov_b32 s44, 0")
    if opt.get("can", 1) and not opt.get("solo"): probe(g, opt, "S", 0, M0)
    else: backoff(g, "s69")
    stamp(g, opt, 0)
    for r in range(4):
        g(ld(r))
        if r < 3 and opt.get("stS", 4): g(f"s_nop {opt.get('stS', 4)-1}")
    adapt(g, opt, "S")
    R = [g.lab("SR") for r in range(4)]; C = [g.lab("SC") for r in range(4)]
    Q.drain()
    g("s_waitcnt vmcnt(3)")
    g(cmp(M0))
    g(f"s_cbranch_vccnz {R[0]}")
    g(f"{C[0]}:")
    stamp(g, opt, 1)
    SMS = [(s, c) for s in range(10) for c in range(4)]
    SMS += [(s, c) for s in range(10, 16) for c in (0, 1)]
    SMS += [(s, 2) for s in range(10, 16)] + [(s, 3) for s in range(10, 16)]
    F = {p: [] for p in range(64)}
    def wr(r): return lambda: Q.ds(f"ds_write_b128 v13, {vr(M0+4*r,4)} offset:{r*1024}", ("W", r))
    def rd(sl):
        j, r = slot_jr(sl)
        return lambda: Q.ds(f"ds_read_b128 {vr(mreg(sl),4)}, v{115+j} offset:{r*1024}", ("M", sl))
    def x(t): return lambda: g(t)
    def bar(*tags): return [lambda: Q.need(*tags), x("s_barrier")]
    def chk(r): return [x(f"s_waitcnt vmcnt({3-r})"), x(cmp(M0+4*r))]
    def br(r): return x(f"s_cbranch_vccnz {R[r]}\n{C[r]}:")
    F[3] += bar(("W", 0)) + [rd(2), rd(3)] + chk(1) + [br(1)]
    pX = opt.get("pX", 8)
    F[pX] += [x(f"buffer_load_dwordx4 {vr(VX0,4)}, v12, s[4:7], s51 offen sc1")]
    F[pX+1] += [x(f"buffer_load_dwordx4 {vr(VX0+4,4)}, v12, s[4:7], s51 offen offset:1024 sc1"), x(f"s_add_u32 s51, s51, {0 if opt.get('solo') else 262144}")]
    F[21] += [x("s_waitcnt vmcnt(2)"), x(f"v_max_u32 v11, v{M0+8}, v{M0+12}")]; F[22] += [x(cmp(11))]; F[23] += [br(2)]
    F[11] += bar(("W", 1)); F[31] += bar(("W", 3))
    for gp, r in ((0, 0), (6, 1), (25, 2), (27, 3)): F[gp] += [wr(r)]
    for ga, p in ((4, 15), (9, 22), (13, 23), (16, 28), (18, 29), (23, 34), (29, 35), (31, 38), (33, 39)):
        F[ga] += [tr(p, 0)]; F[ga+1] += [tr(p, 1)]
    for gp, sl in ((8, 4), (12, 5), (15, 6), (20, 7), (35, 10), (36, 11), (37, 12), (38, 13), (39, 14), (40, 15)):
        F[gp] += [rd(sl)]
    for gp, q in ((41, 2), (42, 3), (43, 4), (44, 5), (45, 6), (46, 7), (47, 0), (48, 1)):
        F[gp] += [lambda q=q: Q.ds(f"ds_read_b128 {vr(T0+4*q,4)}, v7 offset:{LKX+q*1024}", ("K",))]
    def epi(c):
        a = 16 + 4*c
        return [x(f"v_add_f32 v{a}, v{a}, v{a+1}"), x(f"v_add_f32 v{a+2}, v{a+2}, v{a+3}"), x(f"v_cvt_pk_bf16_f32 v{a}, v{a}, v{a+2}")]
    e0, e1, e2, e3 = epi(0), epi(1), epi(2), epi(3)
    XN = [72, 80, 76, 84]
    def trx(b, j): return lambda: Q.ds(f"ds_read_b64_tr_b16 {vr(XN[b]+2*j,2)}, v6 offset:{b*1024+j*512}", ("XN", b))
    F[54] = e0[:2]
    F[55] = [e0[2], e1[0]]
    F[56] = e1[1:]
    F[57] = [lambda: Q.ds("ds_write2_b32 v5, v16, v20 offset0:0 offset1:128", ("I", 0))]
    F[60] = bar(("I", 0))
    F[61] = [trx(0,0), trx(0,1), e2[0]]
    F[62] = [trx(2,0), trx(2,1), e2[1]]
    F[63] = [e2[2], lambda: Q.ds("ds_write_b32 v5, v24 offset:1024", ("I", 1)), x("s_nop 5")] + e3 + \
            [lambda: Q.ds("ds_write_b32 v5, v28 offset:1536", ("I", 2))]
    def vml(so): return [f"buffer_load_dwordx2 {vr(VM0+2*t,2)}, v8, s[4:7], {so} offen offset:{256*t} sc1" for t in range(2)]
    vm = vml("s65")
    vm[0] = "s_waitcnt vmcnt(0)\n" + vm[0]
    if pV < 64: F[pV] = [x(vm[0])] + F[pV]; F[pV+opt.get("pVd", 1)] = [x(vm[1])] + F[pV+opt.get("pVd", 1)]
    pC = opt.get("pC", 63)
    if opt.get("can", 1):
        cst = x("buffer_store_dword v1, v119, s[4:7], s65 offen sc1")
        if pC == 63: F[63][2] = lambda: (cst(), g("s_nop 4"))
        elif pC < 63: F[pC] = F[pC] + [cst]
    def can_at(k):
        if opt.get("can", 1) and pC == k: cst()
    for p, (s, c) in enumerate(SMS):
        Q.need(("M", s), ("T", s, c))
        k, b = s_op(s, c)
        g(f"{SMF} {vr(16+4*c,4)}, {vr(mreg(s),4)}, {vr(b,8,k)}, v2")
        if p == 63: stamp(g, opt, 2)
        if p in opt.get("sp", []): g(f"s_memtime s[{72+2*(2+opt['sp'].index(p))}:{73+2*(2+opt['sp'].index(p))}]")
        for f in F[p]: f()
    S0, S1, S2 = 16, 20, 120
    def xs(b):
        Q.need(("XN", b))
        X = vr(XN[b], 4)
        g(f"{MF32} {vr(S2,4)}, {X}, {X}, {vr(MSK,4) if b == 0 else vr(S2,4)}")
        for t, S in ((0, S0), (1, S1)):
            g(f"{MF32} {vr(S,4)}, {vr(T0+16*t+4*b,4)}, {X}, {'0' if b == 0 else vr(S,4)}")
    xs(0)
    if opt.get("e2"): xs(2)
    if pV >= 64:
        for v in vm: g(v)
    can_at(64)
    Q.drain()
    g("s_barrier")
    can_at(645)
    for b in (1, 3): trx(b, 0)(); trx(b, 1)()
    if not opt.get("e2"): xs(2)
    can_at(65)
    stamp(g, opt, 3)
    g("s_cmp_eq_u32 s60, 63")
    g("s_cbranch_scc1 S_LAST")
    xs(1); xs(3)
    can_at(66)
    g(f"""
    s_nop 3
    v_max3_f32 v26, v{S2}, v{S2+1}, v{S2+2}
    s_nop 2
    v_max3_f32 v26, v26, v{S2+3}, v{S0}
    v_max3_f32 v27, v{S0+1}, v{S0+2}, v{S0+3}
    v_max3_f32 v26, v26, v{S1}, v{S1+1}
    v_max3_f32 v27, v27, v{S1+2}, v{S1+3}
    v_max_f32 v26, v26, v27
    v_max_f32 v27, v26, v27
    s_nop 1
    v_permlane32_swap_b32 v26, v27
    v_max_f32 v24, v26, v27
    v_max_f32 v25, v26, v27
    s_nop 1
    v_permlane16_swap_b32 v24, v25
    v_max_f32 v26, v24, v25
    v_mul_f32 v26, s66, v26
    """)
    can_at(67)
    PX, PM, O0, O1, L = 68, 24, 32, 36, 40
    xr = [S0+i for i in range(4)] + [S1+i for i in range(4)]
    pk = opt.get("pk", 1)
    def pkf(r): return f"v_pk_fma_f32 {vr(r,2)}, {vr(r,2)}, s[62:63], v[26:27] op_sel_hi:[1,1,0] neg_lo:[0,0,1] neg_hi:[0,0,1]"
    if pk:
        for r in xr[::2]: g(pkf(r))
    else:
        for r in xr: g(f"v_fma_f32 v{r}, v{r}, s66, -v26")
    for r in xr: g(f"v_exp_f32 v{r}, v{r}")
    can_at(68)
    g(f"v_fma_f32 v{S2}, v{S2}, s66, -v26")
    for i in range(4): g(f"v_cvt_pk_bf16_f32 v{PX+i}, v{xr[2*i]}, v{xr[2*i+1]}")
    for i in range(1, 3): g(f"v_fma_f32 v{S2+i}, v{S2+i}, s66, -v26")
    RV, CV = g.lab("SRV"), g.lab("SCV")
    g(f"""
    {MF32} {vr(L,4)}, {vr(ONE,4)}, {vr(PX,4)}, 0
    v_fma_f32 v{S2+3}, v{S2+3}, s66, -v26
    v_exp_f32 v{S2}, v{S2}
    {MF32} {vr(O0,4)}, {vr(VX0,4)}, {vr(PX,4)}, 0
    v_exp_f32 v{S2+1}, v{S2+1}
    {MF32} {vr(O1,4)}, {vr(VX0+4,4)}, {vr(PX,4)}, 0
    v_exp_f32 v{S2+2}, v{S2+2}
    v_exp_f32 v{S2+3}, v{S2+3}
    """)
    stamp(g, opt, 4)
    g(f"""
    v_cvt_pk_bf16_f32 v{PM}, v{S2}, v{S2+1}
    v_cvt_pk_bf16_f32 v{PM+1}, v{S2+2}, v{S2+3}
    s_waitcnt vmcnt({1 if opt.get("can", 1) else 0})
    v_max_u32 v11, v{VM0}, v{VM0+2}
    {MF16} {vr(L,4)}, {vr(ONE,2)}, {vr(PM,2)}, {vr(L,4)}
    v_cmp_eq_u32 vcc, {SEN}, v11
    s_cbranch_vccnz {RV}
    {CV}:
    """)
    stamp(g, opt, 5)
    g(f"""
    {MF16} {vr(O0,4)}, {vr(VM0,2)}, {vr(PM,2)}, {vr(O0,4)}
    {MF16} {vr(O1,4)}, {vr(VM0+2,2)}, {vr(PM,2)}, {vr(O1,4)}
    s_nop {opt.get("n1", 3)}
    v_rcp_f32 v{L}, v{L}
    s_nop {opt.get("n2", 1)}
    """)
    def mul4(o):
        if pk:
            for i in (0, 2): g(f"v_pk_mul_f32 {vr(o+i,2)}, {vr(o+i,2)}, {vr(L,2)} op_sel_hi:[1,0]")
        else:
            for i in range(4): g(f"v_mul_f32 v{o+i}, v{o+i}, v{L}")
    mul4(O0)
    for i in range(2): g(f"v_cvt_pk_bf16_f32 v{28+i}, v{O0+2*i}, v{O0+2*i+1}")
    mul4(O1)
    g("v_min_u32 v28, s67, v28")
    for i in range(2): g(f"v_cvt_pk_bf16_f32 v{30+i}, v{O1+2*i}, v{O1+2*i+1}")
    g("buffer_store_dwordx4 v[28:31], v9, s[4:7], s65 offen sc1")
    stamp(g, opt, 6)
    g("S_KM:")
    Q.drain()
    done = g.lab("KMD"); arm = g.lab("ARM")
    g(f"s_cmp_eq_u32 s24, 0\ns_cbranch_scc1 {done}")
    for b in (3, 2, 1, 0):
        nx = g.lab("KM")
        if b > 1: g(f"s_cmp_lg_u32 s24, {b}\ns_cbranch_scc1 {nx}")
        R_ = VM0 if b else VX0
        for i in range(4): g(f"v_min_u32 v{R_+i}, s67, v{XN[b]+i}")
        g(f"buffer_store_dwordx4 {vr(R_,4)}, v10, s[4:7], s59 offen offset:{512*b} sc1")
        if b > 1: g(f"s_branch {arm}\n{nx}:")
    g(f"""
    {arm}:
    s_cmp_ge_u32 s60, 58
    s_cbranch_scc1 {done}
    s_add_u32 s47, s60, 6
    s_bitcmp1_b64 s[86:87], s47
    s_cselect_b32 s47, 8192, 0
    s_add_u32 s47, s47, s61
    s_add_u32 s47, s47, {2*MB}
    s_lshl_b32 s48, s24, 9
    s_add_u32 s48, s48, s59
    s_add_u32 s48, s48, {6*65536 - 512}
    v_mov_b32 v16, -1
    v_mov_b32 v17, -1
    v_mov_b32 v18, -1
    v_mov_b32 v19, -1
    buffer_store_dwordx4 v[16:19], v9, s[4:7], s47 offen sc1
    {"buffer_store_dwordx4 v[16:19], v0" if opt.get("fl", 1) else "buffer_store_dword v16, v119"}, s[4:7], s47 offen sc1
    buffer_store_dwordx4 v[16:19], v10, s[4:7], s48 offen offset:512 sc1
    s_cmp_lg_u32 s24, 1
    s_cbranch_scc1 {done}
    s_sub_u32 s47, s47, 256
    buffer_store_dwordx4 v[16:19], v10, s[4:7], s48 offen sc1
    buffer_store_dwordx4 v[16:19], v9, s[4:7], s47 offen sc1
    {done}:
    """)
    stamp_dump(g, opt)
    nofl = g.lab("NF")
    g(f"""
    s_cmp_eq_u32 s60, 63
    s_cbranch_scc1 S_END
    s_add_u32 s60, s60, 1
    s_add_u32 s59, s59, 65536
    """)
    if not opt.get("solo"):
        rec_next(g, "s61", "s56", "s47")
        rec_at(g, "s65", "s61", "s60")
    g(f"""
    s_cmp_eq_u32 s60, 63
    s_cbranch_scc1 S_LOOP
    s_lshr_b32 s45, s60, 3
    s_lshr_b32 s48, s60, 1
    s_add_u32 s48, s48, 8
    s_cmp_lt_u32 s60, 8
    s_cselect_b32 s45, s48, s45
    s_cselect_b32 s47, 1, 7
    s_and_b32 s47, s60, s47
    s_cmp_lg_u32 s47, 0
    s_cbranch_scc1 {nofl}
    s_cmp_eq_u32 s24, 0
    s_cbranch_scc1 {nofl}
    """)
    if not opt.get("solo"): kv_flags(g, "S_END")
    g(f"{nofl}:")
    prefetch()
    g("s_branch S_LOOP")
    g("S_LAST:\ns_waitcnt vmcnt(0)\ns_branch S_KM")
    for r in range(3):
        g(f"{R[r]}:")
        g(f"s_add_u32 s68, s68, 1\ns_add_u32 s44, s44, 1\ns_cmp_gt_u32 s44, {TMO}\ns_cbranch_scc1 S_END")
        for k in range(r, 4): g(ld(k))
        g("s_waitcnt vmcnt(0)")
        if r == 2: g(f"v_max_u32 v11, v{M0+8}, v{M0+12}")
        g(cmp(M0+4*r if r < 2 else 11))
        g(f"s_cbranch_vccz {C[r]}\ns_branch {R[r]}")
    g(f"{RV}:")
    g(f"s_add_u32 s68, s68, 0x10000\ns_add_u32 s44, s44, 1\ns_cmp_gt_u32 s44, {TMO}\ns_cbranch_scc1 S_END")
    for v in vml("s65"): g(v)
    g(f"s_waitcnt vmcnt(0)\nv_max_u32 v11, v{VM0}, v{VM0+2}\nv_cmp_eq_u32 vcc, -1, v11")
    g(f"s_cbranch_vccz {CV}\ns_branch {RV}")
    g("S_END:")
    ddmark(g, opt, 9, 20)
    g("s_endpgm")
```

```python
from common import *
from gemm import f2u
from chain import (TMO, SMF, MF32, MF16, CEXP, stamp, stamp_init, stamp_dump, run_ring, idx_reg, wide_addrs, wide_issue, wide_read)
from s4 import backoff, probe, adapt
def cmp1(r): return f"v_cmp_eq_u32 vcc, -1, v{r}"
RVB, ROB = 0, 16384
def gen_vo(g, opt):
    g("R_VO:")
    g("s_setprio 3")
    srd(g, 8, A_WO, 8*MB); srd(g, 12, A_WV, 8*MB)
    g(f"""
    s_sub_u32 s26, s25, 1
    s_lshl_b32 s40, s24, 15
    s_lshl_b32 s42, s24, 21
    s_lshl_b32 s43, s27, 6
    s_add_u32 s42, s42, s43
    s_lshl_b32 s49, s27, 8
    s_lshl_b32 s43, s26, 7
    s_add_u32 s49, s49, s43
    s_lshl_b32 s43, s24, 21
    s_add_u32 s49, s49, s43
    """)
    wide_addrs(g, 2, 4, 8)
    g("""
    v_bfe_u32 v8, v1, 4, 1
    v_lshlrev_b32 v8, 3, v8
    v_xor_b32 v8, v8, v1
    v_lshrrev_b32 v9, 2, v8
    v_lshlrev_b32 v9, 11, v9
    v_and_b32 v8, 3, v8
    v_lshl_add_u32 v12, v8, 4, v9
    v_xor_b32 v8, 2, v8
    v_lshl_add_u32 v13, v8, 4, v9
    v_lshrrev_b32 v8, 4, v1
    v_lshlrev_b32 v8, 10, v8
    v_bfe_u32 v9, v1, 3, 1
    v_lshl_add_u32 v8, v9, 8, v8
    v_bfe_u32 v10, v1, 2, 1
    v_lshl_add_u32 v8, v10, 6, v8
    v_and_b32 v10, 3, v1
    v_lshl_add_u32 v8, v10, 3, v8
    v_add_u32 v8, s40, v8
    v_bfe_u32 v10, v1, 4, 1
    v_lshlrev_b32 v10, 5, v10
    v_lshl_add_u32 v9, v9, 7, v10
    """)
    for u in range(2):
        for t in range(2):
            g(f"v_xor_b32 v10, {128*u+32*t}, v9")
            g(f"v_add_u32 v{14+2*u+t}, v8, v10")
    srd(g, 72, A_MEM0, 16384)
    g(f"""
    s_and_b32 s43, s27, 3
    s_lshl_b32 s43, s43, 11
    s_lshr_b32 s47, s27, 2
    s_lshl_b32 s47, s47, 14
    s_add_u32 s43, s43, s47
    s_lshl_b32 s47, s26, 10
    s_add_u32 s43, s43, s47
    s_lshl_b32 s47, s24, 8
    s_add_u32 s43, s43, s47
    s_add_u32 s43, s43, {VM}
    v_lshrrev_b32 v21, 2, v1
    v_lshlrev_b32 v8, 4, v21
    v_add_u32 v8, s43, v8
    v_lshrrev_b32 v21, 4, v1
    v_bfe_u32 v22, v1, 2, 1
    v_bfe_u32 v23, v1, 3, 1
    v_lshlrev_b32 v20, 5, v21
    v_lshl_add_u32 v20, v22, 4, v20
    v_lshl_add_u32 v20, v23, 8, v20
    v_lshlrev_b32 v21, 11, v21
    v_lshl_add_u32 v21, v22, 4, v21
    v_lshl_add_u32 v21, v23, 5, v21
    s_and_b32 s43, s27, 15
    s_lshl_b32 s43, s43, 9
    s_lshr_b32 s47, s27, 4
    s_lshl_b32 s47, s47, 14
    s_add_u32 s43, s43, s47
    s_lshl_b32 s47, s26, 7
    s_add_u32 s43, s43, s47
    s_add_u32 s43, s43, {MEM}
    v_add_u32 v20, s43, v20
    v_and_b32 v22, 3, v1
    v_mov_b32 v23, {OOB}
    v_cmp_eq_u32 vcc, 0, v22
    s_lshl_b32 s43, s26, 13
    s_lshl_b32 s47, s27, 6
    s_add_u32 s43, s43, s47
    v_cndmask_b32 v8, v23, v8, vcc
    v_cndmask_b32 v20, v23, v20, vcc
    s_lshl_b32 s53, s26, 5
    s_add_u32 s53, s53, s27
    s_waitcnt lgkmcnt(0)
    buffer_load_dwordx4 v[24:27], v21, s[72:75], s43 offen
    """)
    can_regs(g, opt, 1, 0, 0, 119, "s53", opt.get("cW", 1), 23, 22)
    for i in range(4): g(f"v_mov_b32 v{120+i}, -1")
    def st(so):
        sk = g.lab("AM")
        g(f"""
        buffer_store_dwordx4 v[120:123], v8, s[4:7], {so} offen sc1
        {"" if opt.get("fl", 1) else f"buffer_store_dword v120, v119, s[4:7], {so} offen sc1"}
        s_cmp_lg_u32 s24, 2
        s_cbranch_scc1 {sk}
        {f"buffer_store_dwordx4 v[120:123], v0, s[4:7], {so} offen sc1" if opt.get("fl", 1) else ""}
        s_cmp_lt_u32 s47, 2
        s_cbranch_scc1 {sk}
        buffer_store_dwordx4 v[120:123], v20, s[4:7], {so} offen sc1
        {sk}:
        """)
    arm_first(g, st)
    sk = g.lab("AM")
    g(f"""
    s_cmp_lg_u32 s24, 0
    s_cbranch_scc1 {sk}
    s_waitcnt vmcnt(12)
    v_min_u32 v24, -2, v24
    s_mov_b32 s43, {REC}
    s_mov_b32 s47, {REC + 8192}
    buffer_store_dwordx4 v[24:27], v20, s[4:7], s43 offen sc1
    buffer_store_dwordx4 v[24:27], v20, s[4:7], s47 offen sc1
    {sk}:
    """)
    units = []
    def o_issue(hh, buf):
        for i in range(8):
            if i % 4 == 0: g(f"s_add_u32 m0, s40, {buf*8192 + i*1024}")
            g(f"s_add_u32 s41, s42, {hh*262144 + i*32768 - (i&3)*1024}")
            g(f"buffer_load_dwordx4 v{12+(i&1)}, s[8:11], s41 offen offset:{(i&3)*1024} lds")
    def o_read(hh, buf):
        for odd in range(2):
            for t in range(2):
                b = ((hh*2+odd)*2+t)*8
                for hf in range(2):
                    for u in range(2):
                        g(f"ds_read_b64_tr_b16 {ar(b+4*hf+2*u,2)}, v{14+2*u+t} offset:{buf*8192+hf*4096+odd*512}")
    for ff in range(4):
        units.append((lambda buf, ff=ff: wide_issue(g, 12, "s49", ff, buf, 2),
                      lambda buf, ff=ff: wide_read(g, lambda c: ("v", 128+(ff*4+c)*8), buf, 4), None))
    for hh in range(8):
        units.append((lambda buf, hh=hh: o_issue(hh, buf), lambda buf, hh=hh: o_read(hh, buf), None))
    run_ring(g, units, hook=arm_hook)
    g("s_barrier\nv_mov_b32 v13, v20")
    mark(g, opt, 3)
    idx_reg(g, 2, 11)
    g(f"""
    v_lshlrev_b32 v3, 4, v1
    s_and_b32 s43, s24, 1
    s_lshl_b32 s43, s43, 12
    s_lshr_b32 s47, s24, 1
    s_lshl_b32 s47, s47, 14
    s_or_b32 s43, s43, s47
    v_add_u32 v4, s43, v3
    v_add_u32 v4, {MEM}, v4
    s_lshl_b32 s43, s24, 14
    s_lshl_b32 s47, s26, 16
    s_add_u32 s43, s43, s47
    s_add_u32 s43, s43, {OM}
    v_add_u32 v5, s43, v3
    v_add_u32 v12, 4096, v5
    v_lshrrev_b32 v16, 5, v1
    v_lshlrev_b32 v6, 3, v1
    v_lshl_add_u32 v6, v16, 6, v6
    s_mul_i32 s43, s24, 2560
    v_add_u32 v6, s43, v6
    v_lshrrev_b32 v17, 2, v1
    v_and_b32 v18, 3, v1
    v_lshlrev_b32 v7, 3, v17
    v_lshl_add_u32 v7, v18, 7, v7
    v_lshrrev_b32 v19, 1, v18
    v_lshl_add_u32 v7, v19, 6, v7
    s_mul_i32 s43, s24, 640
    v_add_u32 v7, s43, v7
    v_and_b32 v19, 15, v1
    v_lshlrev_b32 v9, 2, v19
    v_bfe_u32 v20, v1, 4, 1
    v_lshl_add_u32 v9, v20, 8, v9
    v_lshl_add_u32 v9, v16, 7, v9
    s_lshl_b32 s43, s24, 9
    s_add_u32 s43, s43, {ROB}
    v_add_u32 v9, s43, v9
    v_lshlrev_b32 v10, 3, v1
    v_add_u32 v10, {ROB}, v10
    s_mov_b32 s60, 0
    s_mov_b32 s67, -2
    s_mov_b32 s68, 0
    s_mov_b32 s69, 0
    """)
    g(f"""
    s_mov_b32 s61, {REC}
    s_mov_b32 s56, 0
    """)
    g("s_lshl_b32 s43, s25, 5\ns_add_u32 s43, s43, s27")
    stamp_init(g, opt, "s43")
    par_init(g, opt, 16, "V_END")
    rec_at(g, "s50", "s61", "0")
    g(f"s_mov_b32 s62, {REC}\ns_mov_b32 s60, -1\ns_mov_b32 s69, {opt.get('dO', 0)}\ns_mov_b32 s53, {opt.get('tO', 9)}")
    def ldm(f, so="s50"): return f"buffer_load_dwordx4 {vr(16+4*f,4)}, v4, s[4:7], {so} offen offset:{f*1024} sc1"
    def ldo(f, so="s65"): return f"buffer_load_dwordx4 {vr(32+4*f,4)}, v{5 if f < 4 else 12}, s[4:7], {so} offen offset:{(f%4)*1024} sc1"
    def gather4(dst):
        g("s_nop 1")
        for q in (1, 2, 3):
            g(f"v_mov_b32_dpp v{dst+q}, v{dst} quad_perm:[{q},{q},{q},{q}] row_mask:0xf bank_mask:0xf")
    for i in range(16): g(f"v_mov_b32 v{64+i}, 0")
    g("V_LOOP:")
    stamp(g, opt, 0)
    for f in range(4):
        g(ldm(f))
        if f < 3 and opt.get("stV", 4): g(f"s_nop {opt.get('stV', 4)-1}")
    g("""
    s_add_u32 s60, s60, 1
    s_mov_b32 s65, s50
    s_mov_b32 s44, 0
    s_add_u32 s61, s62, 0x200000
    """)
    rec_next(g, "s62", "s56", "s47")
    g("s_add_u32 s47, s60, 1")
    rec_at(g, "s50", "s62", "s47")
    for i in range(16): g(f"v_mov_b32 v{80+i}, 0")
    R = [g.lab("VR") for f in range(4)]; C = [g.lab("VC") for f in range(4)]
    g("s_waitcnt vmcnt(3)")
    g(cmp1(16))
    g(f"s_cbranch_vccnz {R[0]}\n{C[0]}:")
    for f in range(4):
        for c in range(4):
            g(f"{SMF} {vr(64+4*c,4)}, {vr(16+4*f,4)}, {vr(128+(f*4+c)*8,8)}, v2")
            if c == 2 and f < 3:
                g(f"s_waitcnt vmcnt({2-f})")
                g(cmp1(16+4*(f+1)))
            if c == 3 and f < 3:
                g(f"s_cbranch_vccnz {R[f+1]}\n{C[f+1]}:")
    stamp(g, opt, 1)
    for c in range(4):
        a = 64 + 4*c
        if c in (1, 2): g("s_nop 0")
        g(f"v_add_f32 v{96+2*c}, v{a}, v{a+1}")
        g(f"v_add_f32 v{97+2*c}, v{a+2}, v{a+3}")
        g(f"ds_write_b64 v6, {vr(96+2*c,2)} offset:{RVB+640*c}")
    g("s_waitcnt lgkmcnt(0)\ns_barrier")
    for w in range(4): g(f"ds_read_b64 {vr(96+2*w,2)}, v7 offset:{RVB+2560*w}")
    for i in range(16): g(f"v_mov_b32 v{64+i}, 0")
    g("""
    s_waitcnt lgkmcnt(2)
    v_pk_add_f32 v[96:97], v[96:97], v[98:99]
    s_waitcnt lgkmcnt(0)
    v_pk_add_f32 v[100:101], v[100:101], v[102:103]
    v_pk_add_f32 v[96:97], v[96:97], v[100:101]
    v_cvt_pk_bf16_f32 v104, v96, v97
    v_min_u32 v104, s67, v104
    """)
    gather4(104)
    g("buffer_store_dwordx4 v[104:107], v8, s[4:7], s65 offen sc1")
    stamp(g, opt, 2)
    stamp_dump(g, opt)
    g("s_cmp_eq_u32 s60, 63\ns_cbranch_scc1 V_END")
    done = g.lab("ARD"); n1 = g.lab("ARN")
    g(f"""
    s_cmp_eq_u32 s24, 0
    s_cbranch_scc1 {done}
    s_cmp_ge_u32 s60, 58
    s_cbranch_scc1 {done}
    s_add_u32 s47, s60, 6
    s_bitcmp1_b64 s[86:87], s47
    s_cselect_b32 s47, 8192, 0
    s_add_u32 s47, s47, s61
    buffer_store_dwordx4 v[120:123], v8, s[4:7], s47 offen sc1
    {"buffer_store_dwordx4 v[120:123], v0" if opt.get("fl", 1) else "buffer_store_dword v120, v119"}, s[4:7], s47 offen sc1
    s_cmp_lg_u32 s24, 2
    s_cbranch_scc1 {n1}
    buffer_store_dwordx4 v[120:123], v13, s[4:7], s47 offen sc1
    {n1}:
    s_cmp_lg_u32 s24, 3
    s_cbranch_scc1 {done}
    s_sub_u32 s47, s47, 768
    buffer_store_dwordx4 v[120:123], v8, s[4:7], s47 offen sc1
    {done}:
    """)
    g("s_mov_b32 s44, 0")
    if opt.get("can", 1): probe(g, opt, "O", 0, 32)
    else: backoff(g, opt.get("dO", 0))
    stamp(g, opt, 3)
    for f in range(8):
        g(ldo(f))
        if f < 7 and opt.get("stO", 8): g(f"s_nop {opt.get('stO', 8)-1}")
    adapt(g, opt, "O")
    RO = [g.lab("OR") for f in range(8)]; CO = [g.lab("OC") for f in range(8)]
    g("s_waitcnt vmcnt(7)")
    g(cmp1(32))
    g(f"s_cbranch_vccnz {RO[0]}\n{CO[0]}:")
    stamp(g, opt, 4)
    fC = opt.get("fC", 0) if opt.get("can", 1) else 99
    for f in range(8):
        for c in range(4):
            g(f"{SMF} {vr(80+4*c,4)}, {vr(32+4*f,4)}, {ar((f*4+c)*8,8)}, v2")
            if c == 0 and f == fC: g("buffer_store_dword v1, v119, s[4:7], s50 offen sc1")
            if c == 2 and f < 7:
                g(f"s_waitcnt vmcnt({6-f+(1 if f >= fC else 0)})")
                g(cmp1(32+4*(f+1)))
            if c == 3 and f < 7:
                g(f"s_cbranch_vccnz {RO[f+1]}\n{CO[f+1]}:")
    stamp(g, opt, 5)
    g("""
    s_mov_b32 exec_hi, 0
    v_add_f32 v96, v80, v81
    v_add_f32 v98, v82, v83
    s_nop 0
    v_add_f32 v97, v84, v85
    v_add_f32 v99, v86, v87
    s_not_b64 exec, exec
    s_nop 0
    v_add_f32 v96, v88, v89
    v_add_f32 v98, v90, v91
    v_add_f32 v97, v92, v93
    v_add_f32 v99, v94, v95
    s_mov_b64 exec, -1
    """)
    if fC == 8: g("buffer_store_dword v1, v119, s[4:7], s50 offen sc1")
    else: g("s_nop 0")
    g("""
    v_permlane32_swap_b32 v96, v98
    v_permlane32_swap_b32 v97, v99
    s_nop 0
    v_add_f32 v96, v96, v98
    v_add_f32 v97, v97, v99
    ds_write2_b32 v9, v96, v97 offset0:0 offset1:16
    s_waitcnt lgkmcnt(0)
    s_barrier
    s_cmp_lg_u32 s24, 0
    s_cbranch_scc1 V_NEXT
    """)
    for k in range(4): g(f"ds_read_b64 {vr(96+2*k,2)}, v10 offset:{512*k}")
    g("""
    s_waitcnt lgkmcnt(2)
    v_pk_add_f32 v[96:97], v[96:97], v[98:99]
    s_waitcnt lgkmcnt(0)
    v_pk_add_f32 v[100:101], v[100:101], v[102:103]
    v_pk_add_f32 v[96:97], v[96:97], v[100:101]
    v_cvt_pk_bf16_f32 v112, v96, v97
    v_min_u32 v112, s67, v112
    """)
    gather4(112)
    g("buffer_store_dwordx4 v[112:115], v13, s[4:7], s50 offen sc1")
    stamp(g, opt, 6)
    g("V_NEXT:")
    g("s_barrier")
    d = opt.get("dV", 0)
    while d > 0:
        g(f"s_nop {min(d, 16)-1}"); d -= 16
    g("s_branch V_LOOP")
    for (RR, CC, n, ldf, base, inc) in ((R, C, 4, ldm, 16, 1), (RO, CO, 8, ldo, 32, 0x10000)):
        for f in range(n):
            g(f"{RR[f]}:")
            g(f"s_add_u32 s68, s68, {inc}\ns_add_u32 s44, s44, 1\ns_cmp_gt_u32 s44, {TMO}\ns_cbranch_scc1 V_END")
            for k in range(f, n): g(ldf(k, "s65"))
            g("s_waitcnt vmcnt(0)")
            g(cmp1(base+4*f))
            g(f"s_cbranch_vccz {CC[f]}\ns_branch {RR[f]}")
    g("V_END:")
    g("s_endpgm")
```

```python
import sys, os
sys.path.insert(0, os.path.dirname(os.path.abspath(__file__)))
from common import *
from k0 import gen_init
from gemm import gen_gemm, gen_gemm64, gen_f2h
LDS_BYTES = 163840
BC = LDS_BYTES - 16

def task_lists(opt={}):
    L = {}
    sch = opt.get("sch", 2)
    if sch == 0: L[3] = [("K",0,16,1,1), ("V",0,16,1,1), ("Q",0,16,0,2), ("Q",0,16,2,2)]
    if sch == 1: L[3] = [("K",0,16,1,1), ("V",0,16,1,1), ("Q",0,16,0,2), ("Q",0,16,2,2), ("Q",0,16,4,2)]
    if sch == 2: L[3] = [("K",0,16,1,1), ("V",0,16,1,1), ("K",0,16,2,1), ("V",0,16,2,1), ("Q",0,16,0,2), ("Q",0,16,2,2)]
    for i, c in enumerate((4, 5, 6, 7)):
        t = "KV"[i >> 1]; t0 = 8*(i & 1)
        if sch < 2:
            L[c] = [(t+"64",t0,8,0,4), (t,t0,8,2,1), ("F1",7*(i&1),7,4*(i>>1),4), (t,t0,8,3,1), ("F2",0,4,(0,3,8,11)[i],3), (t,t0,8,4,1),
                    (t,t0,4,5,1), ("F2",0,4,(6,7,14,15)[i],1), (t,t0+4,4,5,1), (t,t0,8,6,2), ("Q",4*i,4,4,4) if sch == 0 else ("Q",4*i,4,6,2)]
        else:
            L[c] = [(t+"64",t0,8,0,4), (t,t0,4,3,1), ("F1",7*(i&1),7,4*(i>>1),4), (t,t0+4,4,3,1), ("F2",0,4,4*i,4), (t,t0,8,4,4), ("Q",4*i,4,4,4)]
    for c in L: L[c] = [x for x in L[c] if x[0] not in opt.get("drop", [])]
    return L

def bcast_atomic(g, soff, dst, R="s[4:7]"):
    sk = g.lab("BA")
    g(f"""
    s_cmp_lg_u32 s24, 0
    s_cbranch_scc1 {sk}
    v_mov_b32 v2, 1
    v_mov_b32 v3, 0
    v_mov_b32 v4, {BC}
    s_mov_b64 exec, 1
    buffer_atomic_add v2, v3, {R}, {soff} offen sc0 sc1
    s_waitcnt vmcnt(0)
    ds_write_b32 v4, v2
    s_mov_b64 exec, -1
    s_waitcnt lgkmcnt(0)
    {sk}:
    s_barrier
    v_mov_b32 v4, {BC}
    ds_read_b32 v2, v4
    s_waitcnt lgkmcnt(0)
    v_readfirstlane_b32 {dst}, v2
    s_barrier
    """)

def gen_main(g, opt):
    g("""
    s_cmp_ge_u32 s2, 256
    s_cbranch_scc1 M_END
    """)
    srd(g, 4, A_WS, WS_BYTES); srd(g, 16, A_DBG, 256)
    g("""
    v_and_b32 v1, 63, v0
    v_lshrrev_b32 v2, 6, v0
    s_getreg_b32 s22, hwreg(HW_REG_XCC_ID, 0, 4)
    v_readfirstlane_b32 s24, v2
    s_mov_b32 s23, 0
    s_waitcnt lgkmcnt(0)
    M_TRY:
    s_add_u32 s25, s22, s23
    s_and_b32 s25, s25, 7
    s_lshr_b32 s26, s25, 2
    s_lshl_b32 s26, s26, 7
    s_and_b32 s27, s25, 3
    s_lshl_b32 s27, s27, 2
    s_add_u32 s26, s26, s27
    """)
    bcast_atomic(g, "s26", "s27", "s[16:19]")
    g("""
    s_cmp_lt_u32 s27, 32
    s_cbranch_scc1 M_GOT
    s_add_u32 s23, s23, 1
    s_cmp_lt_u32 s23, 8
    s_cbranch_scc1 M_TRY
    s_branch M_END
    M_GOT:
    s_mov_b32 s20, s25
    s_mov_b32 s21, s27
    """)
    mark(g, opt, 0)
    ddmark(g, opt, 4, 250, True); ddmark(g, opt, 5, 250)
    if opt.get("chain", True):
        if opt.get("mix", 1):
            g("""
            s_cmp_ge_u32 s25, 3
            s_cbranch_scc1 W_INIT
            s_lshl_b32 s26, s25, 5
            s_add_u32 s26, s26, s27
            s_mul_i32 s27, s26, 21846
            s_lshr_b32 s27, s27, 16
            s_mul_i32 s25, s27, 3
            s_sub_u32 s25, s26, s25
            """)
            if opt.get("marks"): g("s_mov_b32 s20, s25\ns_mov_b32 s21, s27")
        g("""
        s_cmp_eq_u32 s25, 0
        s_cbranch_scc1 R_S
        """)
        if opt.get("solo"): g("s_branch M_END")
        g("""
        s_cmp_lt_u32 s25, 3
        s_cbranch_scc1 R_VO
        """)
    elif not opt.get("allwork"):
        g("s_cmp_lt_u32 s25, 3\ns_cbranch_scc1 M_END")
    gen_init(g, opt)
    mark(g, opt, 4)
    ddmark(g, opt, 6, 250)
    g("s_mov_b32 s27, s21\ns_branch W_TASK\nW_LOOP:")
    g(f"s_lshl_b32 s26, s20, 8\ns_add_u32 s26, s26, {FLG+F_Q}")
    bcast_atomic(g, "s26", "s27")
    g("s_add_u32 s27, s27, 32\nW_TASK:")
    if opt.get("marks"): g("s_mov_b32 s96, s27")
    tmark(g, opt, 0)
    TL = task_lists(opt)
    for c in range(3, 8):
        nc = g.lab("TC")
        if c < 7: g(f"s_cmp_lg_u32 s20, {c}\ns_cbranch_scc1 {nc}")
        start = 0
        for typ, t0, nt, b0, nb in TL[c]:
            nx = g.lab("TK"); n = nt*nb
            mul = (65536 + nt - 1)//nt
            assert all((i*mul) >> 16 == i//nt for i in range(n))
            g(f"""
            s_cmp_lt_u32 s27, {start+n}
            s_cbranch_scc0 {nx}
            s_sub_u32 s29, s27, {start}
            s_mul_i32 s28, s29, {mul}
            s_lshr_b32 s28, s28, 16
            s_mul_i32 s26, s28, {nt}
            s_sub_u32 s29, s29, s26
            s_add_u32 s29, s29, {t0}
            s_add_u32 s28, s28, {b0}
            s_branch T_{typ}
            {nx}:
            """)
            start += n
        if c < 7: g(f"s_branch W_END\n{nc}:")
    g("W_END:")
    mark(g, opt, 1)
    ddmark(g, opt, 10, 250)
    if opt.get("ap", True):
        g(f"""
        s_mov_b32 s27, s21
        s_cmp_eq_u32 s20, 3
        s_cbranch_scc1 {"M_END" if opt.get("noA") else "R_A"}
        {"s_branch M_END" if opt.get("noP") else ""}
        """)
        if opt.get("pT", 1):
            g(f"s_lshl_b32 s26, s20, 8\ns_add_u32 s26, s26, {FLG+F_Q+128}")
            bcast_atomic(g, "s26", "s27")
        g("s_sub_u32 s26, s20, 4")
        pm = opt.get("pm", 2)
        if pm:
            g(f"""
            s_lshl_b32 s25, s26, 5
            s_add_u32 s25, s25, s27
            s_bfe_u32 s26, s25, {(5-pm) | (2 << 16)}
            s_lshr_b32 s27, s25, {7-pm}
            s_lshl_b32 s27, s27, {5-pm}
            s_and_b32 s25, s25, {(1 << (5-pm)) - 1}
            s_or_b32 s27, s27, s25
            """)
        g("s_branch R_P")
    g("s_branch M_END")
    for typ in ("K", "V", "Q", "F1"):
        gen_gemm(g, typ, "W_LOOP", "M_END", opt)
    gen_f2h(g, "W_LOOP", "M_END", opt)
    for typ in "KV": gen_gemm64(g, typ, "W_LOOP", opt)
    if opt.get("chain", True):
        from s4 import gen_s
        from vo2 import gen_vo
        gen_s(g, opt); gen_vo(g, opt)
    if opt.get("ap", True):
        from ap import gen_a, gen_p
        gen_a(g, opt); gen_p(g, opt)
    g("M_END2:")
    mark(g, opt, 2)
    ddmark(g, opt, 11, 250)
    g("M_END:")
    g("s_endpgm")

def build(opt=None):
    opt = opt or {}
    ref = open("cdna_kernels/" + NAME + ".s.ref").read().split("\n")
    hdr = [l for l in ref if l.startswith(";") and "@launch" not in l and "Override" not in l and "grid=ceil" not in l]
    out = "\n".join(hdr) + "\n"
    out += f"; @launch grid=(256,1,1) block=(256,1,1) lds={LDS_BYTES}\n"
    out += '.amdgcn_target "amdgcn-amd-amdhsa--gfx950"\n.text\n'
    g = G(); gen_main(g, opt)
    out += f".globl {NAME}_kernel\n.p2align 8\n.type {NAME}_kernel,@function\n{NAME}_kernel:\n" + g.text()
    out += '.section .rodata,"a"\n.p2align 6\n' + kdesc(NAME + "_kernel", 512, 256)
    return out

if __name__ == "__main__":
    import json
    opt = json.loads(sys.argv[2]) if len(sys.argv) > 2 else {}
    open(sys.argv[1], "w").write(build(opt))
```
